```python
import torch

def _softmax(x, axis=-1):
    return torch.softmax(x, dim=axis)
def _gelu(x):
    return torch.nn.functional.gelu(x, approximate="tanh")
def _silu(x):
    return torch.nn.functional.silu(x)
def _sigmoid(x):
    return torch.sigmoid(x)
def _layernorm(x, axis=-1, eps=1e-5):
    m = x.mean(dim=axis, keepdim=True)
    v = x.var(dim=axis, keepdim=True, unbiased=False)
    return (x - m) / torch.sqrt(v + eps)
def _scatter_add(tgt, idx, src, axis=0):
    return tgt.clone().index_add_(axis, idx, src)
def _segment_sum(src, seg, n):
    out = torch.zeros((n,) + src.shape[1:], dtype=src.dtype)
    return out.index_add_(0, seg, src)
def _pad(x, pw):
    flat = tuple(v for pair in reversed(pw) for v in pair)
    return torch.nn.functional.pad(x, flat)

kernel_name = 'standalone__gqa_softmax__near_ridge'

def setup_inputs():

    _w = (lambda a: (lambda t: t.to(torch.bfloat16) if t.is_floating_point() else t)(torch.as_tensor(a)))
    B, Hq, Hkv, Sq, Sk, D = 8, 32, 16, 336, 1024, 128
    return {
        "q": _w((lambda *s: torch.randn(*s, dtype=torch.bfloat16) * 0.8)(B, Hq, Sq, D)),
        "k": _w((lambda *s: torch.randn(*s, dtype=torch.bfloat16) * 0.8)(B, Hkv, Sk, D)),
        "v": _w((lambda *s: torch.randn(*s, dtype=torch.bfloat16) * 0.05)(B, Hkv, Sk, D)),
    }

def reference(q, k, v):
    B, Hq, Sq, D = q.shape
    Hkv = k.shape[1]
    rep = Hq // Hkv
    k = (lambda x, n, axis: torch.repeat_interleave(x, n, dim=axis))(k, rep, axis=1)
    v = (lambda x, n, axis: torch.repeat_interleave(x, n, dim=axis))(v, rep, axis=1)
    scale = D ** -0.5
    scores = torch.einsum("bhqd,bhkd->bhqk", q, k) * scale
    p = _softmax(scores, axis=-1)
    return torch.einsum("bhqk,bhkd->bhqd", p, v)
```

```python
import struct, sys, math

KNAME = "standalone__gqa_softmax__near_ridge_kernel"
OUT = sys.argv[1] if len(sys.argv) > 1 else "standalone__gqa_softmax__near_ridge.s"
OPTS = dict(a.split("=") for a in sys.argv[2:])
def opt(name, default):
    return type(default)(OPTS.get(name, default))

def f32(x): return "0x%08x" % struct.unpack("<I", struct.pack("<f", x))[0]
SCALE = math.log2(math.e) / math.sqrt(128.0)

NT = 5
def VQ(t, s): return 16 * t + 4 * s
def SP(p, t): return 96 + 40 * p + 8 * t
SX = 176
def VL(t): return 180 + t
def VKA(j, p): return 186 + 2 * j + p
def VVA(j, c): return 194 + 4 * j + c
def VDK(j): return 210 + j
def VDV(j): return 214 + j
VLANE = 218
VT = 220
def AO(t, dt): return 32 * t + 4 * dt
def AK(b, s): return 192 + 16 * b + 4 * s
def AV(b, i): return 224 + 16 * b + 4 * i
S_Q, S_K, S_V, S_O = 4, 8, 12, 16
S_W = 20; S_KOFF = 21; S_VOFF = 22; S_CNT = 23; S_M0K = 24; S_M0V = 25
S_C = 28
S_BAD = 30
S_T = 32
LDS_V = 65536
LDS_X = 131072

def vr(n, k=1): return f"v{n}" if k == 1 else f"v[{n}:{n+k-1}]"
def ar(n, k=1): return f"a{n}" if k == 1 else f"a[{n}:{n+k-1}]"
def R(kind, n, k=1): return {(kind, n + i) for i in range(k)}

class I:
    def __init__(s, text, kind, rd=(), wr=()):
        s.text, s.kind, s.rd, s.wr = text, kind, set(rd), set(wr)
    def __repr__(s): return s.text

class Asm:
    def __init__(s): s.L = []
    def raw(s, text, kind="other", rd=(), wr=()):
        s.L.append(I(text, kind, rd, wr)); return s.L[-1]
    def label(s, name): s.L.append(I(name + ":", "label"))
    def comment(s, c): s.L.append(I("; " + c, "label"))
    def nop(s, n):
        while n > 0:
            k = min(n, 16); s.raw(f"s_nop {k-1}", "nop"); s.L[-1].ws = k; n -= k
    def salu(s, text): return s.raw(text, "salu")
    def valu(s, text, rd=(), wr=()): return s.raw(text, "valu", rd, wr)

def mfma_qk(t, j, s):
    d = SX if t == NT else SP(j // 2, t) + 4 * (j % 2)
    a = AK(j % 2, s); b = VQ(t, s)
    c = "0" if s == 0 else vr(d, 4)
    rd = R("a", a, 4) | R("v", b, 4) | (R("v", d, 4) if s else set())
    i = I(f"v_mfma_f32_16x16x32_bf16 {vr(d,4)}, {ar(a,4)}, {vr(b,4)}, {c}", "mfma", rd, R("v", d, 4))
    i.cacc = R("v", d, 4) if s else set()
    return i
def mfma_pv(t, p, dt):
    d = AO(t, dt); a = AV(dt // 4, dt % 4)
    if t == NT:
        i = I(f"v_mfma_f32_16x16x16_bf16 {ar(d,4)}, {ar(a,2)}, {vr(SX,2)}, {ar(d,4)}", "mfma",
              R("a", a, 2) | R("v", SX, 2) | R("a", d, 4), R("a", d, 4))
    else:
        b = SP(p, t)
        i = I(f"v_mfma_f32_16x16x32_bf16 {ar(d,4)}, {ar(a,4)}, {vr(b,4)}, {ar(d,4)}", "mfma",
              R("a", a, 4) | R("v", b, 4) | R("a", d, 4), R("a", d, 4))
    i.cacc = R("a", d, 4)
    return i
def lds_k(j, s, stage):
    d = AK(j % 2, s)
    return I(f"ds_read_b128 {ar(d,4)}, {vr(VKA(j, s % 2))} offset:{stage*16384 + (s//2)*8192}", "lds",
             R("v", VKA(j, s % 2)), R("a", d, 4))
def lds_v(p, dt, h, stage):
    d = AV(dt // 4, dt % 4) + 2 * h
    j = 2 * p + h
    return I(f"ds_read_b64_tr_b16 {ar(d,2)}, {vr(VVA(j, dt % 4))} offset:{stage*16384 + (dt//4)*8192}", "lds",
             R("v", VVA(j, dt % 4)), R("a", d, 2))
def v_exp(r): return I(f"v_exp_f32 {vr(r)}, {vr(r)}", "trans", R("v", r), R("v", r))
def v_addl(t, r): return I(f"v_add_f32 {vr(VL(t))}, {vr(VL(t))}, {vr(r)}", "valu", R("v", r) | R("v", VL(t)), R("v", VL(t)))
def v_cvt(d, a, b): return I(f"v_cvt_pk_bf16_f32 {vr(d)}, {vr(a)}, {vr(b)}", "valu", R("v", a) | R("v", b), R("v", d))
def dma(which, j):
    if which == "K":
        return I(f"buffer_load_dwordx4 {vr(VDK(j))}, s[{S_K}:{S_K+3}], s{S_KOFF} offen offset:{1024*j} lds", "dma", R("v", VDK(j)))
    return I(f"buffer_load_dwordx4 {vr(VDV(j))}, s[{S_V}:{S_V+3}], s{S_VOFF} offen offset:{1024*j} lds", "dma", R("v", VDV(j)))

def block_mfmas():
    M = []
    def Q(j):
        for t in range(NT):
            for s in range(4): M.append(("QK", t, j, s))
        if j == 0:
            for s in range(4): M.append(("QK", NT, 0, s))
    def P(p, half):
        for dt in range(4 * half, 4 * half + 4):
            for t in range(NT): M.append(("PV", t, p, dt))
            if p == 0: M.append(("PV", NT, 0, dt))
    Q(0); P(1, 0); Q(1); P(1, 1); Q(2); P(0, 0); Q(3); P(0, 1)
    return M
BM = block_mfmas()
NB = len(BM)
def midx(tag): return BM.index(tag)

class Op:
    def __init__(s, name, blk, mk, cost, E, D, preds=(), first=False):
        s.name, s.blk, s.mk, s.cost, s.E, s.D, s.preds, s.first = name, blk, mk, cost, E, D, list(preds), first
        s.gap = None
        Op.count += 1; s.seq = Op.count
Op.count = 0

EXP_LAG = opt("explag", 4)
LDS_LEAD = opt("ldslead", 12)
BAR_POS = midx(("QK", 0, 3, 3)) + opt("barshift", 0)

def block_ops(b):
    base = b * NB
    ops = []
    for t in range(NT + 1):
        for j in range(4 if t < NT else 1):
            p = j // 2
            r0 = SX if t == NT else SP(p, t) + 4 * (j % 2)
            mend = base + midx(("QK", t, j, 3))
            if p == 0: cons = base + midx(("PV", t, 0, 0))
            else: cons = base + NB + midx(("PV", t, 1, 0))
            dc = cons - 3
            exps = [Op(f"exp{t}{j}{k}", b, lambda st, r=r0 + k: v_exp(r), 8, mend + EXP_LAG, dc - 4) for k in range(4)]
            adds = [Op(f"add{t}{j}{k}", b, lambda st, r=r0 + k, t=t: v_addl(t, r), 4, 0, dc - 2, [exps[k]]) for k in range(4)]
            pb = SX if t == NT else SP(p, t)
            dst = pb + 2 * (j % 2)
            c0 = Op(f"cvt{t}{j}0", b, lambda st, d=dst, r=r0: v_cvt(d, r, r + 1), 4, 0, dc - 1, adds[0:2])
            c1 = Op(f"cvt{t}{j}1", b, lambda st, d=dst + 1, r=r0: v_cvt(d, r + 2, r + 3), 4, 0, dc, adds[2:4] + [c0])
            if j % 2 == 1:
                prev = [o for o in ops if o.name == f"cvt{t}{j-1}1"][0]
                c0.preds.append(prev); c1.preds.append(prev)
            for k, o in enumerate(exps + adds + [c0, c1]): o.seq = mend * 100 + k
            ops += exps + adds + [c0, c1]
    for j in range(4):
        first_use = base + midx(("QK", 0, j, 0))
        for s in range(4):
            if j >= 2:
                lastt = NT if j - 2 == 0 else NT - 1
                E = base + midx(("QK", lastt, j - 2, s))
            else:
                E = base - NB + midx(("QK", NT - 1, j + 2, s))
                E = max(E, base - NB + BAR_POS + 1)
            ops.append(Op(f"ldk{j}{s}", b, lambda st, j=j, s=s: lds_k(j, s, st), 4, E, first_use + s - LDS_LEAD, first=True))
    for p in range(2):
        for dt in range(8):
            ub = base if p == 0 else base + NB
            first_use = ub + midx(("PV", 0, p, dt))
            if p == 0: E = base + midx(("PV", NT - 1, 1, dt))
            else: E = base + midx(("PV", NT, 0, dt))
            for h in range(2):
                ops.append(Op(f"ldv{p}{dt}{h}", b, lambda st, p=p, dt=dt, h=h: lds_v(p, dt, h, st), 4, E, first_use - LDS_LEAD, first=True))
    prev = None
    E = base + BAR_POS + 1
    seq = [("m0V",), ("V", 0), ("V", 1), ("V", 2), ("V", 3), ("m0K",), ("K", 0), ("K", 1), ("K", 2), ("K", 3), ("adv",)]
    for n, it in enumerate(seq):
        if it[0] == "m0V":
            mk = lambda st: I(f"s_add_u32 m0, s{S_M0V}, {((st + 3) % 4) * 16384}", "salu_m0"); cost = 0
        elif it[0] == "m0K":
            mk = lambda st: I(f"s_add_u32 m0, s{S_M0K}, {(st % 4) * 16384}", "salu_m0"); cost = 0
        elif it[0] == "adv":
            mk = lambda st: [I(f"s_add_u32 s{S_KOFF}, s{S_KOFF}, 16384", "salu"), I(f"s_add_u32 s{S_VOFF}, s{S_VOFF}, 16384", "salu")]; cost = 0
        else:
            mk = lambda st, it=it: dma(it[0], it[1]); cost = 8
        o = Op(f"dma{n}", b, mk, cost, E + opt("dmaspread", 5) * n, E + opt("dmaspread", 5) * n + 8, [prev] if prev else [])
        o.isdma = True
        ops.append(o); prev = o
    return ops

def schedule(ops, g0, g1):
    gaps = {}
    LW = opt("ldswin", 28)
    PANIC = opt("panic", 14)
    pend = list(ops)
    for o in pend:
        o.cls = "free" if o.cost == 0 else "mem" if (o.first or getattr(o, "isdma", False)) else "exp" if o.cost == 8 else "plain"
    pend.sort(key=lambda o: (o.D, o.seq))
    for g in range(g0, g1):
        def ready(o): return o.E <= g and all(p.gap is not None and p.gap < g for p in o.preds)
        cand = [o for o in pend if ready(o)]
        placed = [o for o in cand if o.cls == "free"]
        mem = [o for o in cand if o.cls == "mem"]
        exps = sorted([o for o in cand if o.cls == "exp"], key=lambda o: o.seq)
        plain = sorted([o for o in cand if o.cls == "plain"], key=lambda o: o.seq)
        soft = [o for o in pend if o.cls in ("exp", "plain") and o.E <= g + 200]
        slack = min([o.D - g for o in soft], default=999)
        forced = [o for o in mem if o.D <= g]
        due = [o for o in mem if g >= o.D - LW and o not in forced]
        used = 0
        if forced:
            placed += forced; used += 4 * len(forced)
        elif due and plain:
            placed.append(due[0]); used += 4
        if used:
            if plain and used < 8: placed.append(plain.pop(0)); used += 4
        elif len(plain) >= opt("backlog", 3) or (plain and not exps):
            placed += plain[:2]; used += 4 * len(plain[:2]); plain = plain[2:]
        elif exps:
            placed.append(exps.pop(0)); used += 8
        elif due:
            placed.append(due[0]); used += 4
        if slack < PANIC and plain:
            placed.append(plain.pop(0)); used += 4
        for o in exps + plain:
            if o.D <= g and o not in placed: placed.append(o)
        for o in placed:
            o.gap = g; pend.remove(o)
        order = {"free": 0, "mem": 1, "exp": 2, "plain": 3}
        placed.sort(key=lambda o: order[o.cls])
        gaps[g] = placed
    return gaps, pend

def build_template():
    NBLK = 9
    allops = []
    per = {}
    for b in range(NBLK):
        per[b] = block_ops(b); allops += per[b]
    gaps, pend = schedule(allops, -NB, NBLK * NB + NB)
    def rel(b):
        return [[(o.blk - b, o.name) for o in gaps[b * NB + g]] for g in range(NB)]
    assert rel(4) == rel(5) == rel(6), "schedule not periodic"
    return rel(5)

TEMPLATE = build_template()
def stats():
    over = 0
    protos = {o.name: o for o in block_ops(0)}
    hist = {}
    for g, l in enumerate(TEMPLATE):
        c = sum(protos[n].cost for _, n in l)
        hist[c] = hist.get(c, 0) + 1
    return hist
PROTO = {o.name: o for o in block_ops(0)}

def emit_op(a, name, stage):
    r = PROTO[name].mk(stage % 4)
    for i in (r if isinstance(r, list) else [r]): a.L.append(i)

def emit_mfma(a, tag):
    if tag[0] == "QK": a.L.append(mfma_qk(tag[1], tag[2], tag[3]))
    else: a.L.append(mfma_pv(tag[1], tag[2], tag[3]))

def emit_block(a, stage):
    for g, tag in enumerate(BM):
        emit_mfma(a, tag)
        if g == BAR_POS:
            a.raw("s_waitcnt vmcnt(12)", "wait")
            a.raw("s_barrier", "barrier")
        for d, name in TEMPLATE[g]:
            emit_op(a, name, stage + d)

def insert_lgkm_waits(L, carry_in=None):
    out = []
    q = list(carry_in or [])
    for i in L:
        if i.kind == "wait" and "lgkmcnt(0)" in i.text: q = []
        need = -1
        touched = i.rd | i.wr
        for k, o in enumerate(q):
            if o.wr & touched and i is not o: need = k
        if need >= 0:
            n = len(q) - 1 - need
            out.append(I(f"s_waitcnt lgkmcnt({n})", "wait"))
            q = q[need + 1:]
        out.append(i)
        if i.kind == "lds":
            q.append(i)
            assert len(q) <= 15, "too many LDS ops in flight"
    return out, q

def check_hazards(L, where=""):
    L = [i for i in L if i.kind != "label"]
    def ws(i): return getattr(i, "ws", 1)
    bad = 0
    n = len(L)
    for x in range(n):
        p = L[x]
        if not p.wr and p.kind != "salu_m0": continue
        dist = 0
        for y in range(x + 1, min(n, x + 24)):
            c = L[y]
            need = 0
            if p.kind == "mfma":
                if c.kind in ("valu", "trans", "lds", "dma", "vmem", "ldsw") and (p.wr & (c.rd | c.wr)): need = 8
                if c.kind == "mfma":
                    ab = c.rd - getattr(c, "cacc", set())
                    if p.wr & ab: need = 8
                    elif (p.wr & getattr(c, "cacc", set())) and p.wr != c.cacc: need = 6
            elif p.kind in ("valu", "trans"):
                if c.kind == "mfma" and (p.wr & c.rd): need = 2
                if p.kind == "trans" and c.kind == "valu" and (p.wr & c.rd): need = 1
                if "permlane" in c.text and (p.wr & c.rd): need = 2
                if "readfirstlane" in c.text and (p.wr & c.rd): need = 1
            elif p.kind == "salu_m0":
                if c.kind == "dma": need = 1
            if need > dist:
                print(f"HAZARD[{where}]: {p.text}  ->  {c.text}  dist {dist} need {need}"); bad += 1
            dist += ws(c)
            if dist >= 10: break
    for x in range(n):
        p = L[x]
        if p.kind == "mfma" and getattr(p, "cacc", None):
            dist = 0
            for y in range(x + 1, min(n, x + 6)):
                c = L[y]
                if c.kind in ("valu", "trans") and (c.wr & p.cacc) and dist < 3:
                    print(f"HAZARD-WAR[{where}]: {p.text} -> {c.text}"); bad += 1
                dist += ws(c)
        if p.kind == "vmem" and "store" in p.text:
            dist = 0
            for y in range(x + 1, min(n, x + 4)):
                c = L[y]
                if c.kind in ("valu", "trans") and (c.wr & p.rd) and dist < 2:
                    print(f"HAZARD-STORE[{where}]: {p.text} -> {c.text}"); bad += 1
                dist += ws(c)
    return bad


def fix_hazards(L):
    out = []
    def ws(i): return getattr(i, "ws", 1)
    for c in L:
        if c.kind != "label":
            need_extra = 0
            dist = 0
            for p in reversed(out):
                if p.kind == "label": continue
                need = 0
                if p.kind == "mfma":
                    if c.kind in ("valu", "trans", "lds", "dma", "vmem", "ldsw") and (p.wr & (c.rd | c.wr)): need = 8
                    if c.kind == "mfma":
                        ab = c.rd - getattr(c, "cacc", set())
                        if p.wr & ab: need = 8
                    if c.kind in ("valu", "trans") and (c.wr & getattr(p, "cacc", set())): need = max(need, 3)
                elif p.kind in ("valu", "trans"):
                    if c.kind == "mfma" and (p.wr & c.rd): need = 2
                    if p.kind == "trans" and c.kind in ("valu", "vmem", "ldsw") and (p.wr & c.rd): need = 1
                    if "permlane" in c.text and (p.wr & (c.rd | c.wr)): need = 2
                    if "readfirstlane" in c.text and (p.wr & c.rd): need = 1
                    if (p.wr & c.rd) and any(k == "s" for k, _ in (p.wr & c.rd)):
                        need = max(need, 5 if c.kind in ("vmem", "dma") else 2)
                elif p.kind == "salu_m0":
                    if c.kind == "dma": need = 1
                elif p.kind in ("vmem", "ldsw") and ("store" in p.text or "write" in p.text):
                    if c.kind in ("valu", "trans") and (c.wr & p.rd): need = 2
                need_extra = max(need_extra, need - dist)
                dist += ws(p)
                if dist >= 10: break
            if need_extra > 0:
                n = I(f"s_nop {need_extra-1}", "nop"); n.ws = need_extra; out.append(n)
        out.append(c)
    return out

def emit_q_load_scale(a, vq_off, after_count):
    t0 = VT + 8
    for t in range(NT + 1):
        a.raw(f"s_waitcnt vmcnt({min(63, after_count + 4 * (NT - t))})", "wait")
        for r in range(16):
            q = VQ(t, 0) + r
            tmp = t0 + 2 * (r % 8)
            a.valu(f"v_lshlrev_b32 {vr(tmp)}, 16, {vr(q)}", R("v", q), R("v", tmp))
            a.valu(f"v_and_b32 {vr(tmp+1)}, 0xffff0000, {vr(q)}", R("v", q), R("v", tmp + 1))
            a.valu(f"v_pk_mul_f32 {vr(tmp,2)}, {vr(tmp,2)}, s[{S_C}:{S_C+1}]", R("v", tmp, 2), R("v", tmp, 2))
            a.valu(f"v_cvt_pk_bf16_f32 {vr(q)}, {vr(tmp)}, {vr(tmp+1)}", R("v", tmp, 2), R("v", q))

def emit_q_loads(a, vq_off):
    for t in range(NT + 1):
        if t < NT:
            a.salu(f"s_mul_i32 s{S_T}, s{S_W}, 20480")
            a.salu(f"s_add_u32 s{S_T}, s{S_T}, {t*4096}")
        else:
            a.salu(f"s_mov_b32 s{S_T}, 81920")
        for s in range(4):
            a.raw(f"buffer_load_dwordx4 {vr(VQ(t,s),4)}, {vr(vq_off)}, s[{S_Q}:{S_Q+3}], s{S_T} offen offset:{64*s}", "vmem",
                  R("v", vq_off), R("v", VQ(t, s), 4))

def emit_dma_block(a, which, stage):
    base = (S_M0K if which == "K" else S_M0V)
    a.raw(f"s_add_u32 m0, s{base}, {stage*16384}", "salu_m0")
    a.nop(1)
    for j in range(4): a.L.append(dma(which, j))

def emit_lsum_reduce(a, regs, tmp):
    for sw in ("v_permlane32_swap_b32", "v_permlane16_swap_b32"):
        for k, r in enumerate(regs):
            a.valu(f"v_mov_b32 {vr(tmp+k)}, {vr(r)}", R("v", r), R("v", tmp + k))
        a.nop(2)
        for k, r in enumerate(regs):
            a.valu(f"{sw} {vr(r)}, {vr(tmp+k)}", R("v", r) | R("v", tmp + k), R("v", r) | R("v", tmp + k))
        a.nop(2)
        for k, r in enumerate(regs):
            a.valu(f"v_add_f32 {vr(r)}, {vr(r)}, {vr(tmp+k)}", R("v", r) | R("v", tmp + k), R("v", r))

def emit_store_tiles(a, vst, check):
    VZ = VT + 2
    VCHK = VT + 4
    VRI = VT + 6
    for t in range(NT):
        buf = 0 if t % 2 == 0 else 48
        a.raw(f"v_rcp_f32 {vr(VRI)}, {vr(VL(t))}", "trans", R("v", VL(t)), R("v", VRI))
        for r in range(32):
            a.valu(f"v_accvgpr_read_b32 {vr(buf+r)}, {ar(AO(t,0)+r)}", R("a", AO(t, 0) + r), R("v", buf + r))
        for r in range(0, 32, 2):
            a.valu(f"v_pk_mul_f32 {vr(buf+r,2)}, {vr(buf+r,2)}, {vr(VRI,2)} op_sel_hi:[1,0]", R("v", buf + r, 2) | R("v", VRI), R("v", buf + r, 2))
        if check:
            for r in range(0, 32, 2):
                a.valu(f"v_pk_fma_f32 {vr(VCHK,2)}, {vr(buf+r,2)}, {vr(VZ,2)}, {vr(VCHK,2)}", R("v", buf + r, 2) | R("v", VZ, 2) | R("v", VCHK, 2), R("v", VCHK, 2))
        pk = buf + 32
        for m in range(4):
            for h in range(2):
                for k in range(2):
                    src = buf + 4 * (2 * m + h) + 2 * k
                    a.valu(f"v_cvt_pk_bf16_f32 {vr(pk+4*m+2*h+k)}, {vr(src)}, {vr(src+1)}", R("v", src, 2), R("v", pk + 4 * m + 2 * h + k))
        a.nop(2)
        for m in range(4):
            for k in range(2):
                x, y = pk + 4 * m + k, pk + 4 * m + 2 + k
                a.valu(f"v_permlane16_swap_b32 {vr(x)}, {vr(y)}", R("v", x) | R("v", y), R("v", x) | R("v", y))
        a.salu(f"s_mul_i32 s{S_T}, s{S_W}, 20480")
        a.salu(f"s_add_u32 s{S_T}, s{S_T}, {t*4096}")
        for m in range(4):
            a.raw(f"buffer_store_dwordx4 {vr(pk+4*m,4)}, {vr(vst)}, s[{S_O}:{S_O+3}], s{S_T} offen offset:{64*m}", "vmem",
                  R("v", pk + 4 * m, 4) | R("v", vst))

def emit_store_x(a, vst, src, rinv):
    for r in range(0, 8, 2):
        a.valu(f"v_pk_mul_f32 {vr(src+r,2)}, {vr(src+r,2)}, {vr(rinv,2)} op_sel_hi:[1,0]", R("v", src + r, 2) | R("v", rinv), R("v", src + r, 2))
    pk = src + 8
    for h in range(2):
        for k in range(2):
            s_ = src + 4 * h + 2 * k
            a.valu(f"v_cvt_pk_bf16_f32 {vr(pk+2*h+k)}, {vr(s_)}, {vr(s_+1)}", R("v", s_, 2), R("v", pk + 2 * h + k))
    a.nop(2)
    for k in range(2):
        x, y = pk + k, pk + 2 + k
        a.valu(f"v_permlane16_swap_b32 {vr(x)}, {vr(y)}", R("v", x) | R("v", y), R("v", x) | R("v", y))
    a.salu(f"s_lshl_b32 s{S_T}, s{S_W}, 6")
    a.salu(f"s_add_u32 s{S_T}, s{S_T}, 81920")
    a.raw(f"buffer_store_dwordx4 {vr(pk,4)}, {vr(vst)}, s[{S_O}:{S_O+3}], s{S_T} offen", "vmem", R("v", pk, 4) | R("v", vst))

LO_THR = f32(2.0 ** -24)
HI_THR = f32(2.0 ** 64)

def build():
    a = Asm()
    P = a
    T0, T1, T2, T3, T4, T5 = VT + 24, VT + 25, VT + 26, VT + 27, VT + 28, VT + 29
    VQOFF = VT + 30
    VST = VT + 31
    a.salu("s_cmp_ge_u32 s2, 256")
    a.salu("s_cbranch_scc1 L_end")
    a.raw("s_load_dwordx8 s[36:43], s[0:1], 0", "smem")
    a.valu(f"v_and_b32 {vr(VLANE)}, 63, v0", R("v", 0), R("v", VLANE))
    a.valu(f"v_lshrrev_b32 {vr(T0)}, 6, v0", R("v", 0), R("v", T0))
    a.nop(1)
    a.valu(f"v_readfirstlane_b32 s{S_W}, {vr(T0)}", R("v", T0), R("s", S_W))
    a.salu("s_and_b32 s32, s2, 7")
    a.salu("s_lshr_b32 s33, s2, 4")
    a.salu("s_lshl_b32 s33, s33, 3")
    a.salu("s_add_u32 s32, s32, s33")
    a.salu("s_lshr_b32 s33, s2, 3")
    a.salu("s_and_b32 s33, s33, 1")
    a.salu("s_lshl_b32 s34, s32, 1")
    a.salu("s_add_u32 s34, s34, s33")
    a.salu("s_mul_i32 s35, s34, 86016")
    a.salu("s_lshl_b32 s33, s32, 18")
    a.salu(f"s_mov_b32 s{S_C}, {f32(SCALE)}")
    a.salu(f"s_mov_b32 s{S_C+1}, {f32(SCALE)}")
    a.valu(f"v_and_b32 {vr(T1)}, 15, {vr(VLANE)}", R("v", VLANE), R("v", T1))
    a.valu(f"v_lshrrev_b32 {vr(T2)}, 4, {vr(VLANE)}", R("v", VLANE), R("v", T2))
    a.valu(f"v_lshrrev_b32 {vr(T3)}, 3, {vr(VLANE)}", R("v", VLANE), R("v", T3))
    a.valu(f"v_and_b32 {vr(T4)}, 7, {vr(VLANE)}", R("v", VLANE), R("v", T4))
    a.raw("s_waitcnt lgkmcnt(0)", "wait")
    def srd(d, lo, off, size):
        a.salu(f"s_add_u32 s{d}, s{lo}, s{off}")
        a.salu(f"s_addc_u32 s{d+1}, s{lo+1}, 0")
        a.salu(f"s_and_b32 s{d+1}, s{d+1}, 0xffff")
        a.salu(f"s_mov_b32 s{d+2}, {size}")
        a.salu(f"s_mov_b32 s{d+3}, 0x00020000")
    srd(S_K, 38, 33, 262144)
    srd(S_V, 40, 33, 262144)
    srd(S_Q, 36, 35, 86016)
    srd(S_O, 42, 35, 86016)
    a.salu(f"s_and_b32 s32, s{S_W}, 1")
    a.salu("s_lshl_b32 s32, s32, 13")
    a.salu(f"s_lshr_b32 s33, s{S_W}, 1")
    a.salu("s_lshl_b32 s33, s33, 7")
    a.salu("s_add_u32 s32, s32, s33")
    a.salu(f"s_lshl_b32 s{S_M0K}, s{S_W}, 12")
    a.salu(f"s_add_u32 s{S_M0V}, s{S_M0K}, {LDS_V}")
    def V(txt, rd, wr): a.valu(txt, set().union(*[R("v", r) for r in rd]), R("v", wr))
    V(f"v_lshrrev_b32 {vr(T5)}, 1, {vr(T2)}", [T2], T5)
    V(f"v_xor_b32 {vr(T0)}, {vr(T2)}, {vr(T5)}", [T2, T5], T0)
    for par in range(2):
        if par == 1:
            V(f"v_xor_b32 {vr(T0)}, 5, {vr(T0)}", [T0], T0)
        V(f"v_xor_b32 {vr(VDK(par))}, {vr(T4)}, {vr(T0)}", [T4, T0], VDK(par))
        V(f"v_lshlrev_b32 {vr(VDK(par))}, 4, {vr(VDK(par))}", [VDK(par)], VDK(par))
        V(f"v_lshl_add_u32 {vr(VDK(par))}, {vr(T3)}, 8, {vr(VDK(par))}", [T3, VDK(par)], VDK(par))
        V(f"v_add_u32 {vr(VDK(par))}, s32, {vr(VDK(par))}", [VDK(par)], VDK(par))
    V(f"v_add_u32 {vr(VDK(2))}, 2048, {vr(VDK(0))}", [VDK(0)], VDK(2))
    V(f"v_add_u32 {vr(VDK(3))}, 3072, {vr(VDK(1))}", [VDK(1)], VDK(3))
    V(f"v_add_u32 {vr(VDK(1))}, 1024, {vr(VDK(1))}", [VDK(1)], VDK(1))
    a.salu(f"s_mov_b32 s{S_KOFF}, 0")
    a.salu(f"s_mov_b32 s{S_VOFF}, 0")
    emit_dma_block(a, "K", 0)
    V(f"v_lshrrev_b32 {vr(T0)}, 1, {vr(T4)}", [T4], T0)
    V(f"v_xor_b32 {vr(T0)}, {vr(T0)}, {vr(T2)}", [T0, T2], T0)
    V(f"v_lshlrev_b32 {vr(T0)}, 5, {vr(T0)}", [T0], T0)
    V(f"v_and_b32 {vr(T5)}, 1, {vr(VLANE)}", [VLANE], T5)
    V(f"v_lshl_add_u32 {vr(T0)}, {vr(T5)}, 4, {vr(T0)}", [T5, T0], T0)
    V(f"v_lshl_add_u32 {vr(T0)}, {vr(T3)}, 8, {vr(T0)}", [T3, T0], T0)
    V(f"v_add_u32 {vr(VDV(0))}, s32, {vr(T0)}", [T0], VDV(0))
    for j in range(1, 4):
        V(f"v_add_u32 {vr(VDV(j))}, {1024*j}, {vr(VDV(0))}", [VDV(0)], VDV(j))
    V(f"v_lshlrev_b32 {vr(VQOFF)}, 8, {vr(T1)}", [T1], VQOFF)
    V(f"v_and_b32 {vr(T0)}, 1, {vr(T2)}", [T2], T0)
    V(f"v_lshl_add_u32 {vr(VST)}, {vr(T0)}, 5, {vr(VQOFF)}", [T0, VQOFF], VST)
    V(f"v_lshrrev_b32 {vr(T0)}, 1, {vr(T2)}", [T2], T0)
    V(f"v_lshl_add_u32 {vr(VST)}, {vr(T0)}, 4, {vr(VST)}", [T0, VST], VST)
    V(f"v_lshl_add_u32 {vr(VQOFF)}, {vr(T2)}, 4, {vr(VQOFF)}", [T2, VQOFF], VQOFF)
    emit_q_loads(a, VQOFF)
    emit_dma_block(a, "V", 0)
    nafter = 4
    def kblk(b):
        a.salu(f"s_mov_b32 s{S_KOFF}, {b*16384}"); emit_dma_block(a, "K", b % 4)
    def vblk(b):
        a.salu(f"s_mov_b32 s{S_VOFF}, {b*16384}"); emit_dma_block(a, "V", b % 4)
    kblk(1); vblk(1); kblk(2); nafter += 12
    a.salu(f"s_mov_b32 s{S_KOFF}, {3*16384}")
    a.salu(f"s_mov_b32 s{S_VOFF}, {2*16384}")
    deferred = {n for l in TEMPLATE for d, n in l if d == -1}
    for n in range(11):
        name = f"dma{n}"
        if name in deferred: continue
        emit_op(a, name, -1)
        if a.L[-1].kind == "salu_m0": a.nop(1)
        if a.L[-1].kind == "dma": nafter += 1
    V(f"v_lshrrev_b32 {vr(T0)}, 1, {vr(T1)}", [T1], T0)
    V(f"v_lshrrev_b32 {vr(T5)}, 1, {vr(T0)}", [T0], T5)
    V(f"v_lshrrev_b32 {vr(T3)}, 2, {vr(T0)}", [T0], T3)
    V(f"v_xor_b32 {vr(T5)}, {vr(T5)}, {vr(T3)}", [T5, T3], T5)
    V(f"v_and_b32 {vr(T5)}, 1, {vr(T5)}", [T5], T5)
    V(f"v_xor_b32 {vr(T0)}, {vr(T0)}, {vr(T5)}", [T0, T5], T0)
    V(f"v_xor_b32 {vr(T0)}, {vr(T0)}, {vr(T2)}", [T0, T2], T0)
    for p in range(2):
        if p == 1: V(f"v_xor_b32 {vr(T0)}, 4, {vr(T0)}", [T0], T0)
        V(f"v_lshlrev_b32 {vr(T5)}, 4, {vr(T0)}", [T0], T5)
        V(f"v_lshl_add_u32 {vr(T5)}, {vr(T1)}, 7, {vr(T5)}", [T1, T5], T5)
        for j in range(4):
            a.salu(f"s_xor_b32 s33, s{S_W}, {j}")
            a.salu("s_lshl_b32 s33, s33, 11")
            V(f"v_add_u32 {vr(VKA(j,p))}, s33, {vr(T5)}", [T5], VKA(j, p))
    V(f"v_lshrrev_b32 {vr(T0)}, 2, {vr(T1)}", [T1], T0)
    V(f"v_lshl_add_u32 {vr(T0)}, {vr(T2)}, 2, {vr(T0)}", [T2, T0], T0)
    V(f"v_lshlrev_b32 {vr(T0)}, 7, {vr(T0)}", [T0], T0)
    V(f"v_and_b32 {vr(T5)}, 3, {vr(T1)}", [T1], T5)
    V(f"v_lshl_add_u32 {vr(T0)}, {vr(T5)}, 3, {vr(T0)}", [T5, T0], T0)
    V(f"v_lshrrev_b32 {vr(T5)}, 3, {vr(T1)}", [T1], T5)
    V(f"v_lshl_add_u32 {vr(T5)}, {vr(T2)}, 1, {vr(T5)}", [T2, T5], T5)
    V(f"v_and_b32 {vr(T5)}, 3, {vr(T5)}", [T5], T5)
    for c in range(4):
        V(f"v_xor_b32 {vr(T3)}, {c}, {vr(T5)}", [T5], T3)
        V(f"v_lshl_add_u32 {vr(T3)}, {vr(T3)}, 5, {vr(T0)}", [T3, T0], T3)
        for j in range(4):
            a.salu(f"s_xor_b32 s33, s{S_W}, {j}")
            a.salu("s_lshl_b32 s33, s33, 11")
            a.salu(f"s_add_u32 s33, s33, {LDS_V}")
            V(f"v_add_u32 {vr(VVA(j,c))}, s33, {vr(T3)}", [T3], VVA(j, c))
    for k in range(4): V(f"v_mov_b32 {vr(VT+k)}, 0", [], VT + k)
    V(f"v_lshlrev_b32 {vr(T0)}, 4, {vr(VLANE)}", [VLANE], T0)
    V(f"v_add_u32 {vr(T0)}, s{S_M0V}, {vr(T0)}", [T0], T0)
    for j in range(4):
        a.raw(f"ds_write_b128 {vr(T0)}, {vr(VT,4)} offset:{3*16384 + 1024*j}", "ldsw", R("v", T0) | R("v", VT, 4))
    for r in range(192): a.valu(f"v_accvgpr_write_b32 {ar(r)}, 0", (), R("a", r))
    for r in range(224, 256): a.valu(f"v_accvgpr_write_b32 {ar(r)}, 0", (), R("a", r))
    for t in range(NT + 1): V(f"v_mov_b32 {vr(VL(t))}, 0", [], VL(t))
    late_exp = set()
    for n in deferred:
        if n.startswith("exp"):
            late_exp |= PROTO[n].mk(0).wr
    for t in range(NT):
        for r in range(8):
            x = SP(1, t) + r
            V(f"v_mov_b32 {vr(x)}, {f32(-1000.0) if ('v', x) in late_exp else 0}", [], x)
    emit_q_load_scale(a, VQOFF, nafter)
    a.raw(f"s_waitcnt vmcnt({nafter-4}) lgkmcnt(0)", "wait")
    a.raw("s_barrier", "barrier")
    for l in TEMPLATE:
        for d, n in l:
            if d == 1: emit_op(a, n, 0)
    a.salu(f"s_mov_b32 s{S_CNT}, 4")
    a.raw("s_waitcnt lgkmcnt(0)", "wait")
    pro = fix_hazards(a.L)

    b = Asm()
    for st in range(4): emit_block(b, st)
    _, q1 = insert_lgkm_waits(b.L, [])
    body, q2 = insert_lgkm_waits(b.L, q1)
    assert [i.text for i in q1] == [i.text for i in q2]
    tailctl = [I(f"s_sub_u32 s{S_CNT}, s{S_CNT}, 1", "salu"), I(f"s_cmp_lg_u32 s{S_CNT}, 0", "salu"), I("s_cbranch_scc1 L_loop", "salu")]
    nbad = check_hazards(body + tailctl + body, "loop")
    assert nbad == 0

    t_ = Asm()
    for g, tag in enumerate(BM):
        if tag[0] == "PV" and tag[2] == 1: emit_mfma(t_, tag)
        for d, n in TEMPLATE[g]:
            if d == -1 and not n.startswith("dma"): emit_op(t_, n, -1)
    tail, _ = insert_lgkm_waits(t_.L, q2)

    e = Asm()
    VZ, VCHK, VRI = VT + 2, VT + 4, VT + 6
    e.raw("s_waitcnt vmcnt(0) lgkmcnt(0)", "wait")
    def Ve(txt, rd, wr): e.valu(txt, set().union(*[R("v", r) for r in rd]) if rd else (), R("v", wr))
    for k in range(4): Ve(f"v_mov_b32 {vr(VZ+k)}, 0", [], VZ + k)
    emit_lsum_reduce(e, [VL(t) for t in range(NT + 1)], 96)
    XB = 128
    for r in range(32):
        e.valu(f"v_accvgpr_read_b32 {vr(XB+r)}, {ar(AO(NT,0)+r)}", R("a", AO(NT, 0) + r), R("v", XB + r))
    Ve(f"v_lshlrev_b32 {vr(T0)}, 4, {vr(VLANE)}", [VLANE], T0)
    e.salu(f"s_lshl_b32 s33, s{S_W}, 13")
    e.salu(f"s_add_u32 s33, s33, {LDS_X}")
    Ve(f"v_add_u32 {vr(T1)}, s33, {vr(T0)}", [T0], T1)
    for dt in range(8):
        e.raw(f"ds_write_b128 {vr(T1)}, {vr(XB+4*dt,4)} offset:{1024*dt}", "ldsw", R("v", T1) | R("v", XB + 4 * dt, 4))
    Ve(f"v_mov_b32 {vr(T2)}, {f32(256.0)}", [], T2)
    for r in range(0, 32, 2):
        e.valu(f"v_pk_mul_f32 {vr(96+r,2)}, {vr(XB+r,2)}, {vr(T2,2)} op_sel_hi:[1,0]", R("v", XB + r, 2) | R("v", T2), R("v", 96 + r, 2))
        e.valu(f"v_pk_fma_f32 {vr(VCHK,2)}, {vr(96+r,2)}, {vr(VZ,2)}, {vr(VCHK,2)}", R("v", 96 + r, 2) | R("v", VZ, 2) | R("v", VCHK, 2), R("v", VCHK, 2))
    e.salu(f"s_mov_b64 s[{S_BAD}:{S_BAD+1}], 0")
    e.salu(f"s_mov_b32 s34, {LO_THR}")
    e.salu(f"s_mov_b32 s35, {HI_THR}")
    for t in range(NT):
        e.valu(f"v_cmp_nle_f32 vcc, s34, {vr(VL(t))}", R("v", VL(t)), R("s", 106))
        e.salu(f"s_or_b64 s[{S_BAD}:{S_BAD+1}], s[{S_BAD}:{S_BAD+1}], vcc")
        e.valu(f"v_cmp_nge_f32 vcc, s35, {vr(VL(t))}", R("v", VL(t)), R("s", 106))
        e.salu(f"s_or_b64 s[{S_BAD}:{S_BAD+1}], s[{S_BAD}:{S_BAD+1}], vcc")
    emit_store_tiles(e, VST, True)
    e.valu(f"v_cmp_u_f32 vcc, {vr(VCHK)}, {vr(VCHK+1)}", R("v", VCHK, 2), R("s", 106))
    e.salu(f"s_or_b64 s[{S_BAD}:{S_BAD+1}], s[{S_BAD}:{S_BAD+1}], vcc")
    e.salu(f"s_cmp_lg_u64 s[{S_BAD}:{S_BAD+1}], 0")
    e.salu("s_cselect_b32 s33, 1, 0")
    if opt("forceslow", 0): e.salu("s_mov_b32 s33, 1")
    Ve(f"v_mov_b32 {vr(T3)}, s33", [], T3)
    Ve(f"v_lshlrev_b32 {vr(T4)}, 3, {vr(VLANE)}", [VLANE], T4)
    Ve(f"v_add_u32 {vr(T5)}, s{S_M0K}, {vr(T4)}", [T4], T5)
    Ve(f"v_mov_b32 {vr(T2)}, {vr(VL(NT))}", [VL(NT)], T2)
    e.raw(f"ds_write_b64 {vr(T5)}, {vr(T2,2)} offset:16384", "ldsw", R("v", T5) | R("v", T2, 2))
    e.raw("s_waitcnt lgkmcnt(0)", "wait")
    e.raw("s_barrier", "barrier")
    for w in range(4):
        e.raw(f"ds_read_b64 {vr(96+2*w,2)}, {vr(T4)} offset:{16384 + 4096*w}", "lds", R("v", T4), R("v", 96 + 2 * w, 2))
    e.salu(f"s_lshl_b32 s33, s{S_W}, 11")
    e.salu(f"s_add_u32 s33, s33, {LDS_X}")
    Ve(f"v_add_u32 {vr(T1)}, s33, {vr(T0)}", [T0], T1)
    for w in range(4):
        for h in range(2):
            e.raw(f"ds_read_b128 {vr(XB+8*w+4*h,4)}, {vr(T1)} offset:{8192*w + 1024*h}", "lds", R("v", T1), R("v", XB + 8 * w + 4 * h, 4))
    e.raw("s_waitcnt lgkmcnt(0)", "wait")
    Ve(f"v_add_f32 v96, v96, v98", [96, 98], 96)
    Ve(f"v_add_f32 v100, v100, v102", [100, 102], 100)
    Ve(f"v_add_f32 v96, v96, v100", [96, 100], 96)
    Ve(f"v_or_b32 v97, v97, v99", [97, 99], 97)
    Ve(f"v_or_b32 v101, v101, v103", [101, 103], 101)
    Ve(f"v_or_b32 v97, v97, v101", [97, 101], 97)
    e.valu(f"v_cmp_ne_u32 vcc, 0, v97", R("v", 97), R("s", 106))
    e.salu(f"s_mov_b64 s[{S_BAD}:{S_BAD+1}], vcc")
    e.valu(f"v_cmp_nle_f32 vcc, s34, v96", R("v", 96), R("s", 106))
    e.salu(f"s_or_b64 s[{S_BAD}:{S_BAD+1}], s[{S_BAD}:{S_BAD+1}], vcc")
    e.valu(f"v_cmp_nge_f32 vcc, s35, v96", R("v", 96), R("s", 106))
    e.salu(f"s_or_b64 s[{S_BAD}:{S_BAD+1}], s[{S_BAD}:{S_BAD+1}], vcc")
    e.salu(f"s_cmp_lg_u64 s[{S_BAD}:{S_BAD+1}], 0")
    e.salu("s_cbranch_scc1 L_slow")
    e.raw(f"v_rcp_f32 {vr(VRI)}, v96", "trans", R("v", 96), R("v", VRI))
    for r in range(8):
        Ve(f"v_add_f32 {vr(XB+r)}, {vr(XB+r)}, {vr(XB+8+r)}", [XB + r, XB + 8 + r], XB + r)
        Ve(f"v_add_f32 {vr(XB+16+r)}, {vr(XB+16+r)}, {vr(XB+24+r)}", [XB + 16 + r, XB + 24 + r], XB + 16 + r)
    for r in range(8):
        Ve(f"v_add_f32 {vr(XB+r)}, {vr(XB+r)}, {vr(XB+16+r)}", [XB + r, XB + 16 + r], XB + r)
    emit_store_x(e, VST, XB, VRI)
    e.raw("s_waitcnt vmcnt(0)", "wait")
    e.label("L_end")
    e.raw("s_endpgm", "other")
    epi = fix_hazards(body[-40:] + tail + e.L)[len(fix_hazards(body[-40:])):]

    s = Asm()
    def Vs(txt, rd, wr, kind="valu"): s.raw(txt, kind, set().union(*[R("v", r) for r in rd]) if rd else (), R("v", wr))
    def VM(t): return 120 + t
    SS = 96; PP = 112; MX = 126; AL = 127; TM = 128; SUM = 129
    s.label("L_slow")
    s.raw("s_waitcnt vmcnt(0) lgkmcnt(0)", "wait")
    s.raw("s_barrier", "barrier")
    emit_q_loads(s, VQOFF)
    for r in range(192): s.valu(f"v_accvgpr_write_b32 {ar(r)}, 0", (), R("a", r))
    for t in range(NT + 1):
        Vs(f"v_mov_b32 {vr(VL(t))}, 0", [], VL(t))
        Vs(f"v_mov_b32 {vr(VM(t))}, 0xff800000", [], VM(t))
    emit_q_load_scale(s, VQOFF, 0)
    s.salu(f"s_mov_b32 s{S_KOFF}, 0")
    s.salu(f"s_mov_b32 s{S_VOFF}, 0")
    s.salu(f"s_mov_b32 s{S_CNT}, 16")
    s.label("L_slow_loop")
    s.raw("s_barrier", "barrier")
    emit_dma_block(s, "K", 0)
    emit_dma_block(s, "V", 0)
    s.raw("s_waitcnt vmcnt(0)", "wait")
    s.raw("s_barrier", "barrier")
    for t in range(NT + 1):
        for j in range(4):
            for k in range(4): s.L.append(lds_k(j, k, 0))
            s.raw("s_waitcnt lgkmcnt(0)", "wait")
            for k in range(4):
                d = SS + 4 * j
                c = "0" if k == 0 else vr(d, 4)
                i = s.raw(f"v_mfma_f32_16x16x32_bf16 {vr(d,4)}, {ar(AK(j%2,k),4)}, {vr(VQ(t,k),4)}, {c}", "mfma",
                          R("a", AK(j % 2, k), 4) | R("v", VQ(t, k), 4) | (R("v", d, 4) if k else set()), R("v", d, 4))
                i.cacc = R("v", d, 4) if k else set()
        s.nop(10)
        Vs(f"v_max3_f32 {vr(MX)}, {vr(SS)}, {vr(SS+1)}, {vr(SS+2)}", [SS, SS + 1, SS + 2], MX)
        for r in range(3, 15, 2):
            Vs(f"v_max3_f32 {vr(MX)}, {vr(MX)}, {vr(SS+r)}, {vr(SS+r+1)}", [MX, SS + r, SS + r + 1], MX)
        Vs(f"v_max_f32 {vr(MX)}, {vr(MX)}, {vr(SS+15)}", [MX, SS + 15], MX)
        for sw in ("v_permlane32_swap_b32", "v_permlane16_swap_b32"):
            Vs(f"v_mov_b32 {vr(TM)}, {vr(MX)}", [MX], TM)
            s.nop(2)
            s.valu(f"{sw} {vr(MX)}, {vr(TM)}", R("v", MX) | R("v", TM), R("v", MX) | R("v", TM))
            s.nop(2)
            Vs(f"v_max_f32 {vr(MX)}, {vr(MX)}, {vr(TM)}", [MX, TM], MX)
        Vs(f"v_max_f32 {vr(MX)}, {vr(MX)}, {vr(VM(t))}", [MX, VM(t)], MX)
        Vs(f"v_sub_f32 {vr(AL)}, {vr(VM(t))}, {vr(MX)}", [MX, VM(t)], AL)
        Vs(f"v_exp_f32 {vr(AL)}, {vr(AL)}", [AL], AL, "trans")
        Vs(f"v_mov_b32 {vr(VM(t))}, {vr(MX)}", [MX], VM(t))
        for r in range(16): Vs(f"v_sub_f32 {vr(SS+r)}, {vr(SS+r)}, {vr(MX)}", [SS + r, MX], SS + r)
        for r in range(16): Vs(f"v_exp_f32 {vr(SS+r)}, {vr(SS+r)}", [SS + r], SS + r, "trans")
        Vs(f"v_mul_f32 {vr(VL(t))}, {vr(VL(t))}, {vr(AL)}", [VL(t), AL], VL(t))
        for r in range(16): Vs(f"v_add_f32 {vr(VL(t))}, {vr(VL(t))}, {vr(SS+r)}", [VL(t), SS + r], VL(t))
        for r in range(8): Vs(f"v_cvt_pk_bf16_f32 {vr(PP+r)}, {vr(SS+2*r)}, {vr(SS+2*r+1)}", [SS + 2 * r, SS + 2 * r + 1], PP + r)
        for r in range(32):
            tm = 132 + (r % 8)
            s.valu(f"v_accvgpr_read_b32 {vr(tm)}, {ar(AO(t,0)+r)}", R("a", AO(t, 0) + r), R("v", tm))
            Vs(f"v_mul_f32 {vr(tm)}, {vr(tm)}, {vr(AL)}", [tm, AL], tm)
            s.valu(f"v_accvgpr_write_b32 {ar(AO(t,0)+r)}, {vr(tm)}", R("v", tm), R("a", AO(t, 0) + r))
        for p in range(2):
            for dt in range(8):
                for h in range(2): s.L.append(lds_v(p, dt, h, 0))
            s.raw("s_waitcnt lgkmcnt(0)", "wait")
            for dt in range(8):
                d = AO(t, dt); av = AV(dt // 4, dt % 4)
                i = s.raw(f"v_mfma_f32_16x16x32_bf16 {ar(d,4)}, {ar(av,4)}, {vr(PP+4*p,4)}, {ar(d,4)}", "mfma",
                          R("a", av, 4) | R("v", PP + 4 * p, 4) | R("a", d, 4), R("a", d, 4))
                i.cacc = R("a", d, 4)
            s.nop(4)
    s.salu(f"s_add_u32 s{S_KOFF}, s{S_KOFF}, 16384")
    s.salu(f"s_add_u32 s{S_VOFF}, s{S_VOFF}, 16384")
    s.salu(f"s_sub_u32 s{S_CNT}, s{S_CNT}, 1")
    s.salu(f"s_cmp_lg_u32 s{S_CNT}, 0")
    s.salu("s_cbranch_scc1 L_slow_loop")
    s.nop(10)
    emit_lsum_reduce(s, [VL(t) for t in range(NT + 1)], 96)
    emit_store_tiles(s, VST, False)
    for r in range(32):
        s.valu(f"v_accvgpr_read_b32 {vr(XB+r)}, {ar(AO(NT,0)+r)}", R("a", AO(NT, 0) + r), R("v", XB + r))
    Vs(f"v_lshlrev_b32 {vr(T0)}, 4, {vr(VLANE)}", [VLANE], T0)
    s.salu(f"s_lshl_b32 s33, s{S_W}, 13")
    s.salu(f"s_add_u32 s33, s33, {LDS_X}")
    Vs(f"v_add_u32 {vr(T1)}, s33, {vr(T0)}", [T0], T1)
    for dt in range(8):
        s.raw(f"ds_write_b128 {vr(T1)}, {vr(XB+4*dt,4)} offset:{1024*dt}", "ldsw", R("v", T1) | R("v", XB + 4 * dt, 4))
    s.salu(f"s_lshl_b32 s33, s{S_W}, 11")
    Vs(f"v_add_u32 {vr(T1)}, s33, {vr(T1)}", [T1], T1)
    s.raw("s_waitcnt lgkmcnt(0)", "wait")
    for h in range(2):
        s.raw(f"ds_read_b128 {vr(XB+4*h,4)}, {vr(T1)} offset:{1024*h}", "lds", R("v", T1), R("v", XB + 4 * h, 4))
    s.raw(f"v_rcp_f32 {vr(VRI)}, {vr(VL(NT))}", "trans", R("v", VL(NT)), R("v", VRI))
    s.raw("s_waitcnt lgkmcnt(0)", "wait")
    emit_store_x(s, VST, XB, VRI)
    s.raw("s_waitcnt vmcnt(0)", "wait")
    s.raw("s_endpgm", "other")
    slow = fix_hazards(s.L)

    lines = []
    ref = open("standalone__gqa_softmax__near_ridge.s.ref").read().splitlines()
    for l in ref:
        if l.startswith("; @launch"): break
        lines.append(l)
    lines.append("; @launch grid=(256,1,1) block=(256,1,1) lds=163840")
    lines.append('.amdgcn_target "amdgcn-amd-amdhsa--gfx950"')
    lines.append(".text")
    lines.append(f".globl {KNAME}")
    lines.append(".p2align 8")
    lines.append(f".type {KNAME},@function")
    lines.append(f"{KNAME}:")
    def dump(L):
        for i in L: lines.append(i.text if i.kind == "label" else "    " + i.text)
    dump(pro)
    lines.append(".p2align 6")
    lines.append("L_loop:")
    dump(body); dump(tailctl); dump(epi); dump(slow)
    lines.append('.section .rodata,"a"')
    lines.append(".p2align 6")
    lines.append(f".amdhsa_kernel {KNAME}")
    lines.append("  .amdhsa_next_free_vgpr 512")
    lines.append("  .amdhsa_next_free_sgpr 64")
    lines.append("  .amdhsa_accum_offset 256")
    lines.append("  .amdhsa_group_segment_fixed_size 0")
    lines.append("  .amdhsa_kernarg_size 48")
    lines.append("  .amdhsa_user_sgpr_count 2")
    lines.append("  .amdhsa_user_sgpr_kernarg_segment_ptr 1")
    lines.append("  .amdhsa_system_sgpr_workgroup_id_x 1")
    lines.append(".end_amdhsa_kernel")
    open(OUT, "w").write("\n".join(lines) + "\n")
    print("written", OUT, "prologue", len(pro), "body", len(body), "tail+epi", len(epi), "slow", len(slow))

if __name__ == "__main__":
    if "stats" in OPTS:
        print(stats())
        for g, l in enumerate(TEMPLATE): print(g, BM[g], l)
    else:
        build()
```

```python
import struct, sys, math

KNAME = "standalone__gqa_softmax__near_ridge_kernel"
OUT = sys.argv[1] if len(sys.argv) > 1 else "standalone__gqa_softmax__near_ridge.s"
OPTS = dict(a.split("=") for a in sys.argv[2:])
def opt(name, default):
    return type(default)(OPTS.get(name, default))

STF = {"": "", "sc1": " sc1", "nt": " nt", "sc01": " sc0 sc1", "sc1nt": " sc1 nt"}[opt("stf", "")]
QF = " nt" if opt("qnt", 1) else ""
KVF = " nt" if opt("kvnt", 1) else ""
def f32(x): return "0x%08x" % struct.unpack("<I", struct.pack("<f", x))[0]
SCALE = math.log2(math.e) / math.sqrt(128.0)

NT = 5
def VQ(t, s): return 16 * t + 4 * s
def SP(p, t): return 96 + 40 * p + 8 * t
SX = 176
def VL(t): return 180 + t
def VKA(j, p): return 186 + 2 * j + p
def VVA(j, c): return 194 + 4 * j + c
def VDK(j): return 210 + j
def VDV(j): return 214 + j
VLANE = 218
VT = 220
def AO(t, dt): return 32 * t + 4 * dt
def AK(b, s): return 192 + 16 * b + 4 * s
def AV(b, i): return 224 + 16 * b + 4 * i
S_Q, S_K, S_V, S_O = 4, 8, 12, 16
S_W = 20; S_KOFF = 21; S_VOFF = 22; S_CNT = 23; S_M0K = 24; S_M0V = 25
S_C = 28
S_BAD = 30
S_T = 32
LDS_V = 65536
LDS_X = 131072

def vr(n, k=1): return f"v{n}" if k == 1 else f"v[{n}:{n+k-1}]"
def ar(n, k=1): return f"a{n}" if k == 1 else f"a[{n}:{n+k-1}]"
def R(kind, n, k=1): return {(kind, n + i) for i in range(k)}

class I:
    def __init__(s, text, kind, rd=(), wr=()):
        s.text, s.kind, s.rd, s.wr = text, kind, set(rd), set(wr)
    def __repr__(s): return s.text

class Asm:
    def __init__(s): s.L = []
    def raw(s, text, kind="other", rd=(), wr=()):
        s.L.append(I(text, kind, rd, wr)); return s.L[-1]
    def label(s, name): s.L.append(I(name + ":", "label"))
    def comment(s, c): s.L.append(I("; " + c, "label"))
    def nop(s, n):
        while n > 0:
            k = min(n, 16); s.raw(f"s_nop {k-1}", "nop"); s.L[-1].ws = k; n -= k
    def salu(s, text): return s.raw(text, "salu")
    def valu(s, text, rd=(), wr=()): return s.raw(text, "valu", rd, wr)

def mfma_qk(t, j, s):
    d = SX if t == NT else SP(j // 2, t) + 4 * (j % 2)
    a = AK(j % 2, s); b = VQ(t, s)
    c = "0" if s == 0 else vr(d, 4)
    rd = R("a", a, 4) | R("v", b, 4) | (R("v", d, 4) if s else set())
    i = I(f"v_mfma_f32_16x16x32_bf16 {vr(d,4)}, {ar(a,4)}, {vr(b,4)}, {c}", "mfma", rd, R("v", d, 4))
    i.cacc = R("v", d, 4) if s else set()
    return i
def mfma_pv(t, p, dt):
    d = AO(t, dt); a = AV(dt // 4, dt % 4)
    if t == NT:
        i = I(f"v_mfma_f32_16x16x16_bf16 {ar(d,4)}, {ar(a,2)}, {vr(SX,2)}, {ar(d,4)}", "mfma",
              R("a", a, 2) | R("v", SX, 2) | R("a", d, 4), R("a", d, 4))
    else:
        b = SP(p, t)
        i = I(f"v_mfma_f32_16x16x32_bf16 {ar(d,4)}, {ar(a,4)}, {vr(b,4)}, {ar(d,4)}", "mfma",
              R("a", a, 4) | R("v", b, 4) | R("a", d, 4), R("a", d, 4))
    i.cacc = R("a", d, 4)
    return i
def lds_k(j, s, stage):
    d = AK(j % 2, s)
    return I(f"ds_read_b128 {ar(d,4)}, {vr(VKA(j, s % 2))} offset:{stage*16384 + (s//2)*8192}", "lds",
             R("v", VKA(j, s % 2)), R("a", d, 4))
def lds_v(p, dt, h, stage):
    d = AV(dt // 4, dt % 4) + 2 * h
    j = 2 * p + h
    return I(f"ds_read_b64_tr_b16 {ar(d,2)}, {vr(VVA(j, dt % 4))} offset:{stage*16384 + (dt//4)*8192}", "lds",
             R("v", VVA(j, dt % 4)), R("a", d, 2))
def v_exp(r): return I(f"v_exp_f32 {vr(r)}, {vr(r)}", "trans", R("v", r), R("v", r))
def v_addl(t, r): return I(f"v_add_f32 {vr(VL(t))}, {vr(VL(t))}, {vr(r)}", "valu", R("v", r) | R("v", VL(t)), R("v", VL(t)))
def v_cvt(d, a, b): return I(f"v_cvt_pk_bf16_f32 {vr(d)}, {vr(a)}, {vr(b)}", "valu", R("v", a) | R("v", b), R("v", d))
def dma(which, j):
    if which == "K":
        return I(f"buffer_load_dwordx4 {vr(VDK(j))}, s[{S_K}:{S_K+3}], s{S_KOFF} offen offset:{1024*j}{KVF} lds", "dma", R("v", VDK(j)))
    return I(f"buffer_load_dwordx4 {vr(VDV(j))}, s[{S_V}:{S_V+3}], s{S_VOFF} offen offset:{1024*j}{KVF} lds", "dma", R("v", VDV(j)))

def block_mfmas():
    M = []
    def Q(j):
        for t in range(NT):
            for s in range(4): M.append(("QK", t, j, s))
        if j == 0:
            for s in range(4): M.append(("QK", NT, 0, s))
    def P(p, half):
        for dt in range(4 * half, 4 * half + 4):
            for t in range(NT): M.append(("PV", t, p, dt))
            if p == 0: M.append(("PV", NT, 0, dt))
    Q(0); P(1, 0); Q(1); P(1, 1); Q(2); P(0, 0); Q(3); P(0, 1)
    return M
BM = block_mfmas()
NB = len(BM)
def midx(tag): return BM.index(tag)

class Op:
    def __init__(s, name, blk, mk, cost, E, D, preds=(), first=False):
        s.name, s.blk, s.mk, s.cost, s.E, s.D, s.preds, s.first = name, blk, mk, cost, E, D, list(preds), first
        s.gap = None
        Op.count += 1; s.seq = Op.count
Op.count = 0

EXP_LAG = opt("explag", 4)
LDS_LEAD = opt("ldslead", 12)
BAR_POS = midx(("QK", 0, 3, 3)) + opt("barshift", 0)

def block_ops(b):
    base = b * NB
    ops = []
    for t in range(NT + 1):
        for j in range(4 if t < NT else 1):
            p = j // 2
            r0 = SX if t == NT else SP(p, t) + 4 * (j % 2)
            mend = base + midx(("QK", t, j, 3))
            if p == 0: cons = base + midx(("PV", t, 0, 0))
            else: cons = base + NB + midx(("PV", t, 1, 0))
            dc = cons - 3
            exps = [Op(f"exp{t}{j}{k}", b, lambda st, r=r0 + k: v_exp(r), 8, mend + EXP_LAG, dc - 4) for k in range(4)]
            adds = [Op(f"add{t}{j}{k}", b, lambda st, r=r0 + k, t=t: v_addl(t, r), 4, 0, dc - 2, [exps[k]]) for k in range(4)]
            pb = SX if t == NT else SP(p, t)
            dst = pb + 2 * (j % 2)
            c0 = Op(f"cvt{t}{j}0", b, lambda st, d=dst, r=r0: v_cvt(d, r, r + 1), 4, 0, dc - 1, adds[0:2])
            c1 = Op(f"cvt{t}{j}1", b, lambda st, d=dst + 1, r=r0: v_cvt(d, r + 2, r + 3), 4, 0, dc, adds[2:4] + [c0])
            if j % 2 == 1:
                prev = [o for o in ops if o.name == f"cvt{t}{j-1}1"][0]
                c0.preds.append(prev); c1.preds.append(prev)
            for k, o in enumerate(exps + adds + [c0, c1]): o.seq = mend * 100 + k
            ops += exps + adds + [c0, c1]
    for j in range(4):
        first_use = base + midx(("QK", 0, j, 0))
        for s in range(4):
            if j >= 2:
                lastt = NT if j - 2 == 0 else NT - 1
                E = base + midx(("QK", lastt, j - 2, s))
            else:
                E = base - NB + midx(("QK", NT - 1, j + 2, s))
                E = max(E, base - NB + BAR_POS + 1)
            ops.append(Op(f"ldk{j}{s}", b, lambda st, j=j, s=s: lds_k(j, s, st), 4, E, first_use + s - LDS_LEAD, first=True))
    for p in range(2):
        for dt in range(8):
            ub = base if p == 0 else base + NB
            first_use = ub + midx(("PV", 0, p, dt))
            if p == 0: E = base + midx(("PV", NT - 1, 1, dt))
            else: E = base + midx(("PV", NT, 0, dt))
            for h in range(2):
                ops.append(Op(f"ldv{p}{dt}{h}", b, lambda st, p=p, dt=dt, h=h: lds_v(p, dt, h, st), 4, E, first_use - LDS_LEAD, first=True))
    prev = None
    E = base + BAR_POS + 1
    seq = [("m0V",), ("V", 0), ("V", 1), ("V", 2), ("V", 3), ("m0K",), ("K", 0), ("K", 1), ("K", 2), ("K", 3), ("adv",)]
    for n, it in enumerate(seq):
        if it[0] == "m0V":
            mk = lambda st: I(f"s_add_u32 m0, s{S_M0V}, {((st + 3) % 4) * 16384}", "salu_m0"); cost = 0
        elif it[0] == "m0K":
            mk = lambda st: I(f"s_add_u32 m0, s{S_M0K}, {(st % 4) * 16384}", "salu_m0"); cost = 0
        elif it[0] == "adv":
            mk = lambda st: [I(f"s_add_u32 s{S_KOFF}, s{S_KOFF}, 16384", "salu"), I(f"s_add_u32 s{S_VOFF}, s{S_VOFF}, 16384", "salu")]; cost = 0
        else:
            mk = lambda st, it=it: dma(it[0], it[1]); cost = 8
        o = Op(f"dma{n}", b, mk, cost, E + opt("dmaspread", 5) * n, E + opt("dmaspread", 5) * n + 8, [prev] if prev else [])
        o.isdma = True
        ops.append(o); prev = o
    return ops

def schedule(ops, g0, g1):
    gaps = {}
    LW = opt("ldswin", 28)
    PANIC = opt("panic", 14)
    pend = list(ops)
    for o in pend:
        o.cls = "free" if o.cost == 0 else "mem" if (o.first or getattr(o, "isdma", False)) else "exp" if o.cost == 8 else "plain"
    pend.sort(key=lambda o: (o.D, o.seq))
    for g in range(g0, g1):
        def ready(o): return o.E <= g and all(p.gap is not None and p.gap < g for p in o.preds)
        cand = [o for o in pend if ready(o)]
        placed = [o for o in cand if o.cls == "free"]
        mem = [o for o in cand if o.cls == "mem"]
        exps = sorted([o for o in cand if o.cls == "exp"], key=lambda o: o.seq)
        plain = sorted([o for o in cand if o.cls == "plain"], key=lambda o: o.seq)
        soft = [o for o in pend if o.cls in ("exp", "plain") and o.E <= g + 200]
        slack = min([o.D - g for o in soft], default=999)
        forced = [o for o in mem if o.D <= g]
        due = [o for o in mem if g >= o.D - LW and o not in forced]
        used = 0
        if forced:
            placed += forced; used += 4 * len(forced)
        elif due and plain:
            placed.append(due[0]); used += 4
        if used:
            if plain and used < 8: placed.append(plain.pop(0)); used += 4
        elif len(plain) >= opt("backlog", 3) or (plain and not exps):
            placed += plain[:2]; used += 4 * len(plain[:2]); plain = plain[2:]
        elif exps:
            placed.append(exps.pop(0)); used += 8
        elif due:
            placed.append(due[0]); used += 4
        if slack < PANIC and plain:
            placed.append(plain.pop(0)); used += 4
        for o in exps + plain:
            if o.D <= g and o not in placed: placed.append(o)
        for o in placed:
            o.gap = g; pend.remove(o)
        order = {"free": 0, "mem": 1, "exp": 2, "plain": 3}
        placed.sort(key=lambda o: order[o.cls])
        gaps[g] = placed
    return gaps, pend

def build_template():
    NBLK = 9
    allops = []
    per = {}
    for b in range(NBLK):
        per[b] = block_ops(b); allops += per[b]
    gaps, pend = schedule(allops, -NB, NBLK * NB + NB)
    def rel(b):
        return [[(o.blk - b, o.name) for o in gaps[b * NB + g]] for g in range(NB)]
    assert rel(4) == rel(5) == rel(6), "schedule not periodic"
    return rel(5)

TEMPLATE = build_template()
def stats():
    over = 0
    protos = {o.name: o for o in block_ops(0)}
    hist = {}
    for g, l in enumerate(TEMPLATE):
        c = sum(protos[n].cost for _, n in l)
        hist[c] = hist.get(c, 0) + 1
    return hist
PROTO = {o.name: o for o in block_ops(0)}

def emit_op(a, name, stage):
    r = PROTO[name].mk(stage % 4)
    for i in (r if isinstance(r, list) else [r]): a.L.append(i)

def emit_mfma(a, tag):
    if tag[0] == "QK": a.L.append(mfma_qk(tag[1], tag[2], tag[3]))
    else: a.L.append(mfma_pv(tag[1], tag[2], tag[3]))

def emit_block(a, stage):
    for g, tag in enumerate(BM):
        emit_mfma(a, tag)
        if g == BAR_POS:
            if opt("ts", 0) == 2: emit_ts(a)
            a.raw("s_waitcnt vmcnt(12)", "wait")
            if opt("ts", 0) == 2: emit_ts(a)
            a.raw("s_barrier", "barrier")
            if opt("ts", 0) == 2: emit_ts(a)
        for d, name in TEMPLATE[g]:
            emit_op(a, name, stage + d)

def insert_lgkm_waits(L, carry_in=None):
    out = []
    q = list(carry_in or [])
    for i in L:
        if i.kind == "wait" and "lgkmcnt(0)" in i.text: q = []
        need = -1
        touched = i.rd | i.wr
        for k, o in enumerate(q):
            if o.wr & touched and i is not o: need = k
        if need >= 0:
            n = len(q) - 1 - need
            out.append(I(f"s_waitcnt lgkmcnt({n})", "wait"))
            q = q[need + 1:]
        out.append(i)
        if i.kind == "lds":
            q.append(i)
            assert len(q) <= 15, "too many LDS ops in flight"
    return out, q

def check_hazards(L, where=""):
    L = [i for i in L if i.kind != "label"]
    def ws(i): return getattr(i, "ws", 1)
    bad = 0
    n = len(L)
    for x in range(n):
        p = L[x]
        if not p.wr and p.kind != "salu_m0": continue
        dist = 0
        for y in range(x + 1, min(n, x + 24)):
            c = L[y]
            need = 0
            if p.kind == "mfma":
                if c.kind in ("valu", "trans", "lds", "dma", "vmem", "ldsw") and (p.wr & (c.rd | c.wr)): need = 8
                if c.kind == "mfma":
                    ab = c.rd - getattr(c, "cacc", set())
                    if p.wr & ab: need = 8
                    elif (p.wr & getattr(c, "cacc", set())) and p.wr != c.cacc: need = 6
            elif p.kind in ("valu", "trans"):
                if c.kind == "mfma" and (p.wr & c.rd): need = 2
                if p.kind == "trans" and c.kind == "valu" and (p.wr & c.rd): need = 1
                if "permlane" in c.text and (p.wr & c.rd): need = 2
                if "readfirstlane" in c.text and (p.wr & c.rd): need = 1
            elif p.kind == "salu_m0":
                if c.kind == "dma": need = 1
            if need > dist:
                print(f"HAZARD[{where}]: {p.text}  ->  {c.text}  dist {dist} need {need}"); bad += 1
            dist += ws(c)
            if dist >= 10: break
    for x in range(n):
        p = L[x]
        if p.kind == "mfma" and getattr(p, "cacc", None):
            dist = 0
            for y in range(x + 1, min(n, x + 6)):
                c = L[y]
                if c.kind in ("valu", "trans") and (c.wr & p.cacc) and dist < 3:
                    print(f"HAZARD-WAR[{where}]: {p.text} -> {c.text}"); bad += 1
                dist += ws(c)
        if p.kind == "vmem" and "store" in p.text:
            dist = 0
            for y in range(x + 1, min(n, x + 4)):
                c = L[y]
                if c.kind in ("valu", "trans") and (c.wr & p.rd) and dist < 2:
                    print(f"HAZARD-STORE[{where}]: {p.text} -> {c.text}"); bad += 1
                dist += ws(c)
    return bad


def fix_hazards(L):
    out = []
    def ws(i): return getattr(i, "ws", 1)
    for c in L:
        if c.kind != "label":
            need_extra = 0
            dist = 0
            for p in reversed(out):
                if p.kind == "label": continue
                need = 0
                if p.kind == "mfma":
                    if c.kind in ("valu", "trans", "lds", "dma", "vmem", "ldsw") and (p.wr & (c.rd | c.wr)): need = 8
                    if c.kind == "mfma":
                        ab = c.rd - getattr(c, "cacc", set())
                        if p.wr & ab: need = 8
                    if c.kind in ("valu", "trans") and (c.wr & getattr(p, "cacc", set())): need = max(need, 3)
                elif p.kind in ("valu", "trans"):
                    if c.kind == "mfma" and (p.wr & c.rd): need = 2
                    if p.kind == "trans" and c.kind in ("valu", "vmem", "ldsw") and (p.wr & c.rd): need = 1
                    if "permlane" in c.text and (p.wr & (c.rd | c.wr)): need = 2
                    if "readfirstlane" in c.text and (p.wr & c.rd): need = 1
                    if (p.wr & c.rd) and any(k == "s" for k, _ in (p.wr & c.rd)):
                        need = max(need, 5 if c.kind in ("vmem", "dma") else 2)
                elif p.kind == "salu_m0":
                    if c.kind == "dma": need = 1
                elif p.kind in ("vmem", "ldsw") and ("store" in p.text or "write" in p.text):
                    if c.kind in ("valu", "trans") and (c.wr & p.rd): need = 2
                need_extra = max(need_extra, need - dist)
                dist += ws(p)
                if dist >= 10: break
            if need_extra > 0:
                n = I(f"s_nop {need_extra-1}", "nop"); n.ws = need_extra; out.append(n)
        out.append(c)
    return out

def emit_q_load_scale(a, vq_off, after_count):
    t0 = VT + 8
    for t in range(NT + 1):
        a.raw(f"s_waitcnt vmcnt({min(63, after_count + 4 * (NT - t))})", "wait")
        for r in range(16):
            q = VQ(t, 0) + r
            tmp = t0 + 2 * (r % 8)
            a.valu(f"v_lshlrev_b32 {vr(tmp)}, 16, {vr(q)}", R("v", q), R("v", tmp))
            a.valu(f"v_and_b32 {vr(tmp+1)}, 0xffff0000, {vr(q)}", R("v", q), R("v", tmp + 1))
            a.valu(f"v_pk_mul_f32 {vr(tmp,2)}, {vr(tmp,2)}, s[{S_C}:{S_C+1}]", R("v", tmp, 2), R("v", tmp, 2))
            a.valu(f"v_cvt_pk_bf16_f32 {vr(q)}, {vr(tmp)}, {vr(tmp+1)}", R("v", tmp, 2), R("v", q))

def emit_q_loads(a, vq_off):
    for t in range(NT + 1):
        if t < NT:
            a.salu(f"s_mul_i32 s{S_T}, s{S_W}, 20480")
            a.salu(f"s_add_u32 s{S_T}, s{S_T}, {t*4096}")
        else:
            a.salu(f"s_mov_b32 s{S_T}, 81920")
        for s in range(4):
            a.raw(f"buffer_load_dwordx4 {vr(VQ(t,s),4)}, {vr(vq_off)}, s[{S_Q}:{S_Q+3}], s{S_T} offen offset:{64*s}{QF}", "vmem",
                  R("v", vq_off), R("v", VQ(t, s), 4))

def emit_dma_block(a, which, stage):
    base = (S_M0K if which == "K" else S_M0V)
    a.raw(f"s_add_u32 m0, s{base}, {stage*16384}", "salu_m0")
    a.nop(1)
    for j in range(4): a.L.append(dma(which, j))

def emit_lsum_reduce(a, regs, tmp):
    for sw in ("v_permlane32_swap_b32", "v_permlane16_swap_b32"):
        for k, r in enumerate(regs):
            a.valu(f"v_mov_b32 {vr(tmp+k)}, {vr(r)}", R("v", r), R("v", tmp + k))
        a.nop(2)
        for k, r in enumerate(regs):
            a.valu(f"{sw} {vr(r)}, {vr(tmp+k)}", R("v", r) | R("v", tmp + k), R("v", r) | R("v", tmp + k))
        a.nop(2)
        for k, r in enumerate(regs):
            a.valu(f"v_add_f32 {vr(r)}, {vr(r)}, {vr(tmp+k)}", R("v", r) | R("v", tmp + k), R("v", r))

def emit_store_tiles(a, vst, check):
    VZ = VT + 2
    VCHK = VT + 4
    VRI = VT + 6
    for t in range(NT):
        buf = 0 if t % 2 == 0 else 48
        a.raw(f"v_rcp_f32 {vr(VRI)}, {vr(VL(t))}", "trans", R("v", VL(t)), R("v", VRI))
        for r in range(32):
            a.valu(f"v_accvgpr_read_b32 {vr(buf+r)}, {ar(AO(t,0)+r)}", R("a", AO(t, 0) + r), R("v", buf + r))
        for r in range(0, 32, 2):
            a.valu(f"v_pk_mul_f32 {vr(buf+r,2)}, {vr(buf+r,2)}, {vr(VRI,2)} op_sel_hi:[1,0]", R("v", buf + r, 2) | R("v", VRI), R("v", buf + r, 2))
        if check:
            for r in range(0, 32, 2):
                a.valu(f"v_pk_fma_f32 {vr(VCHK,2)}, {vr(buf+r,2)}, {vr(VZ,2)}, {vr(VCHK,2)}", R("v", buf + r, 2) | R("v", VZ, 2) | R("v", VCHK, 2), R("v", VCHK, 2))
        pk = buf + 32
        for m in range(4):
            for h in range(2):
                for k in range(2):
                    src = buf + 4 * (2 * m + h) + 2 * k
                    a.valu(f"v_cvt_pk_bf16_f32 {vr(pk+4*m+2*h+k)}, {vr(src)}, {vr(src+1)}", R("v", src, 2), R("v", pk + 4 * m + 2 * h + k))
        a.nop(2)
        for m in range(4):
            for k in range(2):
                x, y = pk + 4 * m + k, pk + 4 * m + 2 + k
                a.valu(f"v_permlane16_swap_b32 {vr(x)}, {vr(y)}", R("v", x) | R("v", y), R("v", x) | R("v", y))
        a.salu(f"s_mul_i32 s{S_T}, s{S_W}, 20480")
        a.salu(f"s_add_u32 s{S_T}, s{S_T}, {t*4096}")
        for m in range(4):
            a.raw(f"buffer_store_dwordx4 {vr(pk+4*m,4)}, {vr(vst)}, s[{S_O}:{S_O+3}], s{S_T} offen offset:{64*m}{STF}", "vmem",
                  R("v", pk + 4 * m, 4) | R("v", vst))

def emit_store_x(a, vst, src, rinv):
    for r in range(0, 8, 2):
        a.valu(f"v_pk_mul_f32 {vr(src+r,2)}, {vr(src+r,2)}, {vr(rinv,2)} op_sel_hi:[1,0]", R("v", src + r, 2) | R("v", rinv), R("v", src + r, 2))
    pk = src + 8
    for h in range(2):
        for k in range(2):
            s_ = src + 4 * h + 2 * k
            a.valu(f"v_cvt_pk_bf16_f32 {vr(pk+2*h+k)}, {vr(s_)}, {vr(s_+1)}", R("v", s_, 2), R("v", pk + 2 * h + k))
    a.nop(2)
    for k in range(2):
        x, y = pk + k, pk + 2 + k
        a.valu(f"v_permlane16_swap_b32 {vr(x)}, {vr(y)}", R("v", x) | R("v", y), R("v", x) | R("v", y))
    a.salu(f"s_lshl_b32 s{S_T}, s{S_W}, 6")
    a.salu(f"s_add_u32 s{S_T}, s{S_T}, 81920")
    a.raw(f"buffer_store_dwordx4 {vr(pk,4)}, {vr(vst)}, s[{S_O}:{S_O+3}], s{S_T} offen{STF}", "vmem", R("v", pk, 4) | R("v", vst))

TS = opt("ts", 0)
STF = {"": "", "sc1": " sc1", "nt": " nt", "sc01": " sc0 sc1", "sc1nt": " sc1 nt"}[opt("stf", "")]
VTS0, VTS1 = 219, 252
def emit_ts(a):
    if not TS: return
    a.raw("s_memtime s[50:51]", "smem")
    a.raw("s_memrealtime s[52:53]", "smem")
    a.raw("s_waitcnt lgkmcnt(0)", "wait")
    a.salu("s_lshl_b64 exec, 1, s48")
    a.raw(f"v_mov_b32 v{VTS0}, s50", "valu", (), R("v", VTS0))
    a.raw(f"v_mov_b32 v{VTS1}, s52", "valu", (), R("v", VTS1))
    a.salu("s_mov_b64 exec, -1")
    a.salu("s_add_u32 s48, s48, 1")
def emit_ts_store(a):
    if not TS: return
    emit_ts(a)
    a.salu(f"s_lshl_b32 s49, s2, 2")
    a.salu(f"s_add_u32 s49, s49, s{S_W}")
    a.salu(f"s_lshl_b32 s49, s49, 9")
    a.valu(f"v_lshlrev_b32 v253, 2, v{VLANE}", R("v", VLANE), R("v", 253))
    a.nop(2)
    a.raw(f"buffer_store_dword v{VTS0}, v253, s[44:47], s49 offen", "vmem", R("v", VTS0) | R("v", 253))
    a.raw(f"buffer_store_dword v{VTS1}, v253, s[44:47], s49 offen offset:256", "vmem", R("v", VTS1) | R("v", 253))
    a.raw("s_waitcnt vmcnt(0)", "wait")

LO_THR = f32(2.0 ** -24)
HI_THR = f32(2.0 ** 64)

def build():
    a = Asm()
    P = a
    T0, T1, T2, T3, T4, T5 = VT + 24, VT + 25, VT + 26, VT + 27, VT + 28, VT + 29
    VQOFF = VT + 30
    VST = VT + 31
    a.salu("s_cmp_ge_u32 s2, 256")
    a.salu("s_cbranch_scc1 L_end")
    a.raw("s_load_dwordx8 s[36:43], s[0:1], 0", "smem")
    if TS:
        a.raw("s_load_dwordx2 s[44:45], s[0:1], 40", "smem")
        a.salu("s_mov_b32 s48, 0")
        a.valu(f"v_mov_b32 v{VTS0}, 0", (), R("v", VTS0))
        a.valu(f"v_mov_b32 v{VTS1}, 0", (), R("v", VTS1))
        emit_ts(a)
        a.salu("s_and_b32 s45, s45, 0xffff")
        a.salu("s_mov_b32 s46, 0x80000")
        a.salu("s_mov_b32 s47, 0x00020000")
    a.valu(f"v_and_b32 {vr(VLANE)}, 63, v0", R("v", 0), R("v", VLANE))
    a.valu(f"v_lshrrev_b32 {vr(T0)}, 6, v0", R("v", 0), R("v", T0))
    a.nop(1)
    a.valu(f"v_readfirstlane_b32 s{S_W}, {vr(T0)}", R("v", T0), R("s", S_W))
    a.salu("s_and_b32 s32, s2, 7")
    a.salu("s_lshr_b32 s33, s2, 4")
    a.salu("s_lshl_b32 s33, s33, 3")
    a.salu("s_add_u32 s32, s32, s33")
    a.salu("s_lshr_b32 s33, s2, 3")
    a.salu("s_and_b32 s33, s33, 1")
    a.salu("s_lshl_b32 s34, s32, 1")
    a.salu("s_add_u32 s34, s34, s33")
    a.salu("s_mul_i32 s35, s34, 86016")
    a.salu("s_lshl_b32 s33, s32, 18")
    a.salu(f"s_mov_b32 s{S_C}, {f32(SCALE)}")
    a.salu(f"s_mov_b32 s{S_C+1}, {f32(SCALE)}")
    a.valu(f"v_and_b32 {vr(T1)}, 15, {vr(VLANE)}", R("v", VLANE), R("v", T1))
    a.valu(f"v_lshrrev_b32 {vr(T2)}, 4, {vr(VLANE)}", R("v", VLANE), R("v", T2))
    a.valu(f"v_lshrrev_b32 {vr(T3)}, 3, {vr(VLANE)}", R("v", VLANE), R("v", T3))
    a.valu(f"v_and_b32 {vr(T4)}, 7, {vr(VLANE)}", R("v", VLANE), R("v", T4))
    a.raw("s_waitcnt lgkmcnt(0)", "wait")
    def srd(d, lo, off, size):
        a.salu(f"s_add_u32 s{d}, s{lo}, s{off}")
        a.salu(f"s_addc_u32 s{d+1}, s{lo+1}, 0")
        a.salu(f"s_and_b32 s{d+1}, s{d+1}, 0xffff")
        a.salu(f"s_mov_b32 s{d+2}, {size}")
        a.salu(f"s_mov_b32 s{d+3}, 0x00020000")
    srd(S_K, 38, 33, 262144)
    srd(S_V, 40, 33, 262144)
    srd(S_Q, 36, 35, 86016)
    srd(S_O, 42, 35, 86016)
    a.salu(f"s_and_b32 s32, s{S_W}, 1")
    a.salu("s_lshl_b32 s32, s32, 13")
    a.salu(f"s_lshr_b32 s33, s{S_W}, 1")
    a.salu("s_lshl_b32 s33, s33, 7")
    a.salu("s_add_u32 s32, s32, s33")
    a.salu(f"s_lshl_b32 s{S_M0K}, s{S_W}, 12")
    a.salu(f"s_add_u32 s{S_M0V}, s{S_M0K}, {LDS_V}")
    def V(txt, rd, wr): a.valu(txt, set().union(*[R("v", r) for r in rd]), R("v", wr))
    V(f"v_lshrrev_b32 {vr(T5)}, 1, {vr(T2)}", [T2], T5)
    V(f"v_xor_b32 {vr(T0)}, {vr(T2)}, {vr(T5)}", [T2, T5], T0)
    for par in range(2):
        if par == 1:
            V(f"v_xor_b32 {vr(T0)}, 5, {vr(T0)}", [T0], T0)
        V(f"v_xor_b32 {vr(VDK(par))}, {vr(T4)}, {vr(T0)}", [T4, T0], VDK(par))
        V(f"v_lshlrev_b32 {vr(VDK(par))}, 4, {vr(VDK(par))}", [VDK(par)], VDK(par))
        V(f"v_lshl_add_u32 {vr(VDK(par))}, {vr(T3)}, 8, {vr(VDK(par))}", [T3, VDK(par)], VDK(par))
        V(f"v_add_u32 {vr(VDK(par))}, s32, {vr(VDK(par))}", [VDK(par)], VDK(par))
    V(f"v_add_u32 {vr(VDK(2))}, 2048, {vr(VDK(0))}", [VDK(0)], VDK(2))
    V(f"v_add_u32 {vr(VDK(3))}, 3072, {vr(VDK(1))}", [VDK(1)], VDK(3))
    V(f"v_add_u32 {vr(VDK(1))}, 1024, {vr(VDK(1))}", [VDK(1)], VDK(1))
    a.salu(f"s_mov_b32 s{S_KOFF}, 0")
    a.salu(f"s_mov_b32 s{S_VOFF}, 0")
    emit_dma_block(a, "K", 0)
    V(f"v_lshrrev_b32 {vr(T0)}, 1, {vr(T4)}", [T4], T0)
    V(f"v_xor_b32 {vr(T0)}, {vr(T0)}, {vr(T2)}", [T0, T2], T0)
    V(f"v_lshlrev_b32 {vr(T0)}, 5, {vr(T0)}", [T0], T0)
    V(f"v_and_b32 {vr(T5)}, 1, {vr(VLANE)}", [VLANE], T5)
    V(f"v_lshl_add_u32 {vr(T0)}, {vr(T5)}, 4, {vr(T0)}", [T5, T0], T0)
    V(f"v_lshl_add_u32 {vr(T0)}, {vr(T3)}, 8, {vr(T0)}", [T3, T0], T0)
    V(f"v_add_u32 {vr(VDV(0))}, s32, {vr(T0)}", [T0], VDV(0))
    for j in range(1, 4):
        V(f"v_add_u32 {vr(VDV(j))}, {1024*j}, {vr(VDV(0))}", [VDV(0)], VDV(j))
    V(f"v_lshlrev_b32 {vr(VQOFF)}, 8, {vr(T1)}", [T1], VQOFF)
    V(f"v_and_b32 {vr(T0)}, 1, {vr(T2)}", [T2], T0)
    V(f"v_lshl_add_u32 {vr(VST)}, {vr(T0)}, 5, {vr(VQOFF)}", [T0, VQOFF], VST)
    V(f"v_lshrrev_b32 {vr(T0)}, 1, {vr(T2)}", [T2], T0)
    V(f"v_lshl_add_u32 {vr(VST)}, {vr(T0)}, 4, {vr(VST)}", [T0, VST], VST)
    V(f"v_lshl_add_u32 {vr(VQOFF)}, {vr(T2)}, 4, {vr(VQOFF)}", [T2, VQOFF], VQOFF)
    emit_q_loads(a, VQOFF)
    emit_dma_block(a, "V", 0)
    nafter = 4
    def kblk(b):
        a.salu(f"s_mov_b32 s{S_KOFF}, {b*16384}"); emit_dma_block(a, "K", b % 4)
    def vblk(b):
        a.salu(f"s_mov_b32 s{S_VOFF}, {b*16384}"); emit_dma_block(a, "V", b % 4)
    kblk(1); vblk(1); kblk(2); nafter += 12
    a.salu(f"s_mov_b32 s{S_KOFF}, {3*16384}")
    a.salu(f"s_mov_b32 s{S_VOFF}, {2*16384}")
    deferred = {n for l in TEMPLATE for d, n in l if d == -1}
    for n in range(11):
        name = f"dma{n}"
        if name in deferred: continue
        emit_op(a, name, -1)
        if a.L[-1].kind == "salu_m0": a.nop(1)
        if a.L[-1].kind == "dma": nafter += 1
    V(f"v_lshrrev_b32 {vr(T0)}, 1, {vr(T1)}", [T1], T0)
    V(f"v_lshrrev_b32 {vr(T5)}, 1, {vr(T0)}", [T0], T5)
    V(f"v_lshrrev_b32 {vr(T3)}, 2, {vr(T0)}", [T0], T3)
    V(f"v_xor_b32 {vr(T5)}, {vr(T5)}, {vr(T3)}", [T5, T3], T5)
    V(f"v_and_b32 {vr(T5)}, 1, {vr(T5)}", [T5], T5)
    V(f"v_xor_b32 {vr(T0)}, {vr(T0)}, {vr(T5)}", [T0, T5], T0)
    V(f"v_xor_b32 {vr(T0)}, {vr(T0)}, {vr(T2)}", [T0, T2], T0)
    for p in range(2):
        if p == 1: V(f"v_xor_b32 {vr(T0)}, 4, {vr(T0)}", [T0], T0)
        V(f"v_lshlrev_b32 {vr(T5)}, 4, {vr(T0)}", [T0], T5)
        V(f"v_lshl_add_u32 {vr(T5)}, {vr(T1)}, 7, {vr(T5)}", [T1, T5], T5)
        for j in range(4):
            a.salu(f"s_xor_b32 s33, s{S_W}, {j}")
            a.salu("s_lshl_b32 s33, s33, 11")
            V(f"v_add_u32 {vr(VKA(j,p))}, s33, {vr(T5)}", [T5], VKA(j, p))
    V(f"v_lshrrev_b32 {vr(T0)}, 2, {vr(T1)}", [T1], T0)
    V(f"v_lshl_add_u32 {vr(T0)}, {vr(T2)}, 2, {vr(T0)}", [T2, T0], T0)
    V(f"v_lshlrev_b32 {vr(T0)}, 7, {vr(T0)}", [T0], T0)
    V(f"v_and_b32 {vr(T5)}, 3, {vr(T1)}", [T1], T5)
    V(f"v_lshl_add_u32 {vr(T0)}, {vr(T5)}, 3, {vr(T0)}", [T5, T0], T0)
    V(f"v_lshrrev_b32 {vr(T5)}, 3, {vr(T1)}", [T1], T5)
    V(f"v_lshl_add_u32 {vr(T5)}, {vr(T2)}, 1, {vr(T5)}", [T2, T5], T5)
    V(f"v_and_b32 {vr(T5)}, 3, {vr(T5)}", [T5], T5)
    for c in range(4):
        V(f"v_xor_b32 {vr(T3)}, {c}, {vr(T5)}", [T5], T3)
        V(f"v_lshl_add_u32 {vr(T3)}, {vr(T3)}, 5, {vr(T0)}", [T3, T0], T3)
        for j in range(4):
            a.salu(f"s_xor_b32 s33, s{S_W}, {j}")
            a.salu("s_lshl_b32 s33, s33, 11")
            a.salu(f"s_add_u32 s33, s33, {LDS_V}")
            V(f"v_add_u32 {vr(VVA(j,c))}, s33, {vr(T3)}", [T3], VVA(j, c))
    for k in range(4): V(f"v_mov_b32 {vr(VT+k)}, 0", [], VT + k)
    V(f"v_lshlrev_b32 {vr(T0)}, 4, {vr(VLANE)}", [VLANE], T0)
    V(f"v_add_u32 {vr(T0)}, s{S_M0V}, {vr(T0)}", [T0], T0)
    for j in range(4):
        a.raw(f"ds_write_b128 {vr(T0)}, {vr(VT,4)} offset:{3*16384 + 1024*j}", "ldsw", R("v", T0) | R("v", VT, 4))
    for r in range(192): a.valu(f"v_accvgpr_write_b32 {ar(r)}, 0", (), R("a", r))
    for r in range(224, 256): a.valu(f"v_accvgpr_write_b32 {ar(r)}, 0", (), R("a", r))
    for t in range(NT + 1): V(f"v_mov_b32 {vr(VL(t))}, 0", [], VL(t))
    late_exp = set()
    for n in deferred:
        if n.startswith("exp"):
            late_exp |= PROTO[n].mk(0).wr
    for t in range(NT):
        for r in range(8):
            x = SP(1, t) + r
            V(f"v_mov_b32 {vr(x)}, {f32(-1000.0) if ('v', x) in late_exp else 0}", [], x)
    emit_ts(a)
    emit_q_load_scale(a, VQOFF, nafter)
    emit_ts(a)
    a.raw(f"s_waitcnt vmcnt({nafter-4}) lgkmcnt(0)", "wait")
    a.raw("s_barrier", "barrier")
    emit_ts(a)
    for l in TEMPLATE:
        for d, n in l:
            if d == 1: emit_op(a, n, 0)
    a.salu(f"s_mov_b32 s{S_CNT}, 4")
    a.raw("s_waitcnt lgkmcnt(0)", "wait")
    pro = fix_hazards(a.L)

    b = Asm()
    for st in range(4): emit_block(b, st)
    _, q1 = insert_lgkm_waits(b.L, [])
    body, q2 = insert_lgkm_waits(b.L, q1)
    assert [i.text for i in q1] == [i.text for i in q2]
    tailctl = [I(f"s_sub_u32 s{S_CNT}, s{S_CNT}, 1", "salu"), I(f"s_cmp_lg_u32 s{S_CNT}, 0", "salu"), I("s_cbranch_scc1 L_loop", "salu")]
    if TS == 1:
        x = Asm(); emit_ts(x); tailctl = x.L + tailctl
    nbad = check_hazards(body + tailctl + body, "loop")
    assert nbad == 0

    t_ = Asm()
    for g, tag in enumerate(BM):
        if tag[0] == "PV" and tag[2] == 1: emit_mfma(t_, tag)
        for d, n in TEMPLATE[g]:
            if d == -1 and not n.startswith("dma"): emit_op(t_, n, -1)
    tail, _ = insert_lgkm_waits(t_.L, q2)

    e = Asm()
    VZ, VCHK, VRI = VT + 2, VT + 4, VT + 6
    emit_ts(e)
    e.raw("s_waitcnt vmcnt(0) lgkmcnt(0)", "wait")
    def Ve(txt, rd, wr): e.valu(txt, set().union(*[R("v", r) for r in rd]) if rd else (), R("v", wr))
    for k in range(4): Ve(f"v_mov_b32 {vr(VZ+k)}, 0", [], VZ + k)
    emit_lsum_reduce(e, [VL(t) for t in range(NT + 1)], 96)
    XB = 128
    for r in range(32):
        e.valu(f"v_accvgpr_read_b32 {vr(XB+r)}, {ar(AO(NT,0)+r)}", R("a", AO(NT, 0) + r), R("v", XB + r))
    Ve(f"v_lshlrev_b32 {vr(T0)}, 4, {vr(VLANE)}", [VLANE], T0)
    e.salu(f"s_lshl_b32 s33, s{S_W}, 13")
    e.salu(f"s_add_u32 s33, s33, {LDS_X}")
    Ve(f"v_add_u32 {vr(T1)}, s33, {vr(T0)}", [T0], T1)
    for dt in range(8):
        e.raw(f"ds_write_b128 {vr(T1)}, {vr(XB+4*dt,4)} offset:{1024*dt}", "ldsw", R("v", T1) | R("v", XB + 4 * dt, 4))
    Ve(f"v_mov_b32 {vr(T2)}, {f32(256.0)}", [], T2)
    for r in range(0, 32, 2):
        e.valu(f"v_pk_mul_f32 {vr(96+r,2)}, {vr(XB+r,2)}, {vr(T2,2)} op_sel_hi:[1,0]", R("v", XB + r, 2) | R("v", T2), R("v", 96 + r, 2))
        e.valu(f"v_pk_fma_f32 {vr(VCHK,2)}, {vr(96+r,2)}, {vr(VZ,2)}, {vr(VCHK,2)}", R("v", 96 + r, 2) | R("v", VZ, 2) | R("v", VCHK, 2), R("v", VCHK, 2))
    e.salu(f"s_mov_b64 s[{S_BAD}:{S_BAD+1}], 0")
    e.salu(f"s_mov_b32 s34, {LO_THR}")
    e.salu(f"s_mov_b32 s35, {HI_THR}")
    for t in range(NT):
        e.valu(f"v_cmp_nle_f32 vcc, s34, {vr(VL(t))}", R("v", VL(t)), R("s", 106))
        e.salu(f"s_or_b64 s[{S_BAD}:{S_BAD+1}], s[{S_BAD}:{S_BAD+1}], vcc")
        e.valu(f"v_cmp_nge_f32 vcc, s35, {vr(VL(t))}", R("v", VL(t)), R("s", 106))
        e.salu(f"s_or_b64 s[{S_BAD}:{S_BAD+1}], s[{S_BAD}:{S_BAD+1}], vcc")
    emit_store_tiles(e, VST, True)
    e.valu(f"v_cmp_u_f32 vcc, {vr(VCHK)}, {vr(VCHK+1)}", R("v", VCHK, 2), R("s", 106))
    e.salu(f"s_or_b64 s[{S_BAD}:{S_BAD+1}], s[{S_BAD}:{S_BAD+1}], vcc")
    e.salu(f"s_cmp_lg_u64 s[{S_BAD}:{S_BAD+1}], 0")
    e.salu("s_cselect_b32 s33, 1, 0")
    if opt("forceslow", 0): e.salu("s_mov_b32 s33, 1")
    Ve(f"v_mov_b32 {vr(T3)}, s33", [], T3)
    Ve(f"v_lshlrev_b32 {vr(T4)}, 3, {vr(VLANE)}", [VLANE], T4)
    Ve(f"v_add_u32 {vr(T5)}, s{S_M0K}, {vr(T4)}", [T4], T5)
    Ve(f"v_mov_b32 {vr(T2)}, {vr(VL(NT))}", [VL(NT)], T2)
    e.raw(f"ds_write_b64 {vr(T5)}, {vr(T2,2)} offset:16384", "ldsw", R("v", T5) | R("v", T2, 2))
    e.raw("s_waitcnt lgkmcnt(0)", "wait")
    emit_ts(e)
    e.raw("s_barrier", "barrier")
    emit_ts(e)
    for w in range(4):
        e.raw(f"ds_read_b64 {vr(96+2*w,2)}, {vr(T4)} offset:{16384 + 4096*w}", "lds", R("v", T4), R("v", 96 + 2 * w, 2))
    e.salu(f"s_lshl_b32 s33, s{S_W}, 11")
    e.salu(f"s_add_u32 s33, s33, {LDS_X}")
    Ve(f"v_add_u32 {vr(T1)}, s33, {vr(T0)}", [T0], T1)
    for w in range(4):
        for h in range(2):
            e.raw(f"ds_read_b128 {vr(XB+8*w+4*h,4)}, {vr(T1)} offset:{8192*w + 1024*h}", "lds", R("v", T1), R("v", XB + 8 * w + 4 * h, 4))
    e.raw("s_waitcnt lgkmcnt(0)", "wait")
    Ve(f"v_add_f32 v96, v96, v98", [96, 98], 96)
    Ve(f"v_add_f32 v100, v100, v102", [100, 102], 100)
    Ve(f"v_add_f32 v96, v96, v100", [96, 100], 96)
    Ve(f"v_or_b32 v97, v97, v99", [97, 99], 97)
    Ve(f"v_or_b32 v101, v101, v103", [101, 103], 101)
    Ve(f"v_or_b32 v97, v97, v101", [97, 101], 97)
    e.valu(f"v_cmp_ne_u32 vcc, 0, v97", R("v", 97), R("s", 106))
    e.salu(f"s_mov_b64 s[{S_BAD}:{S_BAD+1}], vcc")
    e.valu(f"v_cmp_nle_f32 vcc, s34, v96", R("v", 96), R("s", 106))
    e.salu(f"s_or_b64 s[{S_BAD}:{S_BAD+1}], s[{S_BAD}:{S_BAD+1}], vcc")
    e.valu(f"v_cmp_nge_f32 vcc, s35, v96", R("v", 96), R("s", 106))
    e.salu(f"s_or_b64 s[{S_BAD}:{S_BAD+1}], s[{S_BAD}:{S_BAD+1}], vcc")
    e.salu(f"s_cmp_lg_u64 s[{S_BAD}:{S_BAD+1}], 0")
    e.salu("s_cbranch_scc1 L_slow")
    e.raw(f"v_rcp_f32 {vr(VRI)}, v96", "trans", R("v", 96), R("v", VRI))
    for r in range(8):
        Ve(f"v_add_f32 {vr(XB+r)}, {vr(XB+r)}, {vr(XB+8+r)}", [XB + r, XB + 8 + r], XB + r)
        Ve(f"v_add_f32 {vr(XB+16+r)}, {vr(XB+16+r)}, {vr(XB+24+r)}", [XB + 16 + r, XB + 24 + r], XB + 16 + r)
    for r in range(8):
        Ve(f"v_add_f32 {vr(XB+r)}, {vr(XB+r)}, {vr(XB+16+r)}", [XB + r, XB + 16 + r], XB + r)
    emit_store_x(e, VST, XB, VRI)
    emit_ts(e)
    e.raw("s_waitcnt vmcnt(0)", "wait")
    emit_ts_store(e)
    e.label("L_end")
    e.raw("s_endpgm", "other")
    epi = fix_hazards(body[-40:] + tail + e.L)[len(fix_hazards(body[-40:])):]

    s = Asm()
    def Vs(txt, rd, wr, kind="valu"): s.raw(txt, kind, set().union(*[R("v", r) for r in rd]) if rd else (), R("v", wr))
    def VM(t): return 120 + t
    SS = 96; PP = 112; MX = 126; AL = 127; TM = 128; SUM = 129
    s.label("L_slow")
    s.raw("s_waitcnt vmcnt(0) lgkmcnt(0)", "wait")
    s.raw("s_barrier", "barrier")
    emit_q_loads(s, VQOFF)
    for r in range(192): s.valu(f"v_accvgpr_write_b32 {ar(r)}, 0", (), R("a", r))
    for t in range(NT + 1):
        Vs(f"v_mov_b32 {vr(VL(t))}, 0", [], VL(t))
        Vs(f"v_mov_b32 {vr(VM(t))}, 0xff800000", [], VM(t))
    emit_q_load_scale(s, VQOFF, 0)
    s.salu(f"s_mov_b32 s{S_KOFF}, 0")
    s.salu(f"s_mov_b32 s{S_VOFF}, 0")
    s.salu(f"s_mov_b32 s{S_CNT}, 16")
    s.label("L_slow_loop")
    s.raw("s_barrier", "barrier")
    emit_dma_block(s, "K", 0)
    emit_dma_block(s, "V", 0)
    s.raw("s_waitcnt vmcnt(0)", "wait")
    s.raw("s_barrier", "barrier")
    for t in range(NT + 1):
        for j in range(4):
            for k in range(4): s.L.append(lds_k(j, k, 0))
            s.raw("s_waitcnt lgkmcnt(0)", "wait")
            for k in range(4):
                d = SS + 4 * j
                c = "0" if k == 0 else vr(d, 4)
                i = s.raw(f"v_mfma_f32_16x16x32_bf16 {vr(d,4)}, {ar(AK(j%2,k),4)}, {vr(VQ(t,k),4)}, {c}", "mfma",
                          R("a", AK(j % 2, k), 4) | R("v", VQ(t, k), 4) | (R("v", d, 4) if k else set()), R("v", d, 4))
                i.cacc = R("v", d, 4) if k else set()
        s.nop(10)
        Vs(f"v_max3_f32 {vr(MX)}, {vr(SS)}, {vr(SS+1)}, {vr(SS+2)}", [SS, SS + 1, SS + 2], MX)
        for r in range(3, 15, 2):
            Vs(f"v_max3_f32 {vr(MX)}, {vr(MX)}, {vr(SS+r)}, {vr(SS+r+1)}", [MX, SS + r, SS + r + 1], MX)
        Vs(f"v_max_f32 {vr(MX)}, {vr(MX)}, {vr(SS+15)}", [MX, SS + 15], MX)
        for sw in ("v_permlane32_swap_b32", "v_permlane16_swap_b32"):
            Vs(f"v_mov_b32 {vr(TM)}, {vr(MX)}", [MX], TM)
            s.nop(2)
            s.valu(f"{sw} {vr(MX)}, {vr(TM)}", R("v", MX) | R("v", TM), R("v", MX) | R("v", TM))
            s.nop(2)
            Vs(f"v_max_f32 {vr(MX)}, {vr(MX)}, {vr(TM)}", [MX, TM], MX)
        Vs(f"v_max_f32 {vr(MX)}, {vr(MX)}, {vr(VM(t))}", [MX, VM(t)], MX)
        Vs(f"v_sub_f32 {vr(AL)}, {vr(VM(t))}, {vr(MX)}", [MX, VM(t)], AL)
        Vs(f"v_exp_f32 {vr(AL)}, {vr(AL)}", [AL], AL, "trans")
        Vs(f"v_mov_b32 {vr(VM(t))}, {vr(MX)}", [MX], VM(t))
        for r in range(16): Vs(f"v_sub_f32 {vr(SS+r)}, {vr(SS+r)}, {vr(MX)}", [SS + r, MX], SS + r)
        for r in range(16): Vs(f"v_exp_f32 {vr(SS+r)}, {vr(SS+r)}", [SS + r], SS + r, "trans")
        Vs(f"v_mul_f32 {vr(VL(t))}, {vr(VL(t))}, {vr(AL)}", [VL(t), AL], VL(t))
        for r in range(16): Vs(f"v_add_f32 {vr(VL(t))}, {vr(VL(t))}, {vr(SS+r)}", [VL(t), SS + r], VL(t))
        for r in range(8): Vs(f"v_cvt_pk_bf16_f32 {vr(PP+r)}, {vr(SS+2*r)}, {vr(SS+2*r+1)}", [SS + 2 * r, SS + 2 * r + 1], PP + r)
        for r in range(32):
            tm = 132 + (r % 8)
            s.valu(f"v_accvgpr_read_b32 {vr(tm)}, {ar(AO(t,0)+r)}", R("a", AO(t, 0) + r), R("v", tm))
            Vs(f"v_mul_f32 {vr(tm)}, {vr(tm)}, {vr(AL)}", [tm, AL], tm)
            s.valu(f"v_accvgpr_write_b32 {ar(AO(t,0)+r)}, {vr(tm)}", R("v", tm), R("a", AO(t, 0) + r))
        for p in range(2):
            for dt in range(8):
                for h in range(2): s.L.append(lds_v(p, dt, h, 0))
            s.raw("s_waitcnt lgkmcnt(0)", "wait")
            for dt in range(8):
                d = AO(t, dt); av = AV(dt // 4, dt % 4)
                i = s.raw(f"v_mfma_f32_16x16x32_bf16 {ar(d,4)}, {ar(av,4)}, {vr(PP+4*p,4)}, {ar(d,4)}", "mfma",
                          R("a", av, 4) | R("v", PP + 4 * p, 4) | R("a", d, 4), R("a", d, 4))
                i.cacc = R("a", d, 4)
            s.nop(4)
    s.salu(f"s_add_u32 s{S_KOFF}, s{S_KOFF}, 16384")
    s.salu(f"s_add_u32 s{S_VOFF}, s{S_VOFF}, 16384")
    s.salu(f"s_sub_u32 s{S_CNT}, s{S_CNT}, 1")
    s.salu(f"s_cmp_lg_u32 s{S_CNT}, 0")
    s.salu("s_cbranch_scc1 L_slow_loop")
    s.nop(10)
    emit_lsum_reduce(s, [VL(t) for t in range(NT + 1)], 96)
    emit_store_tiles(s, VST, False)
    for r in range(32):
        s.valu(f"v_accvgpr_read_b32 {vr(XB+r)}, {ar(AO(NT,0)+r)}", R("a", AO(NT, 0) + r), R("v", XB + r))
    Vs(f"v_lshlrev_b32 {vr(T0)}, 4, {vr(VLANE)}", [VLANE], T0)
    s.salu(f"s_lshl_b32 s33, s{S_W}, 13")
    s.salu(f"s_add_u32 s33, s33, {LDS_X}")
    Vs(f"v_add_u32 {vr(T1)}, s33, {vr(T0)}", [T0], T1)
    for dt in range(8):
        s.raw(f"ds_write_b128 {vr(T1)}, {vr(XB+4*dt,4)} offset:{1024*dt}", "ldsw", R("v", T1) | R("v", XB + 4 * dt, 4))
    s.salu(f"s_lshl_b32 s33, s{S_W}, 11")
    Vs(f"v_add_u32 {vr(T1)}, s33, {vr(T1)}", [T1], T1)
    s.raw("s_waitcnt lgkmcnt(0)", "wait")
    for h in range(2):
        s.raw(f"ds_read_b128 {vr(XB+4*h,4)}, {vr(T1)} offset:{1024*h}", "lds", R("v", T1), R("v", XB + 4 * h, 4))
    s.raw(f"v_rcp_f32 {vr(VRI)}, {vr(VL(NT))}", "trans", R("v", VL(NT)), R("v", VRI))
    s.raw("s_waitcnt lgkmcnt(0)", "wait")
    emit_store_x(s, VST, XB, VRI)
    s.raw("s_waitcnt vmcnt(0)", "wait")
    s.raw("s_endpgm", "other")
    slow = fix_hazards(s.L)

    lines = []
    ref = open("standalone__gqa_softmax__near_ridge.s.ref").read().splitlines()
    for l in ref:
        if l.startswith("; @launch"): break
        lines.append(l)
    lines.append("; @launch grid=(256,1,1) block=(256,1,1) lds=163840")
    lines.append('.amdgcn_target "amdgcn-amd-amdhsa--gfx950"')
    lines.append(".text")
    lines.append(f".globl {KNAME}")
    lines.append(".p2align 8")
    lines.append(f".type {KNAME},@function")
    lines.append(f"{KNAME}:")
    def dump(L):
        for i in L: lines.append(i.text if i.kind == "label" else "    " + i.text)
    dump(pro)
    lines.append(".p2align 6")
    lines.append("L_loop:")
    dump(body); dump(tailctl); dump(epi); dump(slow)
    lines.append('.section .rodata,"a"')
    lines.append(".p2align 6")
    lines.append(f".amdhsa_kernel {KNAME}")
    lines.append("  .amdhsa_next_free_vgpr 512")
    lines.append("  .amdhsa_next_free_sgpr 64")
    lines.append("  .amdhsa_accum_offset 256")
    lines.append("  .amdhsa_group_segment_fixed_size 0")
    lines.append("  .amdhsa_kernarg_size 48")
    lines.append("  .amdhsa_user_sgpr_count 2")
    lines.append("  .amdhsa_user_sgpr_kernarg_segment_ptr 1")
    lines.append("  .amdhsa_system_sgpr_workgroup_id_x 1")
    lines.append(".end_amdhsa_kernel")
    open(OUT, "w").write("\n".join(lines) + "\n")
    print("written", OUT, "prologue", len(pro), "body", len(body), "tail+epi", len(epi), "slow", len(slow))

if __name__ == "__main__":
    if "stats" in OPTS:
        print(stats())
        for g, l in enumerate(TEMPLATE): print(g, BM[g], l)
    else:
        build()
```

```python
import struct, sys, math

KNAME = "standalone__gqa_softmax__near_ridge_kernel"
OUT = sys.argv[1] if len(sys.argv) > 1 else "standalone__gqa_softmax__near_ridge.s"
OPTS = dict(a.split("=") for a in sys.argv[2:])
def opt(name, default):
    return type(default)(OPTS.get(name, default))

STF = {"": "", "sc1": " sc1", "nt": " nt", "sc01": " sc0 sc1", "sc1nt": " sc1 nt"}[opt("stf", "")]
QF = " nt" if opt("qnt", 1) else ""
KVF = " nt" if opt("kvnt", 1) else ""
def f32(x): return "0x%08x" % struct.unpack("<I", struct.pack("<f", x))[0]
SCALE = math.log2(math.e) / math.sqrt(128.0)

NT = 5
def VQ(t, s): return 16 * t + 4 * s
def SP(p, t): return 96 + 40 * p + 8 * t
SX = 176
def VL(t): return 180 + t
def VKA(j, p): return 186 + 2 * j + p
def VVA(j, c): return 194 + 4 * j + c
def VDK(j): return 210 + j
def VDV(j): return 214 + j
VLANE = 218
VT = 220
def AO(t, dt): return 32 * t + 4 * dt
def AK(b, s): return 192 + 16 * b + 4 * s
def AV(b, i): return 224 + 16 * b + 4 * i
S_Q, S_K, S_V, S_O = 4, 8, 12, 16
S_W = 20; S_KOFF = 21; S_VOFF = 22; S_CNT = 23; S_M0K = 24; S_M0V = 25
S_C = 28
S_BAD = 30
S_T = 32
LDS_V = 65536
LDS_X = 131072

def vr(n, k=1): return f"v{n}" if k == 1 else f"v[{n}:{n+k-1}]"
def ar(n, k=1): return f"a{n}" if k == 1 else f"a[{n}:{n+k-1}]"
def R(kind, n, k=1): return {(kind, n + i) for i in range(k)}

class I:
    def __init__(s, text, kind, rd=(), wr=()):
        s.text, s.kind, s.rd, s.wr = text, kind, set(rd), set(wr)
    def __repr__(s): return s.text

class Asm:
    def __init__(s): s.L = []
    def raw(s, text, kind="other", rd=(), wr=()):
        s.L.append(I(text, kind, rd, wr)); return s.L[-1]
    def label(s, name): s.L.append(I(name + ":", "label"))
    def comment(s, c): s.L.append(I("; " + c, "label"))
    def nop(s, n):
        while n > 0:
            k = min(n, 16); s.raw(f"s_nop {k-1}", "nop"); s.L[-1].ws = k; n -= k
    def salu(s, text): return s.raw(text, "salu")
    def valu(s, text, rd=(), wr=()): return s.raw(text, "valu", rd, wr)

def mfma_qk(t, j, s):
    d = SX if t == NT else SP(j // 2, t) + 4 * (j % 2)
    a = AK(j % 2, s); b = VQ(t, s)
    c = "0" if s == 0 else vr(d, 4)
    rd = R("a", a, 4) | R("v", b, 4) | (R("v", d, 4) if s else set())
    i = I(f"v_mfma_f32_16x16x32_bf16 {vr(d,4)}, {ar(a,4)}, {vr(b,4)}, {c}", "mfma", rd, R("v", d, 4))
    i.cacc = R("v", d, 4) if s else set()
    return i
def mfma_pv(t, p, dt):
    d = AO(t, dt); a = AV(dt // 4, dt % 4)
    if t == NT:
        i = I(f"v_mfma_f32_16x16x16_bf16 {ar(d,4)}, {ar(a,2)}, {vr(SX,2)}, {ar(d,4)}", "mfma",
              R("a", a, 2) | R("v", SX, 2) | R("a", d, 4), R("a", d, 4))
    else:
        b = SP(p, t)
        i = I(f"v_mfma_f32_16x16x32_bf16 {ar(d,4)}, {ar(a,4)}, {vr(b,4)}, {ar(d,4)}", "mfma",
              R("a", a, 4) | R("v", b, 4) | R("a", d, 4), R("a", d, 4))
    i.cacc = R("a", d, 4)
    return i
def lds_k(j, s, stage):
    d = AK(j % 2, s)
    return I(f"ds_read_b128 {ar(d,4)}, {vr(VKA(j, s % 2))} offset:{stage*16384 + (s//2)*8192}", "lds",
             R("v", VKA(j, s % 2)), R("a", d, 4))
def lds_v(p, dt, h, stage):
    d = AV(dt // 4, dt % 4) + 2 * h
    j = 2 * p + h
    return I(f"ds_read_b64_tr_b16 {ar(d,2)}, {vr(VVA(j, dt % 4))} offset:{stage*16384 + (dt//4)*8192}", "lds",
             R("v", VVA(j, dt % 4)), R("a", d, 2))
def v_exp(r): return I(f"v_exp_f32 {vr(r)}, {vr(r)}", "trans", R("v", r), R("v", r))
def v_addl(t, r): return I(f"v_add_f32 {vr(VL(t))}, {vr(VL(t))}, {vr(r)}", "valu", R("v", r) | R("v", VL(t)), R("v", VL(t)))
def v_cvt(d, a, b): return I(f"v_cvt_pk_bf16_f32 {vr(d)}, {vr(a)}, {vr(b)}", "valu", R("v", a) | R("v", b), R("v", d))
def dma(which, j):
    if which == "K":
        return I(f"buffer_load_dwordx4 {vr(VDK(j))}, s[{S_K}:{S_K+3}], s{S_KOFF} offen offset:{1024*j}{KVF} lds", "dma", R("v", VDK(j)))
    return I(f"buffer_load_dwordx4 {vr(VDV(j))}, s[{S_V}:{S_V+3}], s{S_VOFF} offen offset:{1024*j}{KVF} lds", "dma", R("v", VDV(j)))

def block_mfmas():
    M = []
    def Q(j):
        for t in range(NT):
            for s in range(4): M.append(("QK", t, j, s))
        if j == 0:
            for s in range(4): M.append(("QK", NT, 0, s))
    def P(p, half):
        for dt in range(4 * half, 4 * half + 4):
            for t in range(NT): M.append(("PV", t, p, dt))
            if p == 0: M.append(("PV", NT, 0, dt))
    Q(0); P(1, 0); Q(1); P(1, 1); Q(2); P(0, 0); Q(3); P(0, 1)
    return M
BM = block_mfmas()
NB = len(BM)
def midx(tag): return BM.index(tag)

class Op:
    def __init__(s, name, blk, mk, cost, E, D, preds=(), first=False):
        s.name, s.blk, s.mk, s.cost, s.E, s.D, s.preds, s.first = name, blk, mk, cost, E, D, list(preds), first
        s.gap = None
        Op.count += 1; s.seq = Op.count
Op.count = 0

EXP_LAG = opt("explag", 4)
LDS_LEAD = opt("ldslead", 12)
BAR_POS = midx(("QK", 0, 3, 3)) + opt("barshift", 0)

def block_ops(b):
    base = b * NB
    ops = []
    for t in range(NT + 1):
        for j in range(4 if t < NT else 1):
            p = j // 2
            r0 = SX if t == NT else SP(p, t) + 4 * (j % 2)
            mend = base + midx(("QK", t, j, 3))
            if p == 0: cons = base + midx(("PV", t, 0, 0))
            else: cons = base + NB + midx(("PV", t, 1, 0))
            dc = cons - 3
            exps = [Op(f"exp{t}{j}{k}", b, lambda st, r=r0 + k: v_exp(r), 8, mend + EXP_LAG, dc - 4) for k in range(4)]
            adds = [Op(f"add{t}{j}{k}", b, lambda st, r=r0 + k, t=t: v_addl(t, r), 4, 0, dc - 2, [exps[k]]) for k in range(4)]
            pb = SX if t == NT else SP(p, t)
            dst = pb + 2 * (j % 2)
            c0 = Op(f"cvt{t}{j}0", b, lambda st, d=dst, r=r0: v_cvt(d, r, r + 1), 4, 0, dc - 1, adds[0:2])
            c1 = Op(f"cvt{t}{j}1", b, lambda st, d=dst + 1, r=r0: v_cvt(d, r + 2, r + 3), 4, 0, dc, adds[2:4] + [c0])
            if j % 2 == 1:
                prev = [o for o in ops if o.name == f"cvt{t}{j-1}1"][0]
                c0.preds.append(prev); c1.preds.append(prev)
            for k, o in enumerate(exps + adds + [c0, c1]): o.seq = mend * 100 + k
            ops += exps + adds + [c0, c1]
    for j in range(4):
        first_use = base + midx(("QK", 0, j, 0))
        for s in range(4):
            if j >= 2:
                lastt = NT if j - 2 == 0 else NT - 1
                E = base + midx(("QK", lastt, j - 2, s))
            else:
                E = base - NB + midx(("QK", NT - 1, j + 2, s))
                E = max(E, base - NB + BAR_POS + 1)
            ops.append(Op(f"ldk{j}{s}", b, lambda st, j=j, s=s: lds_k(j, s, st), 4, E, first_use + s - LDS_LEAD, first=True))
    for p in range(2):
        for dt in range(8):
            ub = base if p == 0 else base + NB
            first_use = ub + midx(("PV", 0, p, dt))
            if p == 0: E = base + midx(("PV", NT - 1, 1, dt))
            else: E = base + midx(("PV", NT, 0, dt))
            for h in range(2):
                ops.append(Op(f"ldv{p}{dt}{h}", b, lambda st, p=p, dt=dt, h=h: lds_v(p, dt, h, st), 4, E, first_use - LDS_LEAD, first=True))
    prev = None
    E = base + BAR_POS + 1
    seq = [("m0V",), ("V", 0), ("V", 1), ("V", 2), ("V", 3), ("m0K",), ("K", 0), ("K", 1), ("K", 2), ("K", 3), ("adv",)]
    for n, it in enumerate(seq):
        if it[0] == "m0V":
            mk = lambda st: I(f"s_add_u32 m0, s{S_M0V}, {((st + 3) % 4) * 16384}", "salu_m0"); cost = 0
        elif it[0] == "m0K":
            mk = lambda st: I(f"s_add_u32 m0, s{S_M0K}, {(st % 4) * 16384}", "salu_m0"); cost = 0
        elif it[0] == "adv":
            mk = lambda st: [I(f"s_add_u32 s{S_KOFF}, s{S_KOFF}, 16384", "salu"), I(f"s_add_u32 s{S_VOFF}, s{S_VOFF}, 16384", "salu")]; cost = 0
        else:
            mk = lambda st, it=it: dma(it[0], it[1]); cost = 8
        o = Op(f"dma{n}", b, mk, cost, E + opt("dmaspread", 5) * n, E + opt("dmaspread", 5) * n + 8, [prev] if prev else [])
        o.isdma = True
        ops.append(o); prev = o
    return ops

def schedule(ops, g0, g1):
    gaps = {}
    LW = opt("ldswin", 28)
    PANIC = opt("panic", 14)
    pend = list(ops)
    for o in pend:
        o.cls = "free" if o.cost == 0 else "mem" if (o.first or getattr(o, "isdma", False)) else "exp" if o.cost == 8 else "plain"
    pend.sort(key=lambda o: (o.D, o.seq))
    for g in range(g0, g1):
        def ready(o): return o.E <= g and all(p.gap is not None and p.gap < g for p in o.preds)
        cand = [o for o in pend if ready(o)]
        placed = [o for o in cand if o.cls == "free"]
        mem = [o for o in cand if o.cls == "mem"]
        exps = sorted([o for o in cand if o.cls == "exp"], key=lambda o: o.seq)
        plain = sorted([o for o in cand if o.cls == "plain"], key=lambda o: o.seq)
        soft = [o for o in pend if o.cls in ("exp", "plain") and o.E <= g + 200]
        slack = min([o.D - g for o in soft], default=999)
        forced = [o for o in mem if o.D <= g]
        due = [o for o in mem if g >= o.D - LW and o not in forced]
        used = 0
        if forced:
            placed += forced; used += 4 * len(forced)
        elif due and plain:
            placed.append(due[0]); used += 4
        if used:
            if plain and used < 8: placed.append(plain.pop(0)); used += 4
        elif len(plain) >= opt("backlog", 3) or (plain and not exps):
            placed += plain[:2]; used += 4 * len(plain[:2]); plain = plain[2:]
        elif exps:
            placed.append(exps.pop(0)); used += 8
        elif due:
            placed.append(due[0]); used += 4
        if slack < PANIC and plain:
            placed.append(plain.pop(0)); used += 4
        for o in exps + plain:
            if o.D <= g and o not in placed: placed.append(o)
        for o in placed:
            o.gap = g; pend.remove(o)
        order = {"free": 0, "mem": 1, "exp": 2, "plain": 3}
        placed.sort(key=lambda o: order[o.cls])
        gaps[g] = placed
    return gaps, pend

def build_template():
    NBLK = 9
    allops = []
    per = {}
    for b in range(NBLK):
        per[b] = block_ops(b); allops += per[b]
    gaps, pend = schedule(allops, -NB, NBLK * NB + NB)
    def rel(b):
        return [[(o.blk - b, o.name) for o in gaps[b * NB + g]] for g in range(NB)]
    assert rel(4) == rel(5) == rel(6), "schedule not periodic"
    return rel(5)

TEMPLATE = build_template()
def stats():
    over = 0
    protos = {o.name: o for o in block_ops(0)}
    hist = {}
    for g, l in enumerate(TEMPLATE):
        c = sum(protos[n].cost for _, n in l)
        hist[c] = hist.get(c, 0) + 1
    return hist
PROTO = {o.name: o for o in block_ops(0)}

def emit_op(a, name, stage):
    r = PROTO[name].mk(stage % 4)
    for i in (r if isinstance(r, list) else [r]): a.L.append(i)

def emit_mfma(a, tag):
    if tag[0] == "QK": a.L.append(mfma_qk(tag[1], tag[2], tag[3]))
    else: a.L.append(mfma_pv(tag[1], tag[2], tag[3]))

def emit_block(a, stage):
    for g, tag in enumerate(BM):
        emit_mfma(a, tag)
        if g == BAR_POS:
            if opt("ts", 0) == 2: emit_ts(a)
            a.raw("s_waitcnt vmcnt(12)", "wait")
            if opt("ts", 0) == 2: emit_ts(a)
            a.raw("s_barrier", "barrier")
            if opt("ts", 0) == 2: emit_ts(a)
        for d, name in TEMPLATE[g]:
            emit_op(a, name, stage + d)

def insert_lgkm_waits(L, carry_in=None):
    out = []
    q = list(carry_in or [])
    for i in L:
        if i.kind == "wait" and "lgkmcnt(0)" in i.text: q = []
        need = -1
        touched = i.rd | i.wr
        for k, o in enumerate(q):
            if o.wr & touched and i is not o: need = k
        if need >= 0:
            n = len(q) - 1 - need
            out.append(I(f"s_waitcnt lgkmcnt({n})", "wait"))
            q = q[need + 1:]
        out.append(i)
        if i.kind == "lds":
            q.append(i)
            assert len(q) <= 15, "too many LDS ops in flight"
    return out, q

def check_hazards(L, where=""):
    L = [i for i in L if i.kind != "label"]
    def ws(i): return getattr(i, "ws", 1)
    bad = 0
    n = len(L)
    for x in range(n):
        p = L[x]
        if not p.wr and p.kind != "salu_m0": continue
        dist = 0
        for y in range(x + 1, min(n, x + 24)):
            c = L[y]
            need = 0
            if p.kind == "mfma":
                if c.kind in ("valu", "trans", "lds", "dma", "vmem", "ldsw") and (p.wr & (c.rd | c.wr)): need = 8
                if c.kind == "mfma":
                    ab = c.rd - getattr(c, "cacc", set())
                    if p.wr & ab: need = 8
                    elif (p.wr & getattr(c, "cacc", set())) and p.wr != c.cacc: need = 6
            elif p.kind in ("valu", "trans"):
                if c.kind == "mfma" and (p.wr & c.rd): need = 2
                if p.kind == "trans" and c.kind == "valu" and (p.wr & c.rd): need = 1
                if "permlane" in c.text and (p.wr & c.rd): need = 2
                if "readfirstlane" in c.text and (p.wr & c.rd): need = 1
            elif p.kind == "salu_m0":
                if c.kind == "dma": need = 1
            if need > dist:
                print(f"HAZARD[{where}]: {p.text}  ->  {c.text}  dist {dist} need {need}"); bad += 1
            dist += ws(c)
            if dist >= 10: break
    for x in range(n):
        p = L[x]
        if p.kind == "mfma" and getattr(p, "cacc", None):
            dist = 0
            for y in range(x + 1, min(n, x + 6)):
                c = L[y]
                if c.kind in ("valu", "trans") and (c.wr & p.cacc) and dist < 3:
                    print(f"HAZARD-WAR[{where}]: {p.text} -> {c.text}"); bad += 1
                dist += ws(c)
        if p.kind == "vmem" and "store" in p.text:
            dist = 0
            for y in range(x + 1, min(n, x + 4)):
                c = L[y]
                if c.kind in ("valu", "trans") and (c.wr & p.rd) and dist < 2:
                    print(f"HAZARD-STORE[{where}]: {p.text} -> {c.text}"); bad += 1
                dist += ws(c)
    return bad


def fix_hazards(L):
    out = []
    def ws(i): return getattr(i, "ws", 1)
    for c in L:
        if c.kind != "label":
            need_extra = 0
            dist = 0
            for p in reversed(out):
                if p.kind == "label": continue
                need = 0
                if p.kind == "mfma":
                    if c.kind in ("valu", "trans", "lds", "dma", "vmem", "ldsw") and (p.wr & (c.rd | c.wr)): need = 8
                    if c.kind == "mfma":
                        ab = c.rd - getattr(c, "cacc", set())
                        if p.wr & ab: need = 8
                    if c.kind in ("valu", "trans") and (c.wr & getattr(p, "cacc", set())): need = max(need, 3)
                elif p.kind in ("valu", "trans"):
                    if c.kind == "mfma" and (p.wr & c.rd): need = 2
                    if p.kind == "trans" and c.kind in ("valu", "vmem", "ldsw") and (p.wr & c.rd): need = 1
                    if "permlane" in c.text and (p.wr & (c.rd | c.wr)): need = 2
                    if "readfirstlane" in c.text and (p.wr & c.rd): need = 1
                    if (p.wr & c.rd) and any(k == "s" for k, _ in (p.wr & c.rd)):
                        need = max(need, 5 if c.kind in ("vmem", "dma") else 2)
                elif p.kind == "salu_m0":
                    if c.kind == "dma": need = 1
                elif p.kind in ("vmem", "ldsw") and ("store" in p.text or "write" in p.text):
                    if c.kind in ("valu", "trans") and (c.wr & p.rd): need = 2
                need_extra = max(need_extra, need - dist)
                dist += ws(p)
                if dist >= 10: break
            if need_extra > 0:
                n = I(f"s_nop {need_extra-1}", "nop"); n.ws = need_extra; out.append(n)
        out.append(c)
    return out

def emit_q_load_scale(a, vq_off, after_count):
    t0 = VT + 8
    for t in range(NT + 1):
        a.raw(f"s_waitcnt vmcnt({min(63, after_count + 4 * (NT - t))})", "wait")
        for r in range(16):
            q = VQ(t, 0) + r
            tmp = t0 + 2 * (r % 8)
            a.valu(f"v_lshlrev_b32 {vr(tmp)}, 16, {vr(q)}", R("v", q), R("v", tmp))
            a.valu(f"v_and_b32 {vr(tmp+1)}, 0xffff0000, {vr(q)}", R("v", q), R("v", tmp + 1))
            a.valu(f"v_pk_mul_f32 {vr(tmp,2)}, {vr(tmp,2)}, s[{S_C}:{S_C+1}]", R("v", tmp, 2), R("v", tmp, 2))
            a.valu(f"v_cvt_pk_bf16_f32 {vr(q)}, {vr(tmp)}, {vr(tmp+1)}", R("v", tmp, 2), R("v", q))

def emit_q_loads(a, vq_off):
    for t in range(NT + 1):
        if t < NT:
            a.salu(f"s_mul_i32 s{S_T}, s{S_W}, 20480")
            a.salu(f"s_add_u32 s{S_T}, s{S_T}, {t*4096}")
        else:
            a.salu(f"s_mov_b32 s{S_T}, 81920")
        for s in range(4):
            a.raw(f"buffer_load_dwordx4 {vr(VQ(t,s),4)}, {vr(vq_off)}, s[{S_Q}:{S_Q+3}], s{S_T} offen offset:{64*s}{QF}", "vmem",
                  R("v", vq_off), R("v", VQ(t, s), 4))

def emit_dma_block(a, which, stage):
    base = (S_M0K if which == "K" else S_M0V)
    a.raw(f"s_add_u32 m0, s{base}, {stage*16384}", "salu_m0")
    a.nop(1)
    for j in range(4): a.L.append(dma(which, j))

def emit_lsum_reduce(a, regs, tmp):
    for sw in ("v_permlane32_swap_b32", "v_permlane16_swap_b32"):
        for k, r in enumerate(regs):
            a.valu(f"v_mov_b32 {vr(tmp+k)}, {vr(r)}", R("v", r), R("v", tmp + k))
        a.nop(2)
        for k, r in enumerate(regs):
            a.valu(f"{sw} {vr(r)}, {vr(tmp+k)}", R("v", r) | R("v", tmp + k), R("v", r) | R("v", tmp + k))
        a.nop(2)
        for k, r in enumerate(regs):
            a.valu(f"v_add_f32 {vr(r)}, {vr(r)}, {vr(tmp+k)}", R("v", r) | R("v", tmp + k), R("v", r))

def emit_store_tiles(a, vst, check):
    VZ = VT + 2
    VCHK = VT + 4
    VRI = VT + 6
    for t in range(NT):
        buf = 0 if t % 2 == 0 else 48
        a.raw(f"v_rcp_f32 {vr(VRI)}, {vr(VL(t))}", "trans", R("v", VL(t)), R("v", VRI))
        for r in range(32):
            a.valu(f"v_accvgpr_read_b32 {vr(buf+r)}, {ar(AO(t,0)+r)}", R("a", AO(t, 0) + r), R("v", buf + r))
        for r in range(0, 32, 2):
            a.valu(f"v_pk_mul_f32 {vr(buf+r,2)}, {vr(buf+r,2)}, {vr(VRI,2)} op_sel_hi:[1,0]", R("v", buf + r, 2) | R("v", VRI), R("v", buf + r, 2))
        if check:
            for r in range(0, 32, 2):
                a.valu(f"v_pk_fma_f32 {vr(VCHK,2)}, {vr(buf+r,2)}, {vr(VZ,2)}, {vr(VCHK,2)}", R("v", buf + r, 2) | R("v", VZ, 2) | R("v", VCHK, 2), R("v", VCHK, 2))
        pk = buf + 32
        for m in range(4):
            for h in range(2):
                for k in range(2):
                    src = buf + 4 * (2 * m + h) + 2 * k
                    a.valu(f"v_cvt_pk_bf16_f32 {vr(pk+4*m+2*h+k)}, {vr(src)}, {vr(src+1)}", R("v", src, 2), R("v", pk + 4 * m + 2 * h + k))
        a.nop(2)
        for m in range(4):
            for k in range(2):
                x, y = pk + 4 * m + k, pk + 4 * m + 2 + k
                a.valu(f"v_permlane16_swap_b32 {vr(x)}, {vr(y)}", R("v", x) | R("v", y), R("v", x) | R("v", y))
        a.salu(f"s_mul_i32 s{S_T}, s{S_W}, 20480")
        a.salu(f"s_add_u32 s{S_T}, s{S_T}, {t*4096}")
        for m in range(4):
            a.raw(f"buffer_store_dwordx4 {vr(pk+4*m,4)}, {vr(vst)}, s[{S_O}:{S_O+3}], s{S_T} offen offset:{64*m}{STF}", "vmem",
                  R("v", pk + 4 * m, 4) | R("v", vst))

def emit_store_x(a, vst, src, rinv):
    for r in range(0, 8, 2):
        a.valu(f"v_pk_mul_f32 {vr(src+r,2)}, {vr(src+r,2)}, {vr(rinv,2)} op_sel_hi:[1,0]", R("v", src + r, 2) | R("v", rinv), R("v", src + r, 2))
    pk = src + 8
    for h in range(2):
        for k in range(2):
            s_ = src + 4 * h + 2 * k
            a.valu(f"v_cvt_pk_bf16_f32 {vr(pk+2*h+k)}, {vr(s_)}, {vr(s_+1)}", R("v", s_, 2), R("v", pk + 2 * h + k))
    a.nop(2)
    for k in range(2):
        x, y = pk + k, pk + 2 + k
        a.valu(f"v_permlane16_swap_b32 {vr(x)}, {vr(y)}", R("v", x) | R("v", y), R("v", x) | R("v", y))
    a.salu(f"s_lshl_b32 s{S_T}, s{S_W}, 6")
    a.salu(f"s_add_u32 s{S_T}, s{S_T}, 81920")
    a.raw(f"buffer_store_dwordx4 {vr(pk,4)}, {vr(vst)}, s[{S_O}:{S_O+3}], s{S_T} offen{STF}", "vmem", R("v", pk, 4) | R("v", vst))

TS = opt("ts", 0)
DBG = opt("dbg", 0)
STF = {"": "", "sc1": " sc1", "nt": " nt", "sc01": " sc0 sc1", "sc1nt": " sc1 nt"}[opt("stf", "")]
VTS0, VTS1 = 219, 252
def emit_ts(a):
    if not TS: return
    a.raw("s_memtime s[50:51]", "smem")
    a.raw("s_memrealtime s[52:53]", "smem")
    a.raw("s_waitcnt lgkmcnt(0)", "wait")
    a.salu("s_lshl_b64 exec, 1, s48")
    a.raw(f"v_mov_b32 v{VTS0}, s50", "valu", (), R("v", VTS0))
    a.raw(f"v_mov_b32 v{VTS1}, s52", "valu", (), R("v", VTS1))
    a.salu("s_mov_b64 exec, -1")
    a.salu("s_add_u32 s48, s48, 1")
def emit_ts_store(a):
    if not TS: return
    emit_ts(a)
    a.salu(f"s_lshl_b32 s49, s2, 2")
    a.salu(f"s_add_u32 s49, s49, s{S_W}")
    if DBG:
        a.salu(f"s_cmp_eq_u32 s49, {opt('dbgwave', 0)}")
        a.salu(f"s_cselect_b32 s49, 0, 16")
    a.salu(f"s_lshl_b32 s49, s49, 9")
    if DBG:
        a.valu(f"v_readfirstlane_b32 s50, v{VTS1}", R("v", VTS1), R("s", 50))
        a.nop(2)
        a.valu(f"v_subrev_u32 v{VTS0}, s50, v{VTS1}", R("v", VTS1), R("v", VTS0))
    a.valu(f"v_lshlrev_b32 v253, 2, v{VLANE}", R("v", VLANE), R("v", 253))
    a.nop(2)
    a.raw(f"buffer_store_dword v{VTS0}, v253, s[44:47], s49 offen", "vmem", R("v", VTS0) | R("v", 253))
    a.raw(f"buffer_store_dword v{VTS1}, v253, s[44:47], s49 offen offset:256", "vmem", R("v", VTS1) | R("v", 253))
    a.raw("s_waitcnt vmcnt(0)", "wait")

LO_THR = f32(2.0 ** -24)
HI_THR = f32(2.0 ** 64)

def build():
    a = Asm()
    P = a
    T0, T1, T2, T3, T4, T5 = VT + 24, VT + 25, VT + 26, VT + 27, VT + 28, VT + 29
    VQOFF = VT + 30
    VST = VT + 31
    a.salu("s_cmp_ge_u32 s2, 256")
    a.salu("s_cbranch_scc1 L_end")
    a.raw("s_load_dwordx8 s[36:43], s[0:1], 0", "smem")
    if TS:
        a.raw(f"s_load_dwordx2 s[44:45], s[0:1], {32 if DBG else 40}", "smem")
        a.salu("s_mov_b32 s48, 0")
        a.valu(f"v_mov_b32 v{VTS0}, 0", (), R("v", VTS0))
        a.valu(f"v_mov_b32 v{VTS1}, 0", (), R("v", VTS1))
        emit_ts(a)
        a.salu("s_and_b32 s45, s45, 0xffff")
        a.salu(f"s_mov_b32 s46, {256 if DBG else 0x80000}")
        a.salu("s_mov_b32 s47, 0x00020000")
    a.valu(f"v_and_b32 {vr(VLANE)}, 63, v0", R("v", 0), R("v", VLANE))
    a.valu(f"v_lshrrev_b32 {vr(T0)}, 6, v0", R("v", 0), R("v", T0))
    a.nop(1)
    a.valu(f"v_readfirstlane_b32 s{S_W}, {vr(T0)}", R("v", T0), R("s", S_W))
    a.salu("s_and_b32 s32, s2, 7")
    a.salu("s_lshr_b32 s33, s2, 4")
    a.salu("s_lshl_b32 s33, s33, 3")
    a.salu("s_add_u32 s32, s32, s33")
    a.salu("s_lshr_b32 s33, s2, 3")
    a.salu("s_and_b32 s33, s33, 1")
    a.salu("s_lshl_b32 s34, s32, 1")
    a.salu("s_add_u32 s34, s34, s33")
    a.salu("s_mul_i32 s35, s34, 86016")
    a.salu("s_lshl_b32 s33, s32, 18")
    a.salu(f"s_mov_b32 s{S_C}, {f32(SCALE)}")
    a.salu(f"s_mov_b32 s{S_C+1}, {f32(SCALE)}")
    a.valu(f"v_and_b32 {vr(T1)}, 15, {vr(VLANE)}", R("v", VLANE), R("v", T1))
    a.valu(f"v_lshrrev_b32 {vr(T2)}, 4, {vr(VLANE)}", R("v", VLANE), R("v", T2))
    a.valu(f"v_lshrrev_b32 {vr(T3)}, 3, {vr(VLANE)}", R("v", VLANE), R("v", T3))
    a.valu(f"v_and_b32 {vr(T4)}, 7, {vr(VLANE)}", R("v", VLANE), R("v", T4))
    a.raw("s_waitcnt lgkmcnt(0)", "wait")
    def srd(d, lo, off, size):
        a.salu(f"s_add_u32 s{d}, s{lo}, s{off}")
        a.salu(f"s_addc_u32 s{d+1}, s{lo+1}, 0")
        a.salu(f"s_and_b32 s{d+1}, s{d+1}, 0xffff")
        a.salu(f"s_mov_b32 s{d+2}, {size}")
        a.salu(f"s_mov_b32 s{d+3}, 0x00020000")
    srd(S_K, 38, 33, 262144)
    srd(S_V, 40, 33, 262144)
    srd(S_Q, 36, 35, 86016)
    srd(S_O, 42, 35, 86016)
    a.salu(f"s_and_b32 s32, s{S_W}, 1")
    a.salu("s_lshl_b32 s32, s32, 13")
    a.salu(f"s_lshr_b32 s33, s{S_W}, 1")
    a.salu("s_lshl_b32 s33, s33, 7")
    a.salu("s_add_u32 s32, s32, s33")
    a.salu(f"s_lshl_b32 s{S_M0K}, s{S_W}, 12")
    a.salu(f"s_add_u32 s{S_M0V}, s{S_M0K}, {LDS_V}")
    def V(txt, rd, wr): a.valu(txt, set().union(*[R("v", r) for r in rd]), R("v", wr))
    V(f"v_lshrrev_b32 {vr(T5)}, 1, {vr(T2)}", [T2], T5)
    V(f"v_xor_b32 {vr(T0)}, {vr(T2)}, {vr(T5)}", [T2, T5], T0)
    for par in range(2):
        if par == 1:
            V(f"v_xor_b32 {vr(T0)}, 5, {vr(T0)}", [T0], T0)
        V(f"v_xor_b32 {vr(VDK(par))}, {vr(T4)}, {vr(T0)}", [T4, T0], VDK(par))
        V(f"v_lshlrev_b32 {vr(VDK(par))}, 4, {vr(VDK(par))}", [VDK(par)], VDK(par))
        V(f"v_lshl_add_u32 {vr(VDK(par))}, {vr(T3)}, 8, {vr(VDK(par))}", [T3, VDK(par)], VDK(par))
        V(f"v_add_u32 {vr(VDK(par))}, s32, {vr(VDK(par))}", [VDK(par)], VDK(par))
    V(f"v_add_u32 {vr(VDK(2))}, 2048, {vr(VDK(0))}", [VDK(0)], VDK(2))
    V(f"v_add_u32 {vr(VDK(3))}, 3072, {vr(VDK(1))}", [VDK(1)], VDK(3))
    V(f"v_add_u32 {vr(VDK(1))}, 1024, {vr(VDK(1))}", [VDK(1)], VDK(1))
    a.salu(f"s_mov_b32 s{S_KOFF}, 0")
    a.salu(f"s_mov_b32 s{S_VOFF}, 0")
    emit_dma_block(a, "K", 0)
    V(f"v_lshrrev_b32 {vr(T0)}, 1, {vr(T4)}", [T4], T0)
    V(f"v_xor_b32 {vr(T0)}, {vr(T0)}, {vr(T2)}", [T0, T2], T0)
    V(f"v_lshlrev_b32 {vr(T0)}, 5, {vr(T0)}", [T0], T0)
    V(f"v_and_b32 {vr(T5)}, 1, {vr(VLANE)}", [VLANE], T5)
    V(f"v_lshl_add_u32 {vr(T0)}, {vr(T5)}, 4, {vr(T0)}", [T5, T0], T0)
    V(f"v_lshl_add_u32 {vr(T0)}, {vr(T3)}, 8, {vr(T0)}", [T3, T0], T0)
    V(f"v_add_u32 {vr(VDV(0))}, s32, {vr(T0)}", [T0], VDV(0))
    for j in range(1, 4):
        V(f"v_add_u32 {vr(VDV(j))}, {1024*j}, {vr(VDV(0))}", [VDV(0)], VDV(j))
    V(f"v_lshlrev_b32 {vr(VQOFF)}, 8, {vr(T1)}", [T1], VQOFF)
    V(f"v_and_b32 {vr(T0)}, 1, {vr(T2)}", [T2], T0)
    V(f"v_lshl_add_u32 {vr(VST)}, {vr(T0)}, 5, {vr(VQOFF)}", [T0, VQOFF], VST)
    V(f"v_lshrrev_b32 {vr(T0)}, 1, {vr(T2)}", [T2], T0)
    V(f"v_lshl_add_u32 {vr(VST)}, {vr(T0)}, 4, {vr(VST)}", [T0, VST], VST)
    V(f"v_lshl_add_u32 {vr(VQOFF)}, {vr(T2)}, 4, {vr(VQOFF)}", [T2, VQOFF], VQOFF)
    emit_q_loads(a, VQOFF)
    emit_dma_block(a, "V", 0)
    nafter = 4
    def kblk(b):
        a.salu(f"s_mov_b32 s{S_KOFF}, {b*16384}"); emit_dma_block(a, "K", b % 4)
    def vblk(b):
        a.salu(f"s_mov_b32 s{S_VOFF}, {b*16384}"); emit_dma_block(a, "V", b % 4)
    kblk(1); vblk(1); kblk(2); nafter += 12
    a.salu(f"s_mov_b32 s{S_KOFF}, {3*16384}")
    a.salu(f"s_mov_b32 s{S_VOFF}, {2*16384}")
    deferred = {n for l in TEMPLATE for d, n in l if d == -1}
    for n in range(11):
        name = f"dma{n}"
        if name in deferred: continue
        emit_op(a, name, -1)
        if a.L[-1].kind == "salu_m0": a.nop(1)
        if a.L[-1].kind == "dma": nafter += 1
    V(f"v_lshrrev_b32 {vr(T0)}, 1, {vr(T1)}", [T1], T0)
    V(f"v_lshrrev_b32 {vr(T5)}, 1, {vr(T0)}", [T0], T5)
    V(f"v_lshrrev_b32 {vr(T3)}, 2, {vr(T0)}", [T0], T3)
    V(f"v_xor_b32 {vr(T5)}, {vr(T5)}, {vr(T3)}", [T5, T3], T5)
    V(f"v_and_b32 {vr(T5)}, 1, {vr(T5)}", [T5], T5)
    V(f"v_xor_b32 {vr(T0)}, {vr(T0)}, {vr(T5)}", [T0, T5], T0)
    V(f"v_xor_b32 {vr(T0)}, {vr(T0)}, {vr(T2)}", [T0, T2], T0)
    for p in range(2):
        if p == 1: V(f"v_xor_b32 {vr(T0)}, 4, {vr(T0)}", [T0], T0)
        V(f"v_lshlrev_b32 {vr(T5)}, 4, {vr(T0)}", [T0], T5)
        V(f"v_lshl_add_u32 {vr(T5)}, {vr(T1)}, 7, {vr(T5)}", [T1, T5], T5)
        for j in range(4):
            a.salu(f"s_xor_b32 s33, s{S_W}, {j}")
            a.salu("s_lshl_b32 s33, s33, 11")
            V(f"v_add_u32 {vr(VKA(j,p))}, s33, {vr(T5)}", [T5], VKA(j, p))
    V(f"v_lshrrev_b32 {vr(T0)}, 2, {vr(T1)}", [T1], T0)
    V(f"v_lshl_add_u32 {vr(T0)}, {vr(T2)}, 2, {vr(T0)}", [T2, T0], T0)
    V(f"v_lshlrev_b32 {vr(T0)}, 7, {vr(T0)}", [T0], T0)
    V(f"v_and_b32 {vr(T5)}, 3, {vr(T1)}", [T1], T5)
    V(f"v_lshl_add_u32 {vr(T0)}, {vr(T5)}, 3, {vr(T0)}", [T5, T0], T0)
    V(f"v_lshrrev_b32 {vr(T5)}, 3, {vr(T1)}", [T1], T5)
    V(f"v_lshl_add_u32 {vr(T5)}, {vr(T2)}, 1, {vr(T5)}", [T2, T5], T5)
    V(f"v_and_b32 {vr(T5)}, 3, {vr(T5)}", [T5], T5)
    for c in range(4):
        V(f"v_xor_b32 {vr(T3)}, {c}, {vr(T5)}", [T5], T3)
        V(f"v_lshl_add_u32 {vr(T3)}, {vr(T3)}, 5, {vr(T0)}", [T3, T0], T3)
        for j in range(4):
            a.salu(f"s_xor_b32 s33, s{S_W}, {j}")
            a.salu("s_lshl_b32 s33, s33, 11")
            a.salu(f"s_add_u32 s33, s33, {LDS_V}")
            V(f"v_add_u32 {vr(VVA(j,c))}, s33, {vr(T3)}", [T3], VVA(j, c))
    for k in range(4): V(f"v_mov_b32 {vr(VT+k)}, 0", [], VT + k)
    V(f"v_lshlrev_b32 {vr(T0)}, 4, {vr(VLANE)}", [VLANE], T0)
    V(f"v_add_u32 {vr(T0)}, s{S_M0V}, {vr(T0)}", [T0], T0)
    for j in range(4):
        a.raw(f"ds_write_b128 {vr(T0)}, {vr(VT,4)} offset:{3*16384 + 1024*j}", "ldsw", R("v", T0) | R("v", VT, 4))
    for r in range(192): a.valu(f"v_accvgpr_write_b32 {ar(r)}, 0", (), R("a", r))
    for r in range(224, 256): a.valu(f"v_accvgpr_write_b32 {ar(r)}, 0", (), R("a", r))
    for t in range(NT + 1): V(f"v_mov_b32 {vr(VL(t))}, 0", [], VL(t))
    late_exp = set()
    for n in deferred:
        if n.startswith("exp"):
            late_exp |= PROTO[n].mk(0).wr
    for t in range(NT):
        for r in range(8):
            x = SP(1, t) + r
            V(f"v_mov_b32 {vr(x)}, {f32(-1000.0) if ('v', x) in late_exp else 0}", [], x)
    emit_ts(a)
    emit_q_load_scale(a, VQOFF, nafter)
    emit_ts(a)
    a.raw(f"s_waitcnt vmcnt({nafter-4}) lgkmcnt(0)", "wait")
    a.raw("s_barrier", "barrier")
    emit_ts(a)
    for l in TEMPLATE:
        for d, n in l:
            if d == 1: emit_op(a, n, 0)
    a.salu(f"s_mov_b32 s{S_CNT}, 4")
    a.raw("s_waitcnt lgkmcnt(0)", "wait")
    pro = fix_hazards(a.L)

    b = Asm()
    for st in range(4): emit_block(b, st)
    _, q1 = insert_lgkm_waits(b.L, [])
    body, q2 = insert_lgkm_waits(b.L, q1)
    assert [i.text for i in q1] == [i.text for i in q2]
    tailctl = [I(f"s_sub_u32 s{S_CNT}, s{S_CNT}, 1", "salu"), I(f"s_cmp_lg_u32 s{S_CNT}, 0", "salu"), I("s_cbranch_scc1 L_loop", "salu")]
    if TS == 1:
        x = Asm(); emit_ts(x); tailctl = x.L + tailctl
    nbad = check_hazards(body + tailctl + body, "loop")
    assert nbad == 0

    t_ = Asm()
    for g, tag in enumerate(BM):
        if tag[0] == "PV" and tag[2] == 1: emit_mfma(t_, tag)
        for d, n in TEMPLATE[g]:
            if d == -1 and not n.startswith("dma"): emit_op(t_, n, -1)
    tail, _ = insert_lgkm_waits(t_.L, q2)

    e = Asm()
    VZ, VCHK, VRI = VT + 2, VT + 4, VT + 6
    emit_ts(e)
    e.raw("s_waitcnt vmcnt(0) lgkmcnt(0)", "wait")
    def Ve(txt, rd, wr): e.valu(txt, set().union(*[R("v", r) for r in rd]) if rd else (), R("v", wr))
    for k in range(4): Ve(f"v_mov_b32 {vr(VZ+k)}, 0", [], VZ + k)
    emit_lsum_reduce(e, [VL(t) for t in range(NT + 1)], 96)
    XB = 128
    for r in range(32):
        e.valu(f"v_accvgpr_read_b32 {vr(XB+r)}, {ar(AO(NT,0)+r)}", R("a", AO(NT, 0) + r), R("v", XB + r))
    Ve(f"v_lshlrev_b32 {vr(T0)}, 4, {vr(VLANE)}", [VLANE], T0)
    e.salu(f"s_lshl_b32 s33, s{S_W}, 13")
    e.salu(f"s_add_u32 s33, s33, {LDS_X}")
    Ve(f"v_add_u32 {vr(T1)}, s33, {vr(T0)}", [T0], T1)
    for dt in range(8):
        e.raw(f"ds_write_b128 {vr(T1)}, {vr(XB+4*dt,4)} offset:{1024*dt}", "ldsw", R("v", T1) | R("v", XB + 4 * dt, 4))
    Ve(f"v_mov_b32 {vr(T2)}, {f32(256.0)}", [], T2)
    for r in range(0, 32, 2):
        e.valu(f"v_pk_mul_f32 {vr(96+r,2)}, {vr(XB+r,2)}, {vr(T2,2)} op_sel_hi:[1,0]", R("v", XB + r, 2) | R("v", T2), R("v", 96 + r, 2))
        e.valu(f"v_pk_fma_f32 {vr(VCHK,2)}, {vr(96+r,2)}, {vr(VZ,2)}, {vr(VCHK,2)}", R("v", 96 + r, 2) | R("v", VZ, 2) | R("v", VCHK, 2), R("v", VCHK, 2))
    e.salu(f"s_mov_b64 s[{S_BAD}:{S_BAD+1}], 0")
    e.salu(f"s_mov_b32 s34, {LO_THR}")
    e.salu(f"s_mov_b32 s35, {HI_THR}")
    for t in range(NT):
        e.valu(f"v_cmp_nle_f32 vcc, s34, {vr(VL(t))}", R("v", VL(t)), R("s", 106))
        e.salu(f"s_or_b64 s[{S_BAD}:{S_BAD+1}], s[{S_BAD}:{S_BAD+1}], vcc")
        e.valu(f"v_cmp_nge_f32 vcc, s35, {vr(VL(t))}", R("v", VL(t)), R("s", 106))
        e.salu(f"s_or_b64 s[{S_BAD}:{S_BAD+1}], s[{S_BAD}:{S_BAD+1}], vcc")
    emit_store_tiles(e, VST, True)
    e.valu(f"v_cmp_u_f32 vcc, {vr(VCHK)}, {vr(VCHK+1)}", R("v", VCHK, 2), R("s", 106))
    e.salu(f"s_or_b64 s[{S_BAD}:{S_BAD+1}], s[{S_BAD}:{S_BAD+1}], vcc")
    e.salu(f"s_cmp_lg_u64 s[{S_BAD}:{S_BAD+1}], 0")
    e.salu("s_cselect_b32 s33, 1, 0")
    if opt("forceslow", 0): e.salu("s_mov_b32 s33, 1")
    Ve(f"v_mov_b32 {vr(T3)}, s33", [], T3)
    Ve(f"v_lshlrev_b32 {vr(T4)}, 3, {vr(VLANE)}", [VLANE], T4)
    Ve(f"v_add_u32 {vr(T5)}, s{S_M0K}, {vr(T4)}", [T4], T5)
    Ve(f"v_mov_b32 {vr(T2)}, {vr(VL(NT))}", [VL(NT)], T2)
    e.raw(f"ds_write_b64 {vr(T5)}, {vr(T2,2)} offset:16384", "ldsw", R("v", T5) | R("v", T2, 2))
    e.raw("s_waitcnt lgkmcnt(0)", "wait")
    emit_ts(e)
    e.raw("s_barrier", "barrier")
    emit_ts(e)
    for w in range(4):
        e.raw(f"ds_read_b64 {vr(96+2*w,2)}, {vr(T4)} offset:{16384 + 4096*w}", "lds", R("v", T4), R("v", 96 + 2 * w, 2))
    e.salu(f"s_lshl_b32 s33, s{S_W}, 11")
    e.salu(f"s_add_u32 s33, s33, {LDS_X}")
    Ve(f"v_add_u32 {vr(T1)}, s33, {vr(T0)}", [T0], T1)
    for w in range(4):
        for h in range(2):
            e.raw(f"ds_read_b128 {vr(XB+8*w+4*h,4)}, {vr(T1)} offset:{8192*w + 1024*h}", "lds", R("v", T1), R("v", XB + 8 * w + 4 * h, 4))
    e.raw("s_waitcnt lgkmcnt(0)", "wait")
    Ve(f"v_add_f32 v96, v96, v98", [96, 98], 96)
    Ve(f"v_add_f32 v100, v100, v102", [100, 102], 100)
    Ve(f"v_add_f32 v96, v96, v100", [96, 100], 96)
    Ve(f"v_or_b32 v97, v97, v99", [97, 99], 97)
    Ve(f"v_or_b32 v101, v101, v103", [101, 103], 101)
    Ve(f"v_or_b32 v97, v97, v101", [97, 101], 97)
    e.valu(f"v_cmp_ne_u32 vcc, 0, v97", R("v", 97), R("s", 106))
    e.salu(f"s_mov_b64 s[{S_BAD}:{S_BAD+1}], vcc")
    e.valu(f"v_cmp_nle_f32 vcc, s34, v96", R("v", 96), R("s", 106))
    e.salu(f"s_or_b64 s[{S_BAD}:{S_BAD+1}], s[{S_BAD}:{S_BAD+1}], vcc")
    e.valu(f"v_cmp_nge_f32 vcc, s35, v96", R("v", 96), R("s", 106))
    e.salu(f"s_or_b64 s[{S_BAD}:{S_BAD+1}], s[{S_BAD}:{S_BAD+1}], vcc")
    e.salu(f"s_cmp_lg_u64 s[{S_BAD}:{S_BAD+1}], 0")
    e.salu("s_cbranch_scc1 L_slow")
    e.raw(f"v_rcp_f32 {vr(VRI)}, v96", "trans", R("v", 96), R("v", VRI))
    for r in range(8):
        Ve(f"v_add_f32 {vr(XB+r)}, {vr(XB+r)}, {vr(XB+8+r)}", [XB + r, XB + 8 + r], XB + r)
        Ve(f"v_add_f32 {vr(XB+16+r)}, {vr(XB+16+r)}, {vr(XB+24+r)}", [XB + 16 + r, XB + 24 + r], XB + 16 + r)
    for r in range(8):
        Ve(f"v_add_f32 {vr(XB+r)}, {vr(XB+r)}, {vr(XB+16+r)}", [XB + r, XB + 16 + r], XB + r)
    emit_store_x(e, VST, XB, VRI)
    emit_ts(e)
    e.raw("s_waitcnt vmcnt(0)", "wait")
    emit_ts_store(e)
    e.label("L_end")
    e.raw("s_endpgm", "other")
    epi = fix_hazards(body[-40:] + tail + e.L)[len(fix_hazards(body[-40:])):]

    s = Asm()
    def Vs(txt, rd, wr, kind="valu"): s.raw(txt, kind, set().union(*[R("v", r) for r in rd]) if rd else (), R("v", wr))
    def VM(t): return 120 + t
    SS = 96; PP = 112; MX = 126; AL = 127; TM = 128; SUM = 129
    s.label("L_slow")
    s.raw("s_waitcnt vmcnt(0) lgkmcnt(0)", "wait")
    s.raw("s_barrier", "barrier")
    emit_q_loads(s, VQOFF)
    for r in range(192): s.valu(f"v_accvgpr_write_b32 {ar(r)}, 0", (), R("a", r))
    for t in range(NT + 1):
        Vs(f"v_mov_b32 {vr(VL(t))}, 0", [], VL(t))
        Vs(f"v_mov_b32 {vr(VM(t))}, 0xff800000", [], VM(t))
    emit_q_load_scale(s, VQOFF, 0)
    s.salu(f"s_mov_b32 s{S_KOFF}, 0")
    s.salu(f"s_mov_b32 s{S_VOFF}, 0")
    s.salu(f"s_mov_b32 s{S_CNT}, 16")
    s.label("L_slow_loop")
    s.raw("s_barrier", "barrier")
    emit_dma_block(s, "K", 0)
    emit_dma_block(s, "V", 0)
    s.raw("s_waitcnt vmcnt(0)", "wait")
    s.raw("s_barrier", "barrier")
    for t in range(NT + 1):
        for j in range(4):
            for k in range(4): s.L.append(lds_k(j, k, 0))
            s.raw("s_waitcnt lgkmcnt(0)", "wait")
            for k in range(4):
                d = SS + 4 * j
                c = "0" if k == 0 else vr(d, 4)
                i = s.raw(f"v_mfma_f32_16x16x32_bf16 {vr(d,4)}, {ar(AK(j%2,k),4)}, {vr(VQ(t,k),4)}, {c}", "mfma",
                          R("a", AK(j % 2, k), 4) | R("v", VQ(t, k), 4) | (R("v", d, 4) if k else set()), R("v", d, 4))
                i.cacc = R("v", d, 4) if k else set()
        s.nop(10)
        Vs(f"v_max3_f32 {vr(MX)}, {vr(SS)}, {vr(SS+1)}, {vr(SS+2)}", [SS, SS + 1, SS + 2], MX)
        for r in range(3, 15, 2):
            Vs(f"v_max3_f32 {vr(MX)}, {vr(MX)}, {vr(SS+r)}, {vr(SS+r+1)}", [MX, SS + r, SS + r + 1], MX)
        Vs(f"v_max_f32 {vr(MX)}, {vr(MX)}, {vr(SS+15)}", [MX, SS + 15], MX)
        for sw in ("v_permlane32_swap_b32", "v_permlane16_swap_b32"):
            Vs(f"v_mov_b32 {vr(TM)}, {vr(MX)}", [MX], TM)
            s.nop(2)
            s.valu(f"{sw} {vr(MX)}, {vr(TM)}", R("v", MX) | R("v", TM), R("v", MX) | R("v", TM))
            s.nop(2)
            Vs(f"v_max_f32 {vr(MX)}, {vr(MX)}, {vr(TM)}", [MX, TM], MX)
        Vs(f"v_max_f32 {vr(MX)}, {vr(MX)}, {vr(VM(t))}", [MX, VM(t)], MX)
        Vs(f"v_sub_f32 {vr(AL)}, {vr(VM(t))}, {vr(MX)}", [MX, VM(t)], AL)
        Vs(f"v_exp_f32 {vr(AL)}, {vr(AL)}", [AL], AL, "trans")
        Vs(f"v_mov_b32 {vr(VM(t))}, {vr(MX)}", [MX], VM(t))
        for r in range(16): Vs(f"v_sub_f32 {vr(SS+r)}, {vr(SS+r)}, {vr(MX)}", [SS + r, MX], SS + r)
        for r in range(16): Vs(f"v_exp_f32 {vr(SS+r)}, {vr(SS+r)}", [SS + r], SS + r, "trans")
        Vs(f"v_mul_f32 {vr(VL(t))}, {vr(VL(t))}, {vr(AL)}", [VL(t), AL], VL(t))
        for r in range(16): Vs(f"v_add_f32 {vr(VL(t))}, {vr(VL(t))}, {vr(SS+r)}", [VL(t), SS + r], VL(t))
        for r in range(8): Vs(f"v_cvt_pk_bf16_f32 {vr(PP+r)}, {vr(SS+2*r)}, {vr(SS+2*r+1)}", [SS + 2 * r, SS + 2 * r + 1], PP + r)
        for r in range(32):
            tm = 132 + (r % 8)
            s.valu(f"v_accvgpr_read_b32 {vr(tm)}, {ar(AO(t,0)+r)}", R("a", AO(t, 0) + r), R("v", tm))
            Vs(f"v_mul_f32 {vr(tm)}, {vr(tm)}, {vr(AL)}", [tm, AL], tm)
            s.valu(f"v_accvgpr_write_b32 {ar(AO(t,0)+r)}, {vr(tm)}", R("v", tm), R("a", AO(t, 0) + r))
        for p in range(2):
            for dt in range(8):
                for h in range(2): s.L.append(lds_v(p, dt, h, 0))
            s.raw("s_waitcnt lgkmcnt(0)", "wait")
            for dt in range(8):
                d = AO(t, dt); av = AV(dt // 4, dt % 4)
                i = s.raw(f"v_mfma_f32_16x16x32_bf16 {ar(d,4)}, {ar(av,4)}, {vr(PP+4*p,4)}, {ar(d,4)}", "mfma",
                          R("a", av, 4) | R("v", PP + 4 * p, 4) | R("a", d, 4), R("a", d, 4))
                i.cacc = R("a", d, 4)
            s.nop(4)
    s.salu(f"s_add_u32 s{S_KOFF}, s{S_KOFF}, 16384")
    s.salu(f"s_add_u32 s{S_VOFF}, s{S_VOFF}, 16384")
    s.salu(f"s_sub_u32 s{S_CNT}, s{S_CNT}, 1")
    s.salu(f"s_cmp_lg_u32 s{S_CNT}, 0")
    s.salu("s_cbranch_scc1 L_slow_loop")
    s.nop(10)
    emit_lsum_reduce(s, [VL(t) for t in range(NT + 1)], 96)
    emit_store_tiles(s, VST, False)
    for r in range(32):
        s.valu(f"v_accvgpr_read_b32 {vr(XB+r)}, {ar(AO(NT,0)+r)}", R("a", AO(NT, 0) + r), R("v", XB + r))
    Vs(f"v_lshlrev_b32 {vr(T0)}, 4, {vr(VLANE)}", [VLANE], T0)
    s.salu(f"s_lshl_b32 s33, s{S_W}, 13")
    s.salu(f"s_add_u32 s33, s33, {LDS_X}")
    Vs(f"v_add_u32 {vr(T1)}, s33, {vr(T0)}", [T0], T1)
    for dt in range(8):
        s.raw(f"ds_write_b128 {vr(T1)}, {vr(XB+4*dt,4)} offset:{1024*dt}", "ldsw", R("v", T1) | R("v", XB + 4 * dt, 4))
    s.salu(f"s_lshl_b32 s33, s{S_W}, 11")
    Vs(f"v_add_u32 {vr(T1)}, s33, {vr(T1)}", [T1], T1)
    s.raw("s_waitcnt lgkmcnt(0)", "wait")
    for h in range(2):
        s.raw(f"ds_read_b128 {vr(XB+4*h,4)}, {vr(T1)} offset:{1024*h}", "lds", R("v", T1), R("v", XB + 4 * h, 4))
    s.raw(f"v_rcp_f32 {vr(VRI)}, {vr(VL(NT))}", "trans", R("v", VL(NT)), R("v", VRI))
    s.raw("s_waitcnt lgkmcnt(0)", "wait")
    emit_store_x(s, VST, XB, VRI)
    s.raw("s_waitcnt vmcnt(0)", "wait")
    s.raw("s_endpgm", "other")
    slow = fix_hazards(s.L)

    lines = []
    ref = open("standalone__gqa_softmax__near_ridge.s.ref").read().splitlines()
    for l in ref:
        if l.startswith("; @launch"): break
        lines.append(l)
    lines.append("; @launch grid=(256,1,1) block=(256,1,1) lds=163840")
    lines.append('.amdgcn_target "amdgcn-amd-amdhsa--gfx950"')
    lines.append(".text")
    lines.append(f".globl {KNAME}")
    lines.append(".p2align 8")
    lines.append(f".type {KNAME},@function")
    lines.append(f"{KNAME}:")
    def dump(L):
        for i in L: lines.append(i.text if i.kind == "label" else "    " + i.text)
    dump(pro)
    lines.append(".p2align 6")
    lines.append("L_loop:")
    dump(body); dump(tailctl); dump(epi); dump(slow)
    lines.append('.section .rodata,"a"')
    lines.append(".p2align 6")
    lines.append(f".amdhsa_kernel {KNAME}")
    lines.append("  .amdhsa_next_free_vgpr 512")
    lines.append("  .amdhsa_next_free_sgpr 64")
    lines.append("  .amdhsa_accum_offset 256")
    lines.append("  .amdhsa_group_segment_fixed_size 0")
    lines.append("  .amdhsa_kernarg_size 48")
    lines.append("  .amdhsa_user_sgpr_count 2")
    lines.append("  .amdhsa_user_sgpr_kernarg_segment_ptr 1")
    lines.append("  .amdhsa_system_sgpr_workgroup_id_x 1")
    lines.append(".end_amdhsa_kernel")
    open(OUT, "w").write("\n".join(lines) + "\n")
    print("written", OUT, "prologue", len(pro), "body", len(body), "tail+epi", len(epi), "slow", len(slow))

if __name__ == "__main__":
    if "stats" in OPTS:
        print(stats())
        for g, l in enumerate(TEMPLATE): print(g, BM[g], l)
    else:
        build()
```

```python
import struct, sys, math

KNAME = "standalone__gqa_softmax__near_ridge_kernel"
OUT = sys.argv[1] if len(sys.argv) > 1 else "standalone__gqa_softmax__near_ridge.s"
OPTS = dict(a.split("=") for a in sys.argv[2:])
def opt(name, default):
    return type(default)(OPTS.get(name, default))

STF = {"": "", "sc1": " sc1", "nt": " nt", "sc01": " sc0 sc1", "sc1nt": " sc1 nt"}[opt("stf", "")]
QF = " nt" if opt("qnt", 1) else ""
KVF = " nt" if opt("kvnt", 1) else ""
def f32(x): return "0x%08x" % struct.unpack("<I", struct.pack("<f", x))[0]
SCALE = math.log2(math.e) / math.sqrt(128.0)

NT = 5
def VQ(t, s): return 16 * t + 4 * s
def SP(p, t): return 96 + 40 * p + 8 * t
SX = 176
def VL(t): return 180 + t
def VKA(j, p): return 186 + 2 * j + p
def VVA(j, c): return 194 + 4 * j + c
def VDK(j): return 210 + j
def VDV(j): return 214 + j
VLANE = 218
PX = 220
VZ = 224
VCHK = 228
VQOFF = 232
VST = 233
VXW = 234
VXR = 235
VT = 236
VTS0, VTS1, VTS2 = 219, 254, 255
def AO(t, dt): return 32 * t + 4 * dt
def AK(b, s): return 192 + 16 * b + 4 * s
def AV(b, i): return 224 + 16 * b + 4 * i
S_Q, S_K, S_V, S_O = 4, 8, 12, 16
S_W = 20; S_KOFF = 21; S_VOFF = 22; S_CNT = 23; S_M0K = 24; S_M0V = 25; S_PIECE = 26
S_C = 28
S_BAD = 30
S_T = 32
S_LO, S_HI = 54, 55
def S_ROW(t): return 56 + t
LDS_V = 65536
LDS_X = 131072

STAG = tuple(int(c) for c in opt("stag", "001120"))
SMAX = max(STAG); S = 16 + SMAX; RF = SMAX + 1
assert min(STAG[:NT]) == 0

def vr(n, k=1): return f"v{n}" if k == 1 else f"v[{n}:{n+k-1}]"
def ar(n, k=1): return f"a{n}" if k == 1 else f"a[{n}:{n+k-1}]"
def R(kind, n, k=1): return {(kind, n + i) for i in range(k)}
def RV(*regs): return set().union(*[R("v", r) for r in regs]) if regs else set()

class I:
    def __init__(s, text, kind, rd=(), wr=(), **kw):
        s.text, s.kind, s.rd, s.wr = text, kind, set(rd), set(wr)
        s.__dict__.update(kw)
    def __repr__(s): return s.text

class Asm:
    def __init__(s): s.L = []
    def raw(s, text, kind="other", rd=(), wr=(), **kw):
        s.L.append(I(text, kind, rd, wr, **kw)); return s.L[-1]
    def label(s, name): s.L.append(I(name + ":", "label"))
    def nop(s, n):
        while n > 0:
            k = min(n, 16); s.raw(f"s_nop {k-1}", "nop"); s.L[-1].ws = k; n -= k
    def salu(s, text): return s.raw(text, "salu")
    def valu(s, text, rd=(), wr=()): return s.raw(text, "valu", rd, wr)
    def V(s, txt, rd, wr, kind="valu"): return s.raw(txt, kind, RV(*rd), RV(wr) if wr is not None else ())

def mfma_qk(t, j, s):
    d = SX if t == NT else SP(j // 2, t) + 4 * (j % 2)
    a = AK(j % 2, s); b = VQ(t, s)
    c = "0" if s == 0 else vr(d, 4)
    rd = R("a", a, 4) | R("v", b, 4) | (R("v", d, 4) if s else set())
    return I(f"v_mfma_f32_16x16x32_bf16 {vr(d,4)}, {ar(a,4)}, {vr(b,4)}, {c}", "mfma", rd, R("v", d, 4),
             cacc=R("v", d, 4) if s else set())
def mfma_pv(t, p, dt, first=False):
    d = AO(t, dt); a = AV(dt // 4, dt % 4)
    b = PX if t == NT else SP(p, t)
    c = "0" if first else ar(d, 4)
    return I(f"v_mfma_f32_16x16x32_bf16 {ar(d,4)}, {ar(a,4)}, {vr(b,4)}, {c}", "mfma",
             R("a", a, 4) | R("v", b, 4) | (set() if first else R("a", d, 4)), R("a", d, 4),
             cacc=set() if first else R("a", d, 4))
def lds_k(j, s, stage):
    d = AK(j % 2, s)
    return I(f"ds_read_b128 {ar(d,4)}, {vr(VKA(j, s % 2))} offset:{stage*16384 + (s//2)*8192}", "lds",
             R("v", VKA(j, s % 2)), R("a", d, 4), grp=("k", j, stage))
def lds_v(p, dt, h, stage):
    d = AV(dt // 4, dt % 4) + 2 * h
    j = 2 * p + h
    g = opt("vgrp", 4)
    return I(f"ds_read_b64_tr_b16 {ar(d,2)}, {vr(VVA(j, dt % 4))} offset:{stage*16384 + (dt//4)*8192}", "lds",
             R("v", VVA(j, dt % 4)), R("a", d, 2), grp=("v", p, dt // g, stage))
def v_exp(r): return I(f"v_exp_f32 {vr(r)}, {vr(r)}", "trans", R("v", r), R("v", r))
def v_addl(t, r): return I(f"v_add_f32 {vr(VL(t))}, {vr(VL(t))}, {vr(r)}", "valu", R("v", r) | R("v", VL(t)), R("v", VL(t)))
def v_cvt(d, a, b): return I(f"v_cvt_pk_bf16_f32 {vr(d)}, {vr(a)}, {vr(b)}", "valu", R("v", a) | R("v", b), R("v", d))
def dma(which, j, tag=None):
    if which == "K":
        return I(f"buffer_load_dwordx4 {vr(VDK(j))}, s[{S_K}:{S_K+3}], s{S_KOFF} offen offset:{1024*j}{KVF} lds", "dma", R("v", VDK(j)), tag=tag)
    return I(f"buffer_load_dwordx4 {vr(VDV(j))}, s[{S_V}:{S_V+3}], s{S_VOFF} offen offset:{1024*j}{KVF} lds", "dma", R("v", VDV(j)), tag=tag)
def q_load(t, s):
    return I(f"buffer_load_dwordx4 {vr(VQ(t,s),4)}, {vr(VQOFF)}, s[{S_Q}:{S_Q+3}], s{S_ROW(t)} offen offset:{64*s}{QF}", "vmem",
             R("v", VQOFF), R("v", VQ(t, s), 4), isload=True)
def Vi(txt, rd, wr, kind="valu"): return I(txt, kind, RV(*rd), RV(*wr) if isinstance(wr, (list, tuple)) else RV(wr))

def step_spine(sg, act):
    M = []
    def Q(j):
        for t in range(NT):
            if act(t, sg):
                for s in range(4): M.append(("QK", t, j, s, sg))
        if j == 0 and act(NT, sg):
            for s in range(4): M.append(("QK", NT, 0, s, sg))
    def P(p, half, s2):
        for dt in range(4 * half, 4 * half + 4):
            for t in range(NT):
                if act(t, s2): M.append(("PV", t, p, dt, s2))
            if p == 0 and act(NT, s2): M.append(("PV", NT, 0, dt, s2))
    Q(0); P(1, 0, sg - 1); Q(1); P(1, 1, sg - 1); Q(2); P(0, 0, sg); Q(3); P(0, 1, sg)
    return M

class Op:
    count = 0
    def __init__(s, name, step, mk, cls, E, D, preds=(), seq=None, Emin=None):
        s.name, s.step, s.mk, s.cls, s.E, s.D, s.preds = name, step, mk, cls, E, D, list(preds)
        s.gap = None
        Op.count += 1
        s.seq = Op.count if seq is None else seq
        s.Emin = E if Emin is None else Emin

EXP_LAG = opt("explag", 4)
LDS_LEAD = opt("ldslead", 9)

class Program:
    def __init__(P, s0, s1, act):
        P.act, P.s0, P.s1 = act, s0, s1
        P.spine = []; P.base = {}
        for sg in range(s0, s1 + 1):
            P.base[sg] = len(P.spine); P.spine += step_spine(sg, act)
        P.base[s1 + 1] = len(P.spine)
        P.pos = {tag: i for i, tag in enumerate(P.spine)}
        P.first = {}; P.last = {}
        for i, (k, t, x, y, sg) in enumerate(P.spine):
            for key in ((k, x, y, sg), (k, x, sg), (k, x, y // 4, "h", sg)):
                P.first.setdefault(key, i); P.last[key] = i
        P.kready = {}; P.vready = {}
    def has(P, sg): return ("QK", 0, sg) in P.first
    def barpos(P, sg):
        if sg < getattr(P, "latebar", 0): return P.base[sg + 1] - 1 - opt("latebarshift", 0)
        return P.first[("QK", 3, 3, sg)] + opt("barshift", 0)
    def ops(P, sg):
        act, pos = P.act, P.pos
        ops = []
        BIG = 10 ** 6
        for t in range(NT + 1):
            if not act(t, sg): continue
            for j in range(4 if t < NT else 1):
                p = j // 2
                r0 = SX if t == NT else SP(p, t) + 4 * (j % 2)
                mend = pos[("QK", t, j, 3, sg)]
                cons = pos.get(("PV", t, p, 0, sg), BIG)
                dc = cons - 3
                exps = [Op(f"exp{t}{j}{k}", sg, lambda st, r=r0 + k: v_exp(r), "exp", mend + EXP_LAG, dc - 4, Emin=mend) for k in range(4)]
                adds = [Op(f"add{t}{j}{k}", sg, lambda st, r=r0 + k, t=t: v_addl(t, r), "plain", 0, dc - 2, [exps[k]]) for k in range(4)]
                dst = PX if t == NT else SP(p, t) + 2 * (j % 2)
                c0 = Op(f"cvt{t}{j}0", sg, lambda st, d=dst, r=r0: v_cvt(d, r, r + 1), "plain", 0, dc - 1, adds[0:2])
                c1 = Op(f"cvt{t}{j}1", sg, lambda st, d=dst + 1, r=r0: v_cvt(d, r + 2, r + 3), "plain", 0, dc, adds[2:4] + [c0])
                if j % 2 == 1:
                    prev = [o for o in ops if o.name == f"cvt{t}{j-1}1"][0]
                    c0.preds.append(prev); c1.preds.append(prev)
                for o in exps + adds + [c0, c1]: o.hardD = cons - 1
                for k, o in enumerate(exps + adds + [c0, c1]): o.seq = mend * 100 + k
                ops += exps + adds + [c0, c1]
        kr = P.kready.get(sg, P.barpos(sg - 1) + 1 if P.has(sg - 1) else -1)
        vrdy = P.vready.get(sg, P.barpos(sg - 1) + 1 if P.has(sg - 1) else -1)
        for j in range(4):
            fu = P.first[("QK", j, sg)]
            for s in range(4):
                if j >= 2: E = P.last[("QK", j - 2, s, sg)]
                else: E = P.last.get(("QK", j + 2, s, sg - 1), -1)
                E = max(E, kr)
                o = Op(f"ldk{j}{s}", sg, lambda st, j=j, s=s: lds_k(j, s, st), "mem", E, fu - LDS_LEAD - 3 + s)
                o.hardD = fu - 1; ops.append(o)
        g = opt("vgrp", 4)
        for p in range(2):
            for dt in range(8):
                if ("PV", p, dt, sg) not in P.first: continue
                fu = P.first[("PV", p, dt - dt % g, sg)]
                if p == 0: E = P.last.get(("PV", 1, dt, sg - 1), -1)
                else: E = P.last[("PV", 0, dt, sg)]
                E = max(E, vrdy)
                for h in range(2):
                    o = Op(f"ldv{p}{dt}{h}", sg, lambda st, p=p, dt=dt, h=h: lds_v(p, dt, h, st), "mem", E,
                           fu - LDS_LEAD - 2 * (g - 1 - dt % g) - 1 + h)
                    o.hardD = P.first[("PV", p, dt, sg)] - 1; ops.append(o)
        return ops
    def dma_ops(P, sg):
        ops = []; prev = None
        E = P.barpos(sg) + 1
        seq = [("m0V",), ("V", 0), ("V", 1), ("V", 2), ("V", 3), ("m0K",), ("K", 0), ("K", 1), ("K", 2), ("K", 3), ("adv",)]
        sp = opt("dmaspread", 5)
        for n, it in enumerate(seq):
            cls = "free"
            if it[0] == "m0V":
                mk = lambda st: I(f"s_add_u32 m0, s{S_M0V}, {((st + 3) % 4) * 16384}", "salu_m0", pre="V")
            elif it[0] == "m0K":
                mk = lambda st: I(f"s_add_u32 m0, s{S_M0K}, {(st % 4) * 16384}", "salu_m0", pre="K")
            elif it[0] == "adv":
                mk = lambda st: [I(f"s_add_u32 s{S_KOFF}, s{S_KOFF}, 16384", "salu"), I(f"s_add_u32 s{S_VOFF}, s{S_VOFF}, 16384", "salu"),
                                 I(f"s_bitset0_b32 s{S_KOFF}, 18", "salu"), I(f"s_bitset0_b32 s{S_VOFF}, 18", "salu")]
            else:
                mk = lambda st, it=it: dma(it[0], it[1]); cls = "mem"
            o = Op(f"dma{n}", sg, mk, cls, E + sp * n, E + sp * n + 8, [prev] if prev else [])
            o.blk = (it[0][-1], sg + (3 if it[0][-1] == "V" else 4))
            ops.append(o); prev = o
        return ops

def schedule(ops, g0, g1, flush=False):
    gaps = {}
    LW = opt("ldswin", 28)
    PANIC = opt("panic", 14)
    pend = sorted(ops, key=lambda o: (o.D, o.seq))
    for g in range(g0, g1):
        last = flush and g == g1 - 1
        def ready(o): return o.E <= g and all(p.gap is not None and p.gap < g for p in o.preds)
        cand = [o for o in pend if ready(o)]
        placed = [o for o in cand if o.cls == "free"]
        mem = [o for o in cand if o.cls == "mem"]
        exps = sorted([o for o in cand if o.cls == "exp"], key=lambda o: o.seq)
        plain = sorted([o for o in cand if o.cls == "plain"], key=lambda o: o.seq)
        low = sorted([o for o in cand if o.cls == "low"], key=lambda o: o.seq)
        soft = [o for o in pend if o.cls in ("exp", "plain") and o.E <= g + 200]
        slack = min([o.D - g for o in soft], default=999)
        forced = [o for o in mem if o.D <= g]
        due = [o for o in mem if g >= o.D - LW and o not in forced]
        used = 0
        if forced:
            placed += forced; used += 4 * len(forced)
        elif due and plain:
            placed.append(due[0]); used += 4
        if used:
            if plain and used < 8: placed.append(plain.pop(0)); used += 4
        elif len(plain) >= opt("backlog", 3) or (plain and not exps):
            placed += plain[:2]; used += 4 * len(plain[:2]); plain = plain[2:]
        elif exps:
            placed.append(exps.pop(0)); used += 8
        elif due:
            placed.append(due[0]); used += 4
        if slack < PANIC and plain:
            placed.append(plain.pop(0)); used += 4
        for o in exps + plain:
            if o.D <= g and o not in placed: placed.append(o)
        for o in low:
            if used < 8 or o.D <= g: placed.append(o); used += 4
        order = {"free": 0, "mem": 1, "exp": 2, "plain": 3, "low": 3}
        placed.sort(key=lambda o: order[o.cls])
        for o in placed:
            o.gap = g; pend.remove(o)
        again = True
        while again:
            again = False
            need = set()
            def mark(o):
                if o.gap is None and id(o) not in need:
                    need.add(id(o))
                    for p in o.preds: mark(p)
            for o in pend:
                if last or getattr(o, "hardD", 10 ** 9) <= g: mark(o)
            for o in sorted(pend, key=lambda o: (o.D, o.seq)):
                if id(o) in need and all(p.gap is not None for p in o.preds):
                    assert o.Emin <= g or last, f"cannot meet hard deadline {o.name} step {o.step} g {g} Emin {o.Emin}"
                    o.gap = g; placed.append(o); pend.remove(o); again = True
                    break
        gaps[g] = placed
    return gaps, pend

def build_template():
    P = Program(0, 10, lambda t, sg: True)
    NBk = P.base[1] - P.base[0]
    allops = []
    for b in range(1, 10): allops += P.ops(b) + P.dma_ops(b)
    gaps, pend = schedule(allops, 0, P.base[10])
    def rel(b): return [[(o.step - b, o.name) for o in gaps[P.base[b] + g]] for g in range(NBk)]
    assert rel(5) == rel(6) == rel(7), "schedule not periodic"
    return rel(6), NBk, [tag[:4] + (tag[4] - 1,) for tag in P.spine[P.base[1]:P.base[2]]], P.barpos(1) - P.base[1]
TEMPLATE, NB, BM, BAR_POS = build_template()
TWHERE = {name: (d, g) for g, l in enumerate(TEMPLATE) for d, name in l}

def emit_mfma(a, tag):
    k, t, x, y, sg = tag
    if k == "QK": a.L.append(mfma_qk(t, x, y))
    else: a.L.append(mfma_pv(t, x, y, first=(x == 0 and sg == STAG[t])))
def emit_op(a, o, tagdma=True):
    r = o.mk(o.step % 4)
    for i in (r if isinstance(r, list) else [r]):
        if i.kind == "dma" and getattr(i, "tag", None) is None: i.tag = o.blk
        a.L.append(i)

def insert_lgkm_waits(L, carry_in=None):
    out = []
    q = list(carry_in or [])
    for i in L:
        if i.kind == "wait" and "lgkmcnt(0)" in i.text: q = []
        need = -1
        touched = i.rd | i.wr
        for k, o in enumerate(q):
            if o.wr & touched: need = k
        if getattr(i, "needlds", False): need = len(q) - 1
        if need >= 0:
            gr = getattr(q[need], "grp", None)
            if gr is not None:
                for k, o in enumerate(q):
                    if getattr(o, "grp", None) == gr: need = max(need, k)
            n = min(14, len(q) - 1 - need)
            out.append(I(f"s_waitcnt lgkmcnt({n})", "wait"))
            q = q[len(q) - n:] if n else []
        out.append(i)
        if i.kind in ("lds", "ldsw"): q.append(i)
    return out, q

def insert_vm_waits(L, carry_in=None):
    out = []
    q = list(carry_in or [])
    issued = {}
    for i in L:
        if i.kind == "dma": issued[i.tag] = issued.get(i.tag, 0) + 1
        if carry_in is None and getattr(i, "needs", None) is not None:
            for tg in i.needs: assert issued.get(tg, 0) == 4, f"{tg} not issued before its barrier"
        if i.kind == "wait" and "vmcnt(" in i.text:
            n = int(i.text.split("vmcnt(")[1].split(")")[0]); q = q[len(q) - n:] if n < len(q) else q
            if n == 0: q = []
        need = -1
        touched = i.rd | i.wr
        for k, o in enumerate(q):
            if getattr(o, "isload", False) and (o.wr & touched): need = k
            nd = getattr(i, "needs", None)
            if nd is not None and o.kind == "dma" and (nd == "all" or o.tag in nd): need = k
        if need >= 0:
            n = min(62, len(q) - 1 - need)
            out.append(I(f"s_waitcnt vmcnt({n})", "wait"))
            q = q[len(q) - n:] if n else []
        out.append(i)
        if i.kind in ("dma", "vmem"): q.append(i)
    return out, q

def hazard_need(p, c):
    need = 0
    if p.kind == "mfma":
        if c.kind in ("valu", "trans", "lds", "dma", "vmem", "ldsw") and (p.wr & (c.rd | c.wr)): need = 8
        if c.kind == "mfma":
            cacc = getattr(c, "cacc", set())
            if p.wr & (c.rd - cacc): need = 8
            elif (p.wr & cacc) and p.wr != cacc: need = 6
        if c.kind in ("valu", "trans") and (c.wr & getattr(p, "cacc", set())): need = max(need, 3)
    elif p.kind in ("valu", "trans"):
        if c.kind == "mfma" and (p.wr & c.rd): need = 2
        if p.kind == "trans" and c.kind in ("valu", "vmem", "ldsw") and (p.wr & c.rd): need = 1
        if "permlane" in c.text and (p.wr & (c.rd | c.wr)): need = 2
        if "readfirstlane" in c.text and (p.wr & c.rd): need = 1
        if any(k == "s" for k, _ in (p.wr & c.rd)):
            need = max(need, 5 if c.kind in ("vmem", "dma") else 2 if c.kind in ("valu", "trans") else 0)
    elif p.kind == "salu_m0":
        if c.kind == "dma": need = 1
    elif p.kind in ("vmem", "ldsw") and ("store" in p.text or "write" in p.text):
        if c.kind in ("valu", "trans") and (c.wr & p.rd): need = 2
    return need
def ws(i): return getattr(i, "ws", 1)
def fix_hazards(L, ctx=(), report=None):
    out = list(ctx); n0 = len(out)
    for c in L:
        if c.kind != "label":
            extra = 0; dist = 0
            for p in reversed(out):
                if p.kind == "label": continue
                e = hazard_need(p, c) - dist
                if e > extra: extra = e; who = p
                dist += ws(p)
                if dist >= 10: break
            if extra > 0:
                if report: print(f"HAZARD[{report}]: {who.text} -> {c.text} short by {extra}")
                n = I(f"s_nop {extra-1}", "nop"); n.ws = extra; out.append(n)
        out.append(c)
    return out[n0:]

TS = opt("ts", 0)
DBG = opt("dbg", 0)
def emit_ts(a):
    if not TS: return
    a.raw("s_memtime s[50:51]", "smem")
    a.raw("s_memrealtime s[52:53]", "smem")
    a.raw("s_waitcnt lgkmcnt(0)", "wait")
    a.salu("s_lshl_b64 exec, 1, s48")
    a.raw(f"v_mov_b32 v{VTS0}, s50", "valu", (), R("v", VTS0))
    a.raw(f"v_mov_b32 v{VTS1}, s52", "valu", (), R("v", VTS1))
    a.salu("s_mov_b64 exec, -1")
    a.salu("s_add_u32 s48, s48, 1")
def emit_ts_store(a):
    if not TS: return
    emit_ts(a)
    a.raw("s_waitcnt vmcnt(0)", "wait")
    emit_ts(a)
    a.salu(f"s_lshl_b32 s49, s2, 2")
    a.salu(f"s_add_u32 s49, s49, s{S_W}")
    if DBG:
        a.salu(f"s_cmp_eq_u32 s49, {opt('dbgwave', 0)}")
        a.salu(f"s_cselect_b32 s49, 0, 16")
    a.salu(f"s_lshl_b32 s49, s49, 9")
    if DBG:
        a.valu(f"v_readfirstlane_b32 s50, v{VTS1}", R("v", VTS1), R("s", 50))
        a.nop(2)
        a.valu(f"v_subrev_u32 v{VTS0}, s50, v{VTS1}", R("v", VTS1), R("v", VTS0))
    a.valu(f"v_lshlrev_b32 v{VTS2}, 2, v{VLANE}", R("v", VLANE), R("v", VTS2))
    a.nop(2)
    a.raw(f"buffer_store_dword v{VTS0}, v{VTS2}, s[44:47], s49 offen", "vmem", R("v", VTS0) | R("v", VTS2))
    a.raw(f"buffer_store_dword v{VTS1}, v{VTS2}, s[44:47], s49 offen offset:256", "vmem", R("v", VTS1) | R("v", VTS2))
    a.raw("s_waitcnt vmcnt(0)", "wait")

def scale_tile_pk(a, t, tmp0, hook=None):
    for r in range(16):
        q = VQ(t, 0) + r
        tmp = tmp0 + 2 * (r % 4)
        a.V(f"v_lshlrev_b32 {vr(tmp)}, 16, {vr(q)}", [q], tmp)
        a.V(f"v_and_b32 {vr(tmp+1)}, 0xffff0000, {vr(q)}", [q], tmp + 1)
        a.valu(f"v_pk_mul_f32 {vr(tmp,2)}, {vr(tmp,2)}, s[{S_C}:{S_C+1}]", R("v", tmp, 2), R("v", tmp, 2))
        a.V(f"v_cvt_pk_bf16_f32 {vr(q)}, {vr(tmp)}, {vr(tmp+1)}", [tmp, tmp + 1], q)
        if hook: hook(r)

def scale_ops(t, E, D):
    ops = []; n = 80; k = 0
    tmp0 = (VT if t == NT else SP(0, t))
    lastc = {}
    def mk(name, txt, rd, wr, preds):
        nonlocal k
        d = E + (D - E) * (k + 1) // n
        o = Op(name, STAG[t] - 1, lambda st: Vi(txt, rd, wr), "low", E, d, preds); o.hardD = D + 2; k += 1
        ops.append(o); return o
    for r in range(16):
        q = VQ(t, 0) + r; tmp = tmp0 + 2 * (r % 4)
        pr = [lastc[r - 4]] if r >= 4 else []
        lo = mk(f"qs{t}{r}a", f"v_lshlrev_b32 {vr(tmp)}, 16, {vr(q)}", [q], tmp, pr)
        hi = mk(f"qs{t}{r}b", f"v_and_b32 {vr(tmp+1)}, 0xffff0000, {vr(q)}", [q], tmp + 1, pr)
        m0 = mk(f"qs{t}{r}c", f"v_mul_f32 {vr(tmp)}, s{S_C}, {vr(tmp)}", [tmp], tmp, [lo])
        m1 = mk(f"qs{t}{r}d", f"v_mul_f32 {vr(tmp+1)}, s{S_C}, {vr(tmp+1)}", [tmp + 1], tmp + 1, [hi])
        lastc[r] = mk(f"qs{t}{r}e", f"v_cvt_pk_bf16_f32 {vr(q)}, {vr(tmp)}, {vr(tmp+1)}", [tmp, tmp + 1], q, [m0, m1])
    return ops

def chk_mfma(pk):
    return I(f"v_mfma_f32_16x16x32_bf16 {vr(VCHK,4)}, {vr(VZ,4)}, {vr(pk,4)}, {vr(VCHK,4)}", "mfma",
             R("v", VZ, 4) | R("v", pk, 4) | R("v", VCHK, 4), R("v", VCHK, 4), cacc=R("v", VCHK, 4))
def range_check(l):
    return [I(f"v_cmp_nle_f32 vcc, s{S_LO}, {vr(l)}", "valu", R("v", l), R("s", 106)),
            I(f"s_or_b64 s[{S_BAD}:{S_BAD+1}], s[{S_BAD}:{S_BAD+1}], vcc", "salu"),
            I(f"v_cmp_nge_f32 vcc, s{S_HI}, {vr(l)}", "valu", R("v", l), R("s", 106)),
            I(f"s_or_b64 s[{S_BAD}:{S_BAD+1}], s[{S_BAD}:{S_BAD+1}], vcc", "salu")]

class Chain:
    def __init__(c, step, E, rate):
        c.step, c.E, c.rate, c.k, c.ops = step, E, rate, 0, []
    def add(c, ins, preds=(), E=None, cls="low"):
        e = max(c.E, E if E is not None else c.E)
        d = max(e, c.E + int(c.k / c.rate))
        o = Op(f"ep{len(c.ops)}", c.step, (lambda st, ins=ins: ins), cls, e, d, [p for p in preds if p is not None])
        c.k += 1; c.ops.append(o); return o

def lreduce_ops(c, l, tmp, preds):
    prev = preds
    for sw in ("v_permlane32_swap_b32", "v_permlane16_swap_b32"):
        m = c.add(Vi(f"v_mov_b32 {vr(tmp)}, {vr(l)}", [l], tmp), prev)
        s_ = c.add(I(f"{sw} {vr(l)}, {vr(tmp)}", "valu", RV(l, tmp), RV(l, tmp)), [m])
        prev = [c.add(Vi(f"v_add_f32 {vr(l)}, {vr(l)}, {vr(tmp)}", [l, tmp], l), [s_])]
    return prev[0]

def finish_chunk(c, buf, rinv, rc, preds, srow, off, pk_ok=False):
    if pk_ok:
        mul = []
        for r in range(0, 8, 2):
            o = c.add(I(f"v_pk_mul_f32 {vr(buf+r,2)}, {vr(buf+r,2)}, {vr(rinv,2)} op_sel_hi:[1,0]", "valu",
                        R("v", buf + r, 2) | R("v", rinv), R("v", buf + r, 2)), [preds[r], preds[r + 1], rc])
            mul += [o, o]
    else:
        mul = [c.add(Vi(f"v_mul_f32 {vr(buf+r)}, {vr(rinv)}, {vr(buf+r)}", [rinv, buf + r], buf + r), [preds[r], rc]) for r in range(8)]
    cv = []
    for k in range(4):
        cv.append(c.add(v_cvt(buf + k, buf + 2 * k, buf + 2 * k + 1), [mul[2 * k], mul[2 * k + 1]] + cv[-1:]))
    sw = [c.add(I(f"v_permlane16_swap_b32 {vr(buf+k)}, {vr(buf+2+k)}", "valu", RV(buf + k, buf + 2 + k), RV(buf + k, buf + 2 + k)), [cv[3]]) for k in range(2)]
    st = c.add(I(f"buffer_store_dwordx4 {vr(buf,4)}, {vr(VST)}, s[{S_O}:{S_O+3}], s{srow} offen offset:{off}{STF}", "vmem",
                 R("v", buf, 4) | R("v", VST)), sw)
    ck = c.add(chk_mfma(buf), sw)
    return [st, ck]

LO_THR = f32(2.0 ** -24)
HI_THR = f32(2.0 ** 64)

def build():
    act = lambda t, sg: 0 <= sg - STAG[t] < 16
    P = Program(0, S, act)
    P.latebar = min(opt("kbarlate", 2), RF - 1)
    for sg in range(P.latebar): P.kready[sg + 1] = P.barpos(sg)
    bars = {}
    for sg in range(S):
        bars[P.barpos(sg)] = {("K", sg + 1), ("V", sg + 1)}
    NVB = opt("nvbar", 3)
    for sg in range(min(NVB, RF)):
        g = P.first[("QK", opt("vbarphase", 2), sg)] + opt("vbarshift", 0)
        bars[g] = {("V", sg)}; P.vready[sg] = g + 1
        if sg > 0: bars[P.barpos(sg - 1)].discard(("V", sg))
    bars[P.barpos(S - 1)] = "all"
    allops = {}
    for sg in range(S):
        allops[sg] = P.ops(sg) + P.dma_ops(sg)
    free1, free2 = [], []
    for sg in range(S):
        for o in allops[sg]:
            d, g = TWHERE[o.name]
            x = sg - d
            if RF <= x <= 15:
                o.gap = P.base[x] + g
            elif o.name.startswith("dma"):
                if x < RF: free1.append(o)
                elif o.blk[1] < S and o.name != "dma10": free2.append(o)
            elif sg < RF or (x < RF): free1.append(o)
            else: free2.append(o)
    END1 = P.base[RF]
    a = Asm()
    T0, T1, T2, T3, T4, T5 = [VT + 8 + k for k in range(6)]
    a.salu("s_cmp_ge_u32 s2, 256")
    a.salu("s_cbranch_scc1 L_end")
    a.raw("s_load_dwordx8 s[36:43], s[0:1], 0", "smem")
    if opt("cpf", 1):
        a.salu("s_getpc_b64 s[62:63]")
        a.label("L_pc")
        a.V(f"v_lshlrev_b32 {vr(VT+6)}, 7, v0", [0], VT + 6)
        a.V(f"v_add_u32 {vr(VT+7)}, 32768, {vr(VT+6)}", [VT + 6], VT + 7)
        a.V(f"v_min_u32 {vr(VT+6)}, L_end-L_pc, {vr(VT+6)}", [VT + 6], VT + 6)
        a.V(f"v_min_u32 {vr(VT+7)}, L_end-L_pc, {vr(VT+7)}", [VT + 7], VT + 7)
    def cpf():
        for k in range(opt("cpfn", 1)):
            a.raw(f"global_load_dword {vr(VT+16+k)}, {vr(VT+6+k)}, s[62:63]", "vmem", RV(VT + 6 + k), RV(VT + 16 + k), isload=True)
    if opt("cpf", 1) == 1: cpf()
    if TS:
        a.raw(f"s_load_dwordx2 s[44:45], s[0:1], {32 if DBG else 40}", "smem")
        a.salu("s_mov_b32 s48, 0")
        a.valu(f"v_mov_b32 v{VTS0}, 0", (), R("v", VTS0))
        a.valu(f"v_mov_b32 v{VTS1}, 0", (), R("v", VTS1))
        emit_ts(a)
        a.salu("s_and_b32 s45, s45, 0xffff")
        a.salu(f"s_mov_b32 s46, {256 if DBG else 0x80000}")
        a.salu("s_mov_b32 s47, 0x00020000")
    V = a.V
    V(f"v_and_b32 {vr(VLANE)}, 63, v0", [0], VLANE)
    V(f"v_lshrrev_b32 {vr(T0)}, 6, v0", [0], T0)
    V(f"v_and_b32 {vr(T1)}, 15, v0", [0], T1)
    a.valu(f"v_readfirstlane_b32 s{S_W}, {vr(T0)}", R("v", T0), R("s", S_W))
    V(f"v_lshrrev_b32 {vr(T2)}, 4, {vr(VLANE)}", [VLANE], T2)
    V(f"v_lshrrev_b32 {vr(T3)}, 3, {vr(VLANE)}", [VLANE], T3)
    V(f"v_and_b32 {vr(T4)}, 7, {vr(VLANE)}", [VLANE], T4)
    a.salu("s_and_b32 s32, s2, 7")
    a.salu("s_lshr_b32 s33, s2, 4")
    a.salu("s_lshl_b32 s33, s33, 3")
    a.salu("s_add_u32 s32, s32, s33")
    a.salu("s_lshr_b32 s33, s2, 3")
    a.salu("s_and_b32 s33, s33, 1")
    a.salu("s_lshl_b32 s34, s32, 1")
    a.salu("s_add_u32 s34, s34, s33")
    a.salu("s_mul_i32 s35, s34, 86016")
    a.salu("s_lshl_b32 s33, s32, 18")
    a.salu(f"s_mul_i32 s{S_ROW(0)}, s{S_W}, 20480")
    for t in range(1, NT): a.salu(f"s_add_u32 s{S_ROW(t)}, s{S_ROW(0)}, {t*4096}")
    a.salu(f"s_mov_b32 s{S_ROW(NT)}, 81920")
    a.salu(f"s_and_b32 s{S_PIECE}, s{S_W}, 1")
    a.salu(f"s_lshl_b32 s{S_PIECE}, s{S_PIECE}, 13")
    a.salu(f"s_lshr_b32 s34, s{S_W}, 1")
    a.salu("s_lshl_b32 s34, s34, 7")
    a.salu(f"s_add_u32 s{S_PIECE}, s{S_PIECE}, s34")
    a.salu(f"s_lshl_b32 s{S_M0K}, s{S_W}, 12")
    a.salu(f"s_add_u32 s{S_M0V}, s{S_M0K}, {LDS_V}")
    V(f"v_lshlrev_b32 {vr(VST)}, 8, {vr(T1)}", [T1], VST)
    V(f"v_lshl_add_u32 {vr(VQOFF)}, {vr(T2)}, 4, {vr(VST)}", [T2, VST], VQOFF)
    V(f"v_lshrrev_b32 {vr(T5)}, 1, {vr(T2)}", [T2], T5)
    V(f"v_xor_b32 {vr(T0)}, {vr(T2)}, {vr(T5)}", [T2, T5], T0)
    for par in range(2):
        if par == 1: V(f"v_xor_b32 {vr(T0)}, 5, {vr(T0)}", [T0], T0)
        V(f"v_xor_b32 {vr(VDK(par))}, {vr(T4)}, {vr(T0)}", [T4, T0], VDK(par))
        V(f"v_lshlrev_b32 {vr(VDK(par))}, 4, {vr(VDK(par))}", [VDK(par)], VDK(par))
        V(f"v_lshl_add_u32 {vr(VDK(par))}, {vr(T3)}, 8, {vr(VDK(par))}", [T3, VDK(par)], VDK(par))
        V(f"v_add_u32 {vr(VDK(par))}, s{S_PIECE}, {vr(VDK(par))}", [VDK(par)], VDK(par))
    V(f"v_add_u32 {vr(VDK(2))}, 2048, {vr(VDK(0))}", [VDK(0)], VDK(2))
    V(f"v_add_u32 {vr(VDK(3))}, 3072, {vr(VDK(1))}", [VDK(1)], VDK(3))
    V(f"v_add_u32 {vr(VDK(1))}, 1024, {vr(VDK(1))}", [VDK(1)], VDK(1))
    V(f"v_lshrrev_b32 {vr(T0)}, 1, {vr(T4)}", [T4], T0)
    V(f"v_xor_b32 {vr(T0)}, {vr(T0)}, {vr(T2)}", [T0, T2], T0)
    V(f"v_lshlrev_b32 {vr(T0)}, 5, {vr(T0)}", [T0], T0)
    V(f"v_and_b32 {vr(T5)}, 1, {vr(VLANE)}", [VLANE], T5)
    V(f"v_lshl_add_u32 {vr(T0)}, {vr(T5)}, 4, {vr(T0)}", [T5, T0], T0)
    V(f"v_lshl_add_u32 {vr(T0)}, {vr(T3)}, 8, {vr(T0)}", [T3, T0], T0)
    V(f"v_add_u32 {vr(VDV(0))}, s{S_PIECE}, {vr(T0)}", [T0], VDV(0))
    for j in range(1, 4): V(f"v_add_u32 {vr(VDV(j))}, {1024*j}, {vr(VDV(0))}", [VDV(0)], VDV(j))
    a.raw("s_waitcnt lgkmcnt(0)", "wait")
    def srd(d, lo, off, size):
        a.salu(f"s_add_u32 s{d}, s{lo}, s{off}")
        a.salu(f"s_addc_u32 s{d+1}, s{lo+1}, 0")
        a.salu(f"s_and_b32 s{d+1}, s{d+1}, 0xffff")
        a.salu(f"s_mov_b32 s{d+2}, {size}")
        a.salu(f"s_mov_b32 s{d+3}, 0x00020000")
    srd(S_K, 38, 33, 262144)
    srd(S_Q, 36, 35, 86016)
    srd(S_V, 40, 33, 262144)
    srd(S_O, 42, 35, 86016)
    order = opt("order", "K0,Q0,Q5,Q1,V0,K1,Q2,Q3,V1,K2,Q4,V2,K3").split(",")
    assert sorted(order) == sorted(["K0", "K1", "K2", "K3", "V0", "V1", "V2"] + [f"Q{t}" for t in range(6)])
    def load_instrs(item):
        k, n = item[0], int(item[1])
        if k == "Q": return [q_load(n, s) for s in range(4)]
        so, base = (S_KOFF, S_M0K) if k == "K" else (S_VOFF, S_M0V)
        L = [dma(k, j, tag=(k, n)) for j in range(4)]
        return [[I(f"s_mov_b32 s{so}, {n*16384}", "salu"), I(f"s_add_u32 m0, s{base}, {n*16384}", "salu_m0"), L[0]]] + L[1:]
    loadq = [x for item in order for x in load_instrs(item)]
    allloads = list(loadq)
    def core(x): return x[-1] if isinstance(x, list) else x
    nissued = [0]
    def issue(n):
        for _ in range(n):
            if loadq:
                x = loadq.pop(0); nissued[0] += 1
                a.L += x if isinstance(x, list) else [x]
    WIN = opt("win", 12)
    issue(opt("npre", 12))
    if opt("cpf", 1) == 2: cpf()
    a.salu(f"s_mov_b32 s{S_C}, {f32(SCALE)}")
    a.salu(f"s_mov_b32 s{S_C+1}, {f32(SCALE)}")
    a.salu(f"s_mov_b64 s[{S_BAD}:{S_BAD+1}], 0")
    a.salu(f"s_mov_b32 s{S_LO}, {LO_THR}")
    a.salu(f"s_mov_b32 s{S_HI}, {HI_THR}")
    V(f"v_and_b32 {vr(T0)}, 1, {vr(T2)}", [T2], T0)
    V(f"v_lshl_add_u32 {vr(VST)}, {vr(T0)}, 5, {vr(VST)}", [T0, VST], VST)
    V(f"v_lshrrev_b32 {vr(T0)}, 1, {vr(T2)}", [T2], T0)
    V(f"v_lshl_add_u32 {vr(VST)}, {vr(T0)}, 4, {vr(VST)}", [T0, VST], VST)
    V(f"v_lshrrev_b32 {vr(T0)}, 1, {vr(T1)}", [T1], T0)
    V(f"v_lshrrev_b32 {vr(T5)}, 1, {vr(T0)}", [T0], T5)
    V(f"v_lshrrev_b32 {vr(T3)}, 2, {vr(T0)}", [T0], T3)
    V(f"v_xor_b32 {vr(T5)}, {vr(T5)}, {vr(T3)}", [T5, T3], T5)
    V(f"v_and_b32 {vr(T5)}, 1, {vr(T5)}", [T5], T5)
    V(f"v_xor_b32 {vr(T0)}, {vr(T0)}, {vr(T5)}", [T0, T5], T0)
    V(f"v_xor_b32 {vr(T0)}, {vr(T0)}, {vr(T2)}", [T0, T2], T0)
    for j in range(4):
        a.salu(f"s_xor_b32 s{32+j}, s{S_W}, {j}")
        a.salu(f"s_lshl_b32 s{32+j}, s{32+j}, 11")
    for p in range(2):
        if p == 1: V(f"v_xor_b32 {vr(T0)}, 4, {vr(T0)}", [T0], T0)
        V(f"v_lshlrev_b32 {vr(T5)}, 4, {vr(T0)}", [T0], T5)
        V(f"v_lshl_add_u32 {vr(T5)}, {vr(T1)}, 7, {vr(T5)}", [T1, T5], T5)
        for j in range(4): V(f"v_add_u32 {vr(VKA(j,p))}, s{32+j}, {vr(T5)}", [T5], VKA(j, p))
    V(f"v_lshrrev_b32 {vr(T0)}, 2, {vr(T1)}", [T1], T0)
    V(f"v_lshl_add_u32 {vr(T0)}, {vr(T2)}, 2, {vr(T0)}", [T2, T0], T0)
    V(f"v_lshlrev_b32 {vr(T0)}, 7, {vr(T0)}", [T0], T0)
    V(f"v_and_b32 {vr(T5)}, 3, {vr(T1)}", [T1], T5)
    V(f"v_lshl_add_u32 {vr(T0)}, {vr(T5)}, 3, {vr(T0)}", [T5, T0], T0)
    V(f"v_add_u32 {vr(T0)}, {LDS_V}, {vr(T0)}", [T0], T0)
    V(f"v_lshrrev_b32 {vr(T5)}, 3, {vr(T1)}", [T1], T5)
    V(f"v_lshl_add_u32 {vr(T5)}, {vr(T2)}, 1, {vr(T5)}", [T2, T5], T5)
    V(f"v_and_b32 {vr(T5)}, 3, {vr(T5)}", [T5], T5)
    for c in range(4):
        V(f"v_xor_b32 {vr(T3)}, {c}, {vr(T5)}", [T5], T3)
        V(f"v_lshl_add_u32 {vr(T3)}, {vr(T3)}, 5, {vr(T0)}", [T3, T0], T3)
        for j in range(4): V(f"v_add_u32 {vr(VVA(j,c))}, s{32+j}, {vr(T3)}", [T3], VVA(j, c))
    a.salu(f"s_lshl_b32 s32, s{S_W}, 13")
    a.salu(f"s_add_u32 s32, s32, {LDS_X}")
    a.salu(f"s_lshl_b32 s33, s{S_W}, 11")
    a.salu(f"s_add_u32 s33, s33, {LDS_X}")
    V(f"v_lshlrev_b32 {vr(T0)}, 4, {vr(VLANE)}", [VLANE], T0)
    V(f"v_add_u32 {vr(VXW)}, s32, {vr(T0)}", [T0], VXW)
    V(f"v_add_u32 {vr(VXR)}, s33, {vr(T0)}", [T0], VXR)
    V(f"v_lshlrev_b32 {vr(VT+14)}, 2, {vr(VLANE)}", [VLANE], VT + 14)
    V(f"v_add_u32 {vr(VT+15)}, s{S_M0K}, {vr(VT+14)}", [VT + 14], VT + 15)
    for r in list(range(PX + 2, PX + 4)) + list(range(VZ, VZ + 4)) + list(range(VCHK, VCHK + 4)) + [VL(t) for t in range(NT + 1)]:
        V(f"v_mov_b32 {vr(r)}, 0", [], r)
    emit_ts(a)
    first_tiles = [int(x[1]) for x in order if x[0] == "Q" and STAG[int(x[1])] == 0]
    for t in first_tiles: scale_tile_pk(a, t, VT)
    emit_ts(a)
    a.raw("s_barrier", "barrier", needs={("K", 0)})
    emit_ts(a)
    sops = []
    for t in range(NT + 1):
        if STAG[t] > 0:
            D = P.pos[("QK", t, 0, 0, STAG[t])] - 3
            sops += scale_ops(t, max(0, D - opt("qswin", 25)), D)
    reg1 = {(o.step, o.name) for o in free1 if o.name.startswith("dma")}
    free1 = [o for o in free1 if not o.name.startswith("dma")]
    after = [-1] * len(allloads)
    for sg in range(RF):
        for k, n0, blk in (("V", 0, sg + 3), ("K", 5, sg + 4)):
            so, base = (S_KOFF, S_M0K) if k == "K" else (S_VOFF, S_M0V)
            pre = [I(f"s_mov_b32 s{so}, {(blk % 16)*16384}", "salu"), I(f"s_add_u32 m0, s{base}, {(blk % 4)*16384}", "salu_m0")]
            assert (sg, f"dma{n0 + 1}") in reg1, "first dma of a group deferred: not supported"
            for j in range(4):
                if (sg, f"dma{n0 + 1 + j}") in reg1:
                    d = dma(k, j, tag=(k, blk))
                    allloads.append(pre + [d] if j == 0 else d); after.append(sg)
    adv_in_r1 = (RF - 1, "dma10") in reg1
    gaps1, pend = schedule(free1 + sops, -1, END1, flush=True)
    assert not pend
    def emit_region(x, gaps, g0, g1):
        for g in range(g0, g1):
            if g >= 0 and g < len(P.spine):
                if TS and g in P.base.values() and g > 0: emit_ts(x)
                emit_mfma(x, P.spine[g])
            if g in bars:
                x.raw("s_barrier", "barrier", needs=bars[g], needlds=(g in ldsbars), barstep=barstep.get(g, -1))
            for o in gaps.get(g, []): emit_op(x, o)
    ldsbars = set()
    barstep = {P.barpos(sg): sg for sg in range(S)}
    emit_region(a, gaps1, -1, END1)
    a.raw("s_nop 0", "nop", forceall=True)
    if adv_in_r1: a.L += [o for o in allops[RF - 1] if o.name == "dma10"][0].mk(0)
    niter = (16 - RF + 3) // 4
    a.salu(f"s_mov_b32 s{S_CNT}, {niter}")
    emit_ts(a)
    a.raw("s_waitcnt lgkmcnt(0)", "wait")
    if RF % 4: a.salu(f"s_branch L_blk{RF % 4}")
    L2 = []; n = nissued[0]; started = False; passed = -1; maxneed = -1; cnt = 0
    lastq = max(k for k, x in enumerate(allloads) if core(x).kind != "dma")
    cores = {id(core(x)) for x in allloads}
    def put(tgt):
        nonlocal n
        while n < min(tgt, len(allloads)) and after[n] <= passed:
            x = allloads[n]; L2.extend(x if isinstance(x, list) else [x]); n += 1
    for i in a.L:
        need = -1
        if i is core(allloads[0]): started = True
        if started and id(i) not in cores:
            for k, x in enumerate(allloads):
                c = core(x)
                if c.kind == "dma":
                    nd = getattr(i, "needs", None)
                    if nd is not None and c.tag in nd: need = k
                elif c.wr & (i.rd | i.wr): need = k
            maxneed = max(maxneed, need)
            if getattr(i, "forceall", False):
                print("loads flushed at end of region 1:", len(allloads) - n); put(len(allloads)); continue
            if need >= 0: put(need + WIN + 1)
        L2.append(i)
        passed = max(passed, getattr(i, "barstep", -1))
        if i.kind == "mfma" and maxneed >= lastq - opt("qslack", 0):
            cnt += 1
            if cnt % opt("lrate", 4) == 0: put(n + 1)
    assert n == len(allloads)
    r1, _ = insert_lgkm_waits(L2)
    r1, vq1 = insert_vm_waits(r1)
    r1 = fix_hazards(r1)

    PF = Program(0, 2, lambda t, sg: True)
    PROTO = {o.name: o for o in PF.ops(1) + PF.dma_ops(1)}
    blocks = []
    for st in range(4):
        b = Asm()
        for g, tag in enumerate(BM):
            k, t, x, y, _ = tag
            b.L.append(mfma_qk(t, x, y) if k == "QK" else mfma_pv(t, x, y))
            if g == BAR_POS:
                b.raw("s_waitcnt vmcnt(12)", "wait")
                b.raw("s_barrier", "barrier", loopbar=True)
            for d, name in TEMPLATE[g]:
                r = PROTO[name].mk((st + d) % 4)
                for i in (r if isinstance(r, list) else [r]):
                    if i.kind == "dma": i.rel = (PROTO[name].blk[0], PROTO[name].blk[1] - 1 + d)
                    if i.kind == "salu_m0":
                        which = i.pre; ahead = 3 if which == "V" else 4
                        if (12 + st + d) + ahead == S and 12 + st + d <= 15 + 1:
                            sr = (S_V if which == "V" else S_K) + 2
                            b.salu(f"s_cmp_eq_u32 s{S_CNT}, {1 if st + d >= 0 else 1}")
                            b.salu(f"s_cselect_b32 s{sr}, 0, s{sr}")
                            assert st + d >= 0
                    b.L.append(i)
        blocks.append(b.L)
    flat = [i for bl in blocks for i in bl]
    marks = {id(bl[0]): k for k, bl in enumerate(blocks)}
    _, q1 = insert_lgkm_waits(flat, [])
    body, q2 = insert_lgkm_waits(flat, q1)
    assert [i.text for i in q1] == [i.text for i in q2]
    body2 = []
    for i in body:
        if id(i) in marks and marks[id(i)] > 0:
            lab = I(f"L_blk{marks[id(i)]}:", "label")
            if body2[-1].kind == "wait" and "lgkm" in body2[-1].text: body2.insert(len(body2) - 1, lab)
            else: body2.append(lab)
        body2.append(i)
    body = body2
    abl = opt("abl", "").split(",")
    tailctl = [I(f"s_sub_u32 s{S_CNT}, s{S_CNT}, 1", "salu"), I(f"s_cmp_lg_u32 s{S_CNT}, 0", "salu"), I("s_cbranch_scc1 L_loop", "salu")]
    if TS:
        x = Asm(); emit_ts(x); tailctl = x.L + tailctl
    chk = fix_hazards(body + tailctl + body, report="loop")
    assert len(chk) == len(body) * 2 + len(tailctl), "hazards in loop"
    q = list(vq1)
    for sg in range(RF, 16):
        for i in blocks[sg % 4]:
            if i.kind == "dma": q.append(I("", "dma", tag=(i.rel[0], sg + i.rel[1])))
            if getattr(i, "loopbar", False):
                q = q[-12:]
                badtags = {o.tag for o in q if o.kind == "dma"} & {("K", sg + 1), ("V", sg + 1)}
                assert not badtags, f"vmcnt(12) insufficient at step {sg}: {badtags}"
                assert not any(getattr(o, "isload", False) for o in q)
    vq2 = q

    start2 = P.base[16]; end2 = len(P.spine)
    opbyname = {(o.step, o.name): o for sg in allops for o in allops[sg]}
    eops = []
    rate = opt("eprate", 2.0)
    lastgap = end2 - 1
    for t in range(NT):
        sl = STAG[t] + 15
        E0 = max(start2, P.pos[("PV", t, 0, 7, sl)] + 1)
        c = Chain(sl, E0, rate)
        tmp = SP(0, t)
        adds = [opbyname[(sl, f"add{t}{j}{k}")] for j in range(4) for k in range(4)]
        lr = lreduce_ops(c, VL(t), tmp, adds)
        rc = c.add(I(f"v_rcp_f32 {vr(tmp+2)}, {vr(VL(t))}", "trans", R("v", VL(t)), R("v", tmp + 2)), [lr])
        c.add(range_check(VL(t)), [lr])
        done = {}
        for m in range(4):
            buf = VQ(t, 0) + 8 * (m % 2)
            Em = P.pos[("PV", t, 1, 2 * m + 1, sl)]
            exposed = Em + 4 >= lastgap
            c.E = max(c.E, min(Em + 4, lastgap)); c.k = 0
            rd = [c.add(I(f"v_accvgpr_read_b32 {vr(buf+r)}, {ar(AO(t,2*m)+r)}", "valu", R("a", AO(t, 2 * m) + r), R("v", buf + r)),
                        done.get(m - 2, [])) for r in range(8)]
            done[m] = finish_chunk(c, buf, tmp + 2, rc, rd, S_ROW(t), 64 * m, pk_ok=exposed)
        eops += c.ops
    slx = STAG[NT] + 15
    xq = VQ(NT, 0)
    E0 = max(start2, P.pos[("PV", NT, 0, 7, slx)] + 4)
    xbar_step = slx + 1
    extra_bar = False
    assert xbar_step + 1 <= S - 1 and S - 4 <= slx
    xbar = P.barpos(xbar_step)
    c = Chain(slx, min(E0, lastgap), max(rate, 60.0 / max(1, xbar - E0 - 6)))
    adds = [opbyname[(slx, f"add{NT}0{k}")] for k in range(4)]
    lr = lreduce_ops(c, VL(NT), SX, adds)
    LXO = (S % 4) * 16384
    wl = c.add(I(f"ds_write_b32 {vr(VT+15)}, {vr(VL(NT))} offset:{LXO}", "ldsw", RV(VT + 15, VL(NT)), needs={("K", S)}), [lr])
    wr = {}
    for dt in range(8):
        buf = xq + 4 * (dt % 4)
        rd = [c.add(I(f"v_accvgpr_read_b32 {vr(buf+r)}, {ar(AO(NT,dt)+r)}", "valu", R("a", AO(NT, dt) + r), R("v", buf + r)),
                    [wr.get(dt - 4)]) for r in range(4)]
        wr[dt] = c.add(I(f"ds_write_b128 {vr(VXW)}, {vr(buf,4)} offset:{1024*dt}", "ldsw", R("v", VXW) | R("v", buf, 4)), rd)
    for o in c.ops: o.hardD = xbar - 1 if not extra_bar else 10 ** 9
    xops1 = c.ops
    def xcombine(c):
        lp = [c.add(I(f"ds_read_b32 {vr(SX+w)}, {vr(VT+14)} offset:{LXO + 4096*w}", "lds", RV(VT + 14), RV(SX + w))) for w in range(4)]
        r0 = [c.add(I(f"ds_read_b128 {vr(xq+4*w,4)}, {vr(VXR)} offset:{8192*w}", "lds", RV(VXR), R("v", xq + 4 * w, 4))) for w in range(4)]
        c.E += 6; c.k = 0
        s1 = c.add(Vi(f"v_add_f32 {vr(SX)}, {vr(SX)}, {vr(SX+1)}", [SX, SX + 1], SX), lp)
        s2 = c.add(Vi(f"v_add_f32 {vr(SX+2)}, {vr(SX+2)}, {vr(SX+3)}", [SX + 2, SX + 3], SX + 2), lp)
        s3 = c.add(Vi(f"v_add_f32 {vr(VL(NT))}, {vr(SX)}, {vr(SX+2)}", [SX, SX + 2], VL(NT)), [s1, s2])
        rc = c.add(I(f"v_rcp_f32 {vr(PX)}, {vr(VL(NT))}", "trans", RV(VL(NT)), RV(PX)), [s3])
        c.add(range_check(VL(NT)), [s3])
        def sum4(b0, b1, b2, b3, pr):
            res = []
            for r in range(4):
                x = c.add(Vi(f"v_add_f32 {vr(b0+r)}, {vr(b0+r)}, {vr(b1+r)}", [b0 + r, b1 + r], b0 + r), pr)
                y = c.add(Vi(f"v_add_f32 {vr(b2+r)}, {vr(b2+r)}, {vr(b3+r)}", [b2 + r, b3 + r], b2 + r), pr)
                res.append(c.add(Vi(f"v_add_f32 {vr(b0+r)}, {vr(b0+r)}, {vr(b2+r)}", [b0 + r, b2 + r], b0 + r), [x, y]))
            return res
        h0 = sum4(xq, xq + 4, xq + 8, xq + 12, r0)
        bufs = [xq + 4, xq + 8, xq + 12, SX]
        r1_ = [c.add(I(f"ds_read_b128 {vr(bufs[w],4)}, {vr(VXR)} offset:{8192*w + 1024}", "lds", RV(VXR), R("v", bufs[w], 4)), h0 + [s3]) for w in range(4)]
        c.E += int(c.k / c.rate) + 6; c.k = 0
        h1 = sum4(bufs[0], bufs[1], bufs[2], bufs[3], r1_)
        so = c.add([I(f"s_lshl_b32 s{S_T}, s{S_W}, 6", "salu"), I(f"s_add_u32 s{S_T}, s{S_T}, 81920", "salu")], cls="free")
        rc.extra = so
        finish_chunk(c, xq, PX, rc, h0 + h1, S_T, 0)
        return so
    e = Asm()
    if not extra_bar:
        c2 = Chain(slx, xbar + 1, rate); xcombine(c2); xops2 = c2.ops
        ldsbars.add(xbar); ldsbars.add(P.barpos(xbar_step + 1))
        for o in xops2:
            x = o.mk(0)
            if not isinstance(x, list) and x.kind == "lds": o.hardD = P.barpos(xbar_step + 1) - 1
    else:
        xops2 = []
    gaps2, pend = schedule(free2 + eops + xops1 + xops2, start2, end2 + 1, flush=True)
    assert not pend
    emit_region(e, gaps2, start2, end2 + 1)
    if extra_bar:
        e.raw("s_barrier", "barrier", needlds=True)
        c2 = Chain(slx, 0, rate); xcombine(c2)
        g3, pend = schedule(c2.ops, 0, 1, flush=True)
        for o in g3[0]: emit_op(e, o)
    e.valu(f"v_cmp_u_f32 vcc, {vr(VCHK)}, {vr(VCHK+1)}", R("v", VCHK, 2), R("s", 106))
    e.salu(f"s_or_b64 s[{S_BAD}:{S_BAD+1}], s[{S_BAD}:{S_BAD+1}], vcc")
    e.salu(f"s_cmp_lg_u64 s[{S_BAD}:{S_BAD+1}], 0")
    if opt("forceslow", 0) == 1: e.salu("s_cmp_eq_u32 s2, s2")
    if opt("forceslow", 0) == 2: e.salu(f"s_cmp_eq_u32 s{S_W}, 2")
    e.salu("s_cbranch_scc1 L_slow")
    emit_ts_store(e)
    e.label("L_end")
    e.raw("s_endpgm", "other")
    r2, _ = insert_lgkm_waits(e.L, q2)
    r2, _ = insert_vm_waits(r2, vq2)
    r2 = fix_hazards(r2, ctx=body[-30:] + tailctl)
    return P, r1, body, tailctl, r2, extra_bar

def build_slow(extra_bar):
    s = Asm()
    Vs = s.V
    def VM(t): return 164 + t
    SS = 96; MX = 160; AL = 161; TM = 162
    def PP(t): return 112 + 8 * t
    s.label("L_slow")
    s.raw("s_waitcnt vmcnt(0) lgkmcnt(0)", "wait")
    s.salu(f"s_mov_b32 s{S_K+2}, 262144")
    s.salu(f"s_mov_b32 s{S_V+2}, 262144")
    for t in range(NT + 1):
        for k in range(4): s.L.append(q_load(t, k))
    for r in range(192): s.valu(f"v_accvgpr_write_b32 {ar(r)}, 0", (), R("a", r))
    for t in range(NT + 1):
        Vs(f"v_mov_b32 {vr(VL(t))}, 0", [], VL(t))
        Vs(f"v_mov_b32 {vr(VM(t))}, 0xff800000", [], VM(t))
    s.salu(f"s_lshl_b32 s{S_M0K}, s{S_W}, 14")
    s.salu(f"s_sub_u32 s32, s{S_M0K}, {LDS_V}")
    for j in range(4):
        Vs(f"v_subrev_u32 {vr(VDK(j))}, s{S_PIECE}, {vr(VDK(j))}", [VDK(j)], VDK(j))
        Vs(f"v_subrev_u32 {vr(VDV(j))}, s{S_PIECE}, {vr(VDV(j))}", [VDV(j)], VDV(j))
        for p in range(2): Vs(f"v_add_u32 {vr(VKA(j,p))}, s{S_M0K}, {vr(VKA(j,p))}", [VKA(j, p)], VKA(j, p))
        for c in range(4): Vs(f"v_add_u32 {vr(VVA(j,c))}, s32, {vr(VVA(j,c))}", [VVA(j, c)], VVA(j, c))
    s.raw("s_waitcnt vmcnt(0)", "wait")
    for t in range(NT + 1): scale_tile_pk(s, t, VT)
    s.salu("s_mov_b32 s33, 0")
    s.salu(f"s_mov_b32 s{S_CNT}, 16")
    s.label("L_slow_loop")
    def fill(which):
        so = S_KOFF if which == "K" else S_VOFF
        for pc in range(4):
            s.salu(f"s_add_u32 s{so}, s33, {(pc & 1) * 8192 + (pc >> 1) * 128}")
            s.raw(f"s_add_u32 m0, s{S_M0K}, {4096*pc}", "salu_m0")
            s.nop(1)
            for j in range(4): s.L.append(dma(which, j))
        s.raw("s_waitcnt vmcnt(0)", "wait")
    fill("K")
    def KF(j, k): return 192 + 16 * j + 4 * k
    for j in range(4):
        for k in range(4):
            s.raw(f"ds_read_b128 {ar(KF(j,k),4)}, {vr(VKA(j, k % 2))} offset:{(k//2)*8192}", "lds", R("v", VKA(j, k % 2)), R("a", KF(j, k), 4))
        s.raw("s_waitcnt lgkmcnt(0)", "wait")
    fill("V")
    for t in range(NT + 1):
        for j in range(4):
            for k in range(4):
                d = SS + 4 * j
                c = "0" if k == 0 else vr(d, 4)
                s.raw(f"v_mfma_f32_16x16x32_bf16 {vr(d,4)}, {ar(KF(j,k),4)}, {vr(VQ(t,k),4)}, {c}", "mfma",
                      R("a", KF(j, k), 4) | R("v", VQ(t, k), 4) | (R("v", d, 4) if k else set()), R("v", d, 4),
                      cacc=R("v", d, 4) if k else set())
        s.nop(10)
        Vs(f"v_max3_f32 {vr(MX)}, {vr(SS)}, {vr(SS+1)}, {vr(SS+2)}", [SS, SS + 1, SS + 2], MX)
        for r in range(3, 15, 2):
            Vs(f"v_max3_f32 {vr(MX)}, {vr(MX)}, {vr(SS+r)}, {vr(SS+r+1)}", [MX, SS + r, SS + r + 1], MX)
        Vs(f"v_max_f32 {vr(MX)}, {vr(MX)}, {vr(SS+15)}", [MX, SS + 15], MX)
        for sw in ("v_permlane32_swap_b32", "v_permlane16_swap_b32"):
            Vs(f"v_mov_b32 {vr(TM)}, {vr(MX)}", [MX], TM)
            s.nop(2)
            s.valu(f"{sw} {vr(MX)}, {vr(TM)}", RV(MX, TM), RV(MX, TM))
            s.nop(2)
            Vs(f"v_max_f32 {vr(MX)}, {vr(MX)}, {vr(TM)}", [MX, TM], MX)
        Vs(f"v_max_f32 {vr(MX)}, {vr(MX)}, {vr(VM(t))}", [MX, VM(t)], MX)
        Vs(f"v_sub_f32 {vr(AL)}, {vr(VM(t))}, {vr(MX)}", [MX, VM(t)], AL)
        Vs(f"v_exp_f32 {vr(AL)}, {vr(AL)}", [AL], AL, "trans")
        Vs(f"v_mov_b32 {vr(VM(t))}, {vr(MX)}", [MX], VM(t))
        for r in range(16): Vs(f"v_sub_f32 {vr(SS+r)}, {vr(SS+r)}, {vr(MX)}", [SS + r, MX], SS + r)
        for r in range(16): Vs(f"v_exp_f32 {vr(SS+r)}, {vr(SS+r)}", [SS + r], SS + r, "trans")
        Vs(f"v_mul_f32 {vr(VL(t))}, {vr(VL(t))}, {vr(AL)}", [VL(t), AL], VL(t))
        for r in range(16): Vs(f"v_add_f32 {vr(VL(t))}, {vr(VL(t))}, {vr(SS+r)}", [VL(t), SS + r], VL(t))
        for r in range(8): Vs(f"v_cvt_pk_bf16_f32 {vr(PP(t)+r)}, {vr(SS+2*r)}, {vr(SS+2*r+1)}", [SS + 2 * r, SS + 2 * r + 1], PP(t) + r)
        for r in range(32):
            tm = VT + (r % 8)
            s.valu(f"v_accvgpr_read_b32 {vr(tm)}, {ar(AO(t,0)+r)}", R("a", AO(t, 0) + r), R("v", tm))
            Vs(f"v_mul_f32 {vr(tm)}, {vr(tm)}, {vr(AL)}", [tm, AL], tm)
            s.valu(f"v_accvgpr_write_b32 {ar(AO(t,0)+r)}, {vr(tm)}", R("v", tm), R("a", AO(t, 0) + r))
    s.nop(10)
    def VF(p, dt): return 192 + 32 * p + 4 * dt
    for p in range(2):
        for dt in range(8):
            for h in range(2):
                j = 2 * p + h
                s.raw(f"ds_read_b64_tr_b16 {ar(VF(p,dt)+2*h,2)}, {vr(VVA(j, dt % 4))} offset:{(dt//4)*8192}", "lds",
                      R("v", VVA(j, dt % 4)), R("a", VF(p, dt) + 2 * h, 2))
            if dt % 4 == 3: s.raw("s_waitcnt lgkmcnt(0)", "wait")
    for t in range(NT + 1):
        for p in range(2):
            for dt in range(8):
                d = AO(t, dt)
                s.raw(f"v_mfma_f32_16x16x32_bf16 {ar(d,4)}, {ar(VF(p,dt),4)}, {vr(PP(t)+4*p,4)}, {ar(d,4)}", "mfma",
                      R("a", VF(p, dt), 4) | R("v", PP(t) + 4 * p, 4) | R("a", d, 4), R("a", d, 4), cacc=R("a", d, 4))
    s.nop(10)
    s.salu("s_add_u32 s33, s33, 16384")
    s.salu(f"s_sub_u32 s{S_CNT}, s{S_CNT}, 1")
    s.salu(f"s_cmp_lg_u32 s{S_CNT}, 0")
    s.salu("s_cbranch_scc1 L_slow_loop")
    for t in range(NT + 1):
        c = Chain(0, 0, 1.0)
        lr = lreduce_ops(c, VL(t), TM, [])
        rc = c.add(I(f"v_rcp_f32 {vr(MX)}, {vr(VL(t))}", "trans", RV(VL(t)), RV(MX)), [lr])
        if t < NT:
            for m in range(4):
                buf = 8 * m
                rd = [c.add(I(f"v_accvgpr_read_b32 {vr(buf+r)}, {ar(AO(t,2*m)+r)}", "valu", R("a", AO(t, 2 * m) + r), R("v", buf + r))) for r in range(8)]
                finish_chunk(c, buf, MX, rc, rd, S_ROW(t), 64 * m)
            for o in c.ops: emit_op(s, o)
            s.raw("s_waitcnt vmcnt(0)", "wait")
        else:
            for o in c.ops: emit_op(s, o)
            for r in range(32):
                s.valu(f"v_accvgpr_read_b32 {vr(r)}, {ar(AO(NT,0)+r)}", R("a", AO(NT, 0) + r), R("v", r))
            Vs(f"v_lshlrev_b32 {vr(TM)}, 4, {vr(VLANE)}", [VLANE], TM)
            Vs(f"v_add_u32 {vr(TM)}, s{S_M0K}, {vr(TM)}", [TM], TM)
            for dt in range(8):
                s.raw(f"ds_write_b128 {vr(TM)}, {vr(4*dt,4)} offset:{1024*dt}", "ldsw", RV(TM) | R("v", 4 * dt, 4))
            s.salu(f"s_lshl_b32 s33, s{S_W}, 11")
            Vs(f"v_add_u32 {vr(AL)}, s33, {vr(TM)}", [TM], AL)
            s.raw("s_waitcnt lgkmcnt(0)", "wait")
            for h in range(2):
                s.raw(f"ds_read_b128 {vr(32+4*h,4)}, {vr(AL)} offset:{1024*h}", "lds", RV(AL), R("v", 32 + 4 * h, 4))
            s.raw("s_waitcnt lgkmcnt(0)", "wait")
            s.salu(f"s_lshl_b32 s{S_T}, s{S_W}, 6")
            s.salu(f"s_add_u32 s{S_T}, s{S_T}, 81920")
            c = Chain(0, 0, 1.0)
            finish_chunk(c, 32, MX, None, [None] * 8, S_T, 0)
            for o in c.ops: emit_op(s, o)
    s.raw("s_waitcnt vmcnt(0)", "wait")
    s.raw("s_endpgm", "other")
    return fix_hazards(s.L)

def main():
    P, r1, body, tailctl, r2, extra_bar = build()
    slow = build_slow(extra_bar)
    lines = []
    ref = open("standalone__gqa_softmax__near_ridge.s.ref").read().splitlines()
    for l in ref:
        if l.startswith("; @launch"): break
        lines.append(l)
    lines.append("; @launch grid=(256,1,1) block=(256,1,1) lds=163840")
    lines.append('.amdgcn_target "amdgcn-amd-amdhsa--gfx950"')
    lines.append(".text")
    lines.append(f".globl {KNAME}")
    lines.append(".p2align 8")
    lines.append(f".type {KNAME},@function")
    lines.append(f"{KNAME}:")
    def dump(L):
        for i in L: lines.append(i.text if i.kind == "label" else "    " + i.text)
    dump(r1)
    lines.append(".p2align 6")
    lines.append("L_loop:")
    dump(body); dump(tailctl); dump(r2); dump(slow)
    lines.append('.section .rodata,"a"')
    lines.append(".p2align 6")
    lines.append(f".amdhsa_kernel {KNAME}")
    lines.append("  .amdhsa_next_free_vgpr 512")
    lines.append("  .amdhsa_next_free_sgpr 64")
    lines.append("  .amdhsa_accum_offset 256")
    lines.append("  .amdhsa_group_segment_fixed_size 0")
    lines.append("  .amdhsa_kernarg_size 48")
    lines.append("  .amdhsa_user_sgpr_count 2")
    lines.append("  .amdhsa_user_sgpr_kernarg_segment_ptr 1")
    lines.append("  .amdhsa_system_sgpr_workgroup_id_x 1")
    lines.append(".end_amdhsa_kernel")
    open(OUT, "w").write("\n".join(lines) + "\n")
    nn = lambda L: sum(1 for i in L if i.kind == "nop")
    print("written", OUT, "r1", len(r1), f"(nops {nn(r1)})", "body", len(body), "waits", sum(1 for i in body if i.kind == "wait"),
          "r2", len(r2), f"(nops {nn(r2)})", "slow", len(slow))

if __name__ == "__main__":
    if "stats" in OPTS:
        for g, l in enumerate(TEMPLATE): print(g, BM[g], l)
    else:
        main()
```

```python
import struct, sys, math

KNAME = "standalone__gqa_softmax__near_ridge_kernel"
OUT = sys.argv[1] if len(sys.argv) > 1 else "standalone__gqa_softmax__near_ridge.s"
OPTS = dict(a.split("=") for a in sys.argv[2:])
def opt(name, default):
    return type(default)(OPTS.get(name, default))

STF = {"none": "", "sc1": " sc1", "nt": " nt", "sc01": " sc0 sc1", "sc1nt": " sc1 nt"}[opt("stf", "sc1")]
QF = " nt" if opt("qnt", 1) else ""
KVF = " nt" if opt("kvnt", 1) else ""
def f32(x): return "0x%08x" % struct.unpack("<I", struct.pack("<f", x))[0]
SCALE = math.log2(math.e) / math.sqrt(128.0)

NT = 5
def VQ(t, s): return 16 * t + 4 * s
def SP(p, t): return 96 + 40 * p + 8 * t
SX = 176
def VL(t): return 180 + t
def VKA(j, p): return 186 + 2 * j + p
def VVA(j, c): return 194 + 4 * j + c
def VDK(j): return 210 + j
def VDV(j): return 214 + j
VLANE = 218
PX = 220
VZ = 224
VCHK = 228
VQOFF = 232
VST = 233
VXW = 234
VXR = 235
VT = 236
VTS0, VTS1, VTS2 = 219, 254, 255
def AO(t, dt): return 32 * t + 4 * dt
def AK(b, s): return 192 + 16 * b + 4 * s
def AV(b, i): return 224 + 16 * b + 4 * i
S_Q, S_K, S_V, S_O = 4, 8, 12, 16
S_W = 20; S_KOFF = 21; S_VOFF = 22; S_CNT = 23; S_M0K = 24; S_M0V = 25; S_PIECE = 26
S_C = 28
S_BAD = 30
S_T = 32
S_LO, S_HI = 54, 55
def S_ROW(t): return 56 + t
LDS_V = 65536
LDS_X = 131072

STAG = tuple(int(c) for c in opt("stag", "001120"))
SMAX = max(STAG); S = 16 + SMAX; RF = SMAX + 1
assert min(STAG[:NT]) == 0

def vr(n, k=1): return f"v{n}" if k == 1 else f"v[{n}:{n+k-1}]"
def ar(n, k=1): return f"a{n}" if k == 1 else f"a[{n}:{n+k-1}]"
def R(kind, n, k=1): return {(kind, n + i) for i in range(k)}
def RV(*regs): return set().union(*[R("v", r) for r in regs]) if regs else set()

class I:
    def __init__(s, text, kind, rd=(), wr=(), **kw):
        s.text, s.kind, s.rd, s.wr = text, kind, set(rd), set(wr)
        s.__dict__.update(kw)
    def __repr__(s): return s.text

class Asm:
    def __init__(s): s.L = []
    def raw(s, text, kind="other", rd=(), wr=(), **kw):
        s.L.append(I(text, kind, rd, wr, **kw)); return s.L[-1]
    def label(s, name): s.L.append(I(name + ":", "label"))
    def nop(s, n):
        while n > 0:
            k = min(n, 16); s.raw(f"s_nop {k-1}", "nop"); s.L[-1].ws = k; n -= k
    def salu(s, text): return s.raw(text, "salu")
    def valu(s, text, rd=(), wr=()): return s.raw(text, "valu", rd, wr)
    def V(s, txt, rd, wr, kind="valu"): return s.raw(txt, kind, RV(*rd), RV(wr) if wr is not None else ())

def mfma_qk(t, j, s):
    d = SX if t == NT else SP(j // 2, t) + 4 * (j % 2)
    a = AK(j % 2, s); b = VQ(t, s)
    c = "0" if s == 0 else vr(d, 4)
    rd = R("a", a, 4) | R("v", b, 4) | (R("v", d, 4) if s else set())
    return I(f"v_mfma_f32_16x16x32_bf16 {vr(d,4)}, {ar(a,4)}, {vr(b,4)}, {c}", "mfma", rd, R("v", d, 4),
             cacc=R("v", d, 4) if s else set())
def mfma_pv(t, p, dt, first=False):
    d = AO(t, dt); a = AV(dt // 4, dt % 4)
    b = PX if t == NT else SP(p, t)
    c = "0" if first else ar(d, 4)
    return I(f"v_mfma_f32_16x16x32_bf16 {ar(d,4)}, {ar(a,4)}, {vr(b,4)}, {c}", "mfma",
             R("a", a, 4) | R("v", b, 4) | (set() if first else R("a", d, 4)), R("a", d, 4),
             cacc=set() if first else R("a", d, 4))
def lds_k(j, s, stage):
    d = AK(j % 2, s)
    return I(f"ds_read_b128 {ar(d,4)}, {vr(VKA(j, s % 2))} offset:{stage*16384 + (s//2)*8192}", "lds",
             R("v", VKA(j, s % 2)), R("a", d, 4), grp=("k", j, stage))
def lds_v(p, dt, h, stage):
    d = AV(dt // 4, dt % 4) + 2 * h
    j = 2 * p + h
    g = opt("vgrp", 4)
    return I(f"ds_read_b64_tr_b16 {ar(d,2)}, {vr(VVA(j, dt % 4))} offset:{stage*16384 + (dt//4)*8192}", "lds",
             R("v", VVA(j, dt % 4)), R("a", d, 2), grp=("v", p, dt // g, stage))
def v_exp(r): return I(f"v_exp_f32 {vr(r)}, {vr(r)}", "trans", R("v", r), R("v", r))
def v_addl(t, r): return I(f"v_add_f32 {vr(VL(t))}, {vr(VL(t))}, {vr(r)}", "valu", R("v", r) | R("v", VL(t)), R("v", VL(t)))
def v_cvt(d, a, b): return I(f"v_cvt_pk_bf16_f32 {vr(d)}, {vr(a)}, {vr(b)}", "valu", R("v", a) | R("v", b), R("v", d))
def dma(which, j, tag=None):
    if which == "K":
        return I(f"buffer_load_dwordx4 {vr(VDK(j))}, s[{S_K}:{S_K+3}], s{S_KOFF} offen offset:{1024*j}{KVF} lds", "dma", R("v", VDK(j)), tag=tag)
    return I(f"buffer_load_dwordx4 {vr(VDV(j))}, s[{S_V}:{S_V+3}], s{S_VOFF} offen offset:{1024*j}{KVF} lds", "dma", R("v", VDV(j)), tag=tag)
def q_load(t, s):
    return I(f"buffer_load_dwordx4 {vr(VQ(t,s),4)}, {vr(VQOFF)}, s[{S_Q}:{S_Q+3}], s{S_ROW(t)} offen offset:{64*s}{QF}", "vmem",
             R("v", VQOFF), R("v", VQ(t, s), 4), isload=True)
def Vi(txt, rd, wr, kind="valu"): return I(txt, kind, RV(*rd), RV(*wr) if isinstance(wr, (list, tuple)) else RV(wr))

def step_spine(sg, act):
    M = []
    def Q(j):
        for t in range(NT):
            if act(t, sg):
                for s in range(4): M.append(("QK", t, j, s, sg))
        if j == 0 and act(NT, sg):
            for s in range(4): M.append(("QK", NT, 0, s, sg))
    def P(p, half, s2):
        for dt in range(4 * half, 4 * half + 4):
            for t in range(NT):
                if act(t, s2): M.append(("PV", t, p, dt, s2))
            if p == 0 and act(NT, s2): M.append(("PV", NT, 0, dt, s2))
    Q(0); P(1, 0, sg - 1); Q(1); P(1, 1, sg - 1); Q(2); P(0, 0, sg); Q(3); P(0, 1, sg)
    return M

class Op:
    count = 0
    def __init__(s, name, step, mk, cls, E, D, preds=(), seq=None, Emin=None):
        s.name, s.step, s.mk, s.cls, s.E, s.D, s.preds = name, step, mk, cls, E, D, list(preds)
        s.gap = None
        Op.count += 1
        s.seq = Op.count if seq is None else seq
        s.Emin = E if Emin is None else Emin

EXP_LAG = opt("explag", 4)
LDS_LEAD = opt("ldslead", 9)

class Program:
    def __init__(P, s0, s1, act):
        P.act, P.s0, P.s1 = act, s0, s1
        P.spine = []; P.base = {}
        for sg in range(s0, s1 + 1):
            P.base[sg] = len(P.spine); P.spine += step_spine(sg, act)
        P.base[s1 + 1] = len(P.spine)
        P.pos = {tag: i for i, tag in enumerate(P.spine)}
        P.first = {}; P.last = {}
        for i, (k, t, x, y, sg) in enumerate(P.spine):
            for key in ((k, x, y, sg), (k, x, sg), (k, x, y // 4, "h", sg)):
                P.first.setdefault(key, i); P.last[key] = i
        P.kready = {}; P.vready = {}
    def has(P, sg): return ("QK", 0, sg) in P.first
    def barpos(P, sg):
        if sg < getattr(P, "latebar", 0): return P.base[sg + 1] - 1 - opt("latebarshift", 0)
        return P.first[("QK", 3, 3, sg)] + opt("barshift", 0)
    def ops(P, sg):
        act, pos = P.act, P.pos
        ops = []
        BIG = 10 ** 6
        for t in range(NT + 1):
            if not act(t, sg): continue
            for j in range(4 if t < NT else 1):
                p = j // 2
                r0 = SX if t == NT else SP(p, t) + 4 * (j % 2)
                mend = pos[("QK", t, j, 3, sg)]
                cons = pos.get(("PV", t, p, 0, sg), BIG)
                dc = cons - 3
                exps = [Op(f"exp{t}{j}{k}", sg, lambda st, r=r0 + k: v_exp(r), "exp", mend + EXP_LAG, dc - 4, Emin=mend) for k in range(4)]
                adds = [Op(f"add{t}{j}{k}", sg, lambda st, r=r0 + k, t=t: v_addl(t, r), "plain", 0, dc - 2, [exps[k]]) for k in range(4)]
                dst = PX if t == NT else SP(p, t) + 2 * (j % 2)
                c0 = Op(f"cvt{t}{j}0", sg, lambda st, d=dst, r=r0: v_cvt(d, r, r + 1), "plain", 0, dc - 1, adds[0:2])
                c1 = Op(f"cvt{t}{j}1", sg, lambda st, d=dst + 1, r=r0: v_cvt(d, r + 2, r + 3), "plain", 0, dc, adds[2:4] + [c0])
                if j % 2 == 1:
                    prev = [o for o in ops if o.name == f"cvt{t}{j-1}1"][0]
                    c0.preds.append(prev); c1.preds.append(prev)
                for o in exps + adds + [c0, c1]: o.hardD = cons - 1
                for k, o in enumerate(exps + adds + [c0, c1]): o.seq = mend * 100 + k
                ops += exps + adds + [c0, c1]
        kr = P.kready.get(sg, P.barpos(sg - 1) + 1 if P.has(sg - 1) else -1)
        vrdy = P.vready.get(sg, P.barpos(sg - 1) + 1 if P.has(sg - 1) else -1)
        for j in range(4):
            fu = P.first[("QK", j, sg)]
            for s in range(4):
                if j >= 2: E = P.last[("QK", j - 2, s, sg)]
                else: E = P.last.get(("QK", j + 2, s, sg - 1), -1)
                E = max(E, kr)
                o = Op(f"ldk{j}{s}", sg, lambda st, j=j, s=s: lds_k(j, s, st), "mem", E, fu - LDS_LEAD - 3 + s)
                o.hardD = fu - 1; ops.append(o)
        g = opt("vgrp", 4)
        for p in range(2):
            for dt in range(8):
                if ("PV", p, dt, sg) not in P.first: continue
                fu = P.first[("PV", p, dt - dt % g, sg)]
                if p == 0: E = P.last.get(("PV", 1, dt, sg - 1), -1)
                else: E = P.last[("PV", 0, dt, sg)]
                E = max(E, vrdy)
                for h in range(2):
                    o = Op(f"ldv{p}{dt}{h}", sg, lambda st, p=p, dt=dt, h=h: lds_v(p, dt, h, st), "mem", E,
                           fu - LDS_LEAD - 2 * (g - 1 - dt % g) - 1 + h)
                    o.hardD = P.first[("PV", p, dt, sg)] - 1; ops.append(o)
        return ops
    def dma_ops(P, sg):
        ops = []; prev = None
        E = P.barpos(sg) + 1
        seq = [("m0V",), ("V", 0), ("V", 1), ("V", 2), ("V", 3), ("m0K",), ("K", 0), ("K", 1), ("K", 2), ("K", 3), ("adv",)]
        sp = opt("dmaspread", 5)
        for n, it in enumerate(seq):
            cls = "free"
            if it[0] == "m0V":
                mk = lambda st: I(f"s_add_u32 m0, s{S_M0V}, {((st + 3) % 4) * 16384}", "salu_m0", pre="V")
            elif it[0] == "m0K":
                mk = lambda st: I(f"s_add_u32 m0, s{S_M0K}, {(st % 4) * 16384}", "salu_m0", pre="K")
            elif it[0] == "adv":
                mk = lambda st: [I(f"s_add_u32 s{S_KOFF}, s{S_KOFF}, 16384", "salu"), I(f"s_add_u32 s{S_VOFF}, s{S_VOFF}, 16384", "salu"),
                                 I(f"s_bitset0_b32 s{S_KOFF}, 18", "salu"), I(f"s_bitset0_b32 s{S_VOFF}, 18", "salu")]
            else:
                mk = lambda st, it=it: dma(it[0], it[1]); cls = "mem"
            o = Op(f"dma{n}", sg, mk, cls, E + sp * n, E + sp * n + 8, [prev] if prev else [])
            o.blk = (it[0][-1], sg + (3 if it[0][-1] == "V" else 4))
            ops.append(o); prev = o
        return ops

def schedule(ops, g0, g1, flush=False):
    gaps = {}
    LW = opt("ldswin", 28)
    PANIC = opt("panic", 14)
    pend = sorted(ops, key=lambda o: (o.D, o.seq))
    for g in range(g0, g1):
        last = flush and g == g1 - 1
        def ready(o): return o.E <= g and all(p.gap is not None and p.gap < g for p in o.preds)
        cand = [o for o in pend if ready(o)]
        placed = [o for o in cand if o.cls == "free"]
        mem = [o for o in cand if o.cls == "mem"]
        exps = sorted([o for o in cand if o.cls == "exp"], key=lambda o: o.seq)
        plain = sorted([o for o in cand if o.cls == "plain"], key=lambda o: o.seq)
        low = sorted([o for o in cand if o.cls == "low"], key=lambda o: o.seq)
        soft = [o for o in pend if o.cls in ("exp", "plain") and o.E <= g + 200]
        slack = min([o.D - g for o in soft], default=999)
        forced = [o for o in mem if o.D <= g]
        due = [o for o in mem if g >= o.D - LW and o not in forced]
        used = 0
        if forced:
            placed += forced; used += 4 * len(forced)
        elif due and plain:
            placed.append(due[0]); used += 4
        if used:
            if plain and used < 8: placed.append(plain.pop(0)); used += 4
        elif len(plain) >= opt("backlog", 3) or (plain and not exps):
            placed += plain[:2]; used += 4 * len(plain[:2]); plain = plain[2:]
        elif exps:
            placed.append(exps.pop(0)); used += 8
        elif due:
            placed.append(due[0]); used += 4
        if slack < PANIC and plain:
            placed.append(plain.pop(0)); used += 4
        for o in exps + plain:
            if o.D <= g and o not in placed: placed.append(o)
        for o in low:
            if used < 8 or o.D <= g: placed.append(o); used += 4
        order = {"free": 0, "mem": 1, "exp": 2, "plain": 3, "low": 3}
        placed.sort(key=lambda o: order[o.cls])
        for o in placed:
            o.gap = g; pend.remove(o)
        again = True
        while again:
            again = False
            need = set()
            def mark(o):
                if o.gap is None and id(o) not in need:
                    need.add(id(o))
                    for p in o.preds: mark(p)
            for o in pend:
                if last or getattr(o, "hardD", 10 ** 9) <= g: mark(o)
            for o in sorted(pend, key=lambda o: (o.D, o.seq)):
                if id(o) in need and all(p.gap is not None for p in o.preds):
                    assert o.Emin <= g or last, f"cannot meet hard deadline {o.name} step {o.step} g {g} Emin {o.Emin}"
                    o.gap = g; placed.append(o); pend.remove(o); again = True
                    break
        gaps[g] = placed
    return gaps, pend

def build_template():
    P = Program(0, 10, lambda t, sg: True)
    NBk = P.base[1] - P.base[0]
    allops = []
    for b in range(1, 10): allops += P.ops(b) + P.dma_ops(b)
    gaps, pend = schedule(allops, 0, P.base[10])
    def rel(b): return [[(o.step - b, o.name) for o in gaps[P.base[b] + g]] for g in range(NBk)]
    assert rel(5) == rel(6) == rel(7), "schedule not periodic"
    return rel(6), NBk, [tag[:4] + (tag[4] - 1,) for tag in P.spine[P.base[1]:P.base[2]]], P.barpos(1) - P.base[1]
TEMPLATE, NB, BM, BAR_POS = build_template()
TWHERE = {name: (d, g) for g, l in enumerate(TEMPLATE) for d, name in l}

def emit_mfma(a, tag):
    k, t, x, y, sg = tag
    if k == "QK": a.L.append(mfma_qk(t, x, y))
    else: a.L.append(mfma_pv(t, x, y, first=(x == 0 and sg == STAG[t])))
def emit_op(a, o, tagdma=True):
    r = o.mk(o.step % 4)
    for i in (r if isinstance(r, list) else [r]):
        if i.kind == "dma" and getattr(i, "tag", None) is None: i.tag = o.blk
        a.L.append(i)

def insert_lgkm_waits(L, carry_in=None):
    out = []
    q = list(carry_in or [])
    for i in L:
        if i.kind == "wait" and "lgkmcnt(0)" in i.text: q = []
        need = -1
        touched = i.rd | i.wr
        for k, o in enumerate(q):
            if o.wr & touched: need = k
        if getattr(i, "needlds", False): need = len(q) - 1
        if need >= 0:
            gr = getattr(q[need], "grp", None)
            if gr is not None:
                for k, o in enumerate(q):
                    if getattr(o, "grp", None) == gr: need = max(need, k)
            n = min(14, len(q) - 1 - need)
            out.append(I(f"s_waitcnt lgkmcnt({n})", "wait"))
            q = q[len(q) - n:] if n else []
        out.append(i)
        if i.kind in ("lds", "ldsw"): q.append(i)
    return out, q

def insert_vm_waits(L, carry_in=None):
    out = []
    q = list(carry_in or [])
    issued = {}
    for i in L:
        if i.kind == "dma": issued[i.tag] = issued.get(i.tag, 0) + 1
        if carry_in is None and getattr(i, "needs", None) is not None:
            for tg in i.needs: assert issued.get(tg, 0) == 4, f"{tg} not issued before its barrier"
        if i.kind == "wait" and "vmcnt(" in i.text:
            n = int(i.text.split("vmcnt(")[1].split(")")[0]); q = q[len(q) - n:] if n < len(q) else q
            if n == 0: q = []
        need = -1
        touched = i.rd | i.wr
        for k, o in enumerate(q):
            if getattr(o, "isload", False) and (o.wr & touched): need = k
            nd = getattr(i, "needs", None)
            if nd is not None and o.kind == "dma" and (nd == "all" or o.tag in nd): need = k
        if need >= 0:
            n = min(62, len(q) - 1 - need)
            out.append(I(f"s_waitcnt vmcnt({n})", "wait"))
            q = q[len(q) - n:] if n else []
        out.append(i)
        if i.kind in ("dma", "vmem"): q.append(i)
    return out, q

def hazard_need(p, c):
    need = 0
    if p.kind == "mfma":
        if c.kind in ("valu", "trans", "lds", "dma", "vmem", "ldsw") and (p.wr & (c.rd | c.wr)): need = 8
        if c.kind == "mfma":
            cacc = getattr(c, "cacc", set())
            if p.wr & (c.rd - cacc): need = 8
            elif (p.wr & cacc) and p.wr != cacc: need = 6
        if c.kind in ("valu", "trans") and (c.wr & getattr(p, "cacc", set())): need = max(need, 3)
    elif p.kind in ("valu", "trans"):
        if c.kind == "mfma" and (p.wr & c.rd): need = 2
        if p.kind == "trans" and c.kind in ("valu", "vmem", "ldsw") and (p.wr & c.rd): need = 1
        if "permlane" in c.text and (p.wr & (c.rd | c.wr)): need = 2
        if "readfirstlane" in c.text and (p.wr & c.rd): need = 1
        if any(k == "s" for k, _ in (p.wr & c.rd)):
            need = max(need, 5 if c.kind in ("vmem", "dma") else 2 if c.kind in ("valu", "trans") else 0)
    elif p.kind == "salu_m0":
        if c.kind == "dma": need = 1
    elif p.kind in ("vmem", "ldsw") and ("store" in p.text or "write" in p.text):
        if c.kind in ("valu", "trans") and (c.wr & p.rd): need = 2
    return need
def ws(i): return getattr(i, "ws", 1)
def fix_hazards(L, ctx=(), report=None):
    out = list(ctx); n0 = len(out)
    for c in L:
        if c.kind != "label":
            extra = 0; dist = 0
            for p in reversed(out):
                if p.kind == "label": continue
                e = hazard_need(p, c) - dist
                if e > extra: extra = e; who = p
                dist += ws(p)
                if dist >= 10: break
            if extra > 0:
                if report: print(f"HAZARD[{report}]: {who.text} -> {c.text} short by {extra}")
                n = I(f"s_nop {extra-1}", "nop"); n.ws = extra; out.append(n)
        out.append(c)
    return out[n0:]

TS = opt("ts", 0)
DBG = opt("dbg", 0)
def emit_ts(a):
    if not TS: return
    a.raw("s_memtime s[50:51]", "smem")
    a.raw("s_memrealtime s[52:53]", "smem")
    a.raw("s_waitcnt lgkmcnt(0)", "wait")
    a.salu("s_lshl_b64 exec, 1, s48")
    a.raw(f"v_mov_b32 v{VTS0}, s50", "valu", (), R("v", VTS0))
    a.raw(f"v_mov_b32 v{VTS1}, s52", "valu", (), R("v", VTS1))
    a.salu("s_mov_b64 exec, -1")
    a.salu("s_add_u32 s48, s48, 1")
def emit_ts_store(a):
    if not TS: return
    emit_ts(a)
    a.raw("s_waitcnt vmcnt(0)", "wait")
    emit_ts(a)
    a.salu(f"s_lshl_b32 s49, s2, 2")
    a.salu(f"s_add_u32 s49, s49, s{S_W}")
    if DBG:
        a.salu(f"s_cmp_eq_u32 s49, {opt('dbgwave', 0)}")
        a.salu(f"s_cselect_b32 s49, 0, 16")
    a.salu(f"s_lshl_b32 s49, s49, 9")
    if DBG:
        a.valu(f"v_readfirstlane_b32 s50, v{VTS1}", R("v", VTS1), R("s", 50))
        a.nop(2)
        a.valu(f"v_subrev_u32 v{VTS0}, s50, v{VTS1}", R("v", VTS1), R("v", VTS0))
    a.valu(f"v_lshlrev_b32 v{VTS2}, 2, v{VLANE}", R("v", VLANE), R("v", VTS2))
    a.nop(2)
    a.raw(f"buffer_store_dword v{VTS0}, v{VTS2}, s[44:47], s49 offen", "vmem", R("v", VTS0) | R("v", VTS2))
    a.raw(f"buffer_store_dword v{VTS1}, v{VTS2}, s[44:47], s49 offen offset:256", "vmem", R("v", VTS1) | R("v", VTS2))
    a.raw("s_waitcnt vmcnt(0)", "wait")

def scale_tile_pk(a, t, tmp0, hook=None):
    for r in range(16):
        q = VQ(t, 0) + r
        tmp = tmp0 + 2 * (r % 4)
        a.V(f"v_lshlrev_b32 {vr(tmp)}, 16, {vr(q)}", [q], tmp)
        a.V(f"v_and_b32 {vr(tmp+1)}, 0xffff0000, {vr(q)}", [q], tmp + 1)
        a.valu(f"v_pk_mul_f32 {vr(tmp,2)}, {vr(tmp,2)}, s[{S_C}:{S_C+1}]", R("v", tmp, 2), R("v", tmp, 2))
        a.V(f"v_cvt_pk_bf16_f32 {vr(q)}, {vr(tmp)}, {vr(tmp+1)}", [tmp, tmp + 1], q)
        if hook: hook(r)

def scale_ops(t, E, D):
    ops = []; n = 80; k = 0
    tmp0 = (VT if t == NT else SP(0, t))
    lastc = {}
    def mk(name, txt, rd, wr, preds):
        nonlocal k
        d = E + (D - E) * (k + 1) // n
        o = Op(name, STAG[t] - 1, lambda st: Vi(txt, rd, wr), "low", E, d, preds); o.hardD = D + 2; k += 1
        ops.append(o); return o
    for r in range(16):
        q = VQ(t, 0) + r; tmp = tmp0 + 2 * (r % 4)
        pr = [lastc[r - 4]] if r >= 4 else []
        lo = mk(f"qs{t}{r}a", f"v_lshlrev_b32 {vr(tmp)}, 16, {vr(q)}", [q], tmp, pr)
        hi = mk(f"qs{t}{r}b", f"v_and_b32 {vr(tmp+1)}, 0xffff0000, {vr(q)}", [q], tmp + 1, pr)
        m0 = mk(f"qs{t}{r}c", f"v_mul_f32 {vr(tmp)}, s{S_C}, {vr(tmp)}", [tmp], tmp, [lo])
        m1 = mk(f"qs{t}{r}d", f"v_mul_f32 {vr(tmp+1)}, s{S_C}, {vr(tmp+1)}", [tmp + 1], tmp + 1, [hi])
        lastc[r] = mk(f"qs{t}{r}e", f"v_cvt_pk_bf16_f32 {vr(q)}, {vr(tmp)}, {vr(tmp+1)}", [tmp, tmp + 1], q, [m0, m1])
    return ops

def chk_mfma(pk):
    return I(f"v_mfma_f32_16x16x32_bf16 {vr(VCHK,4)}, {vr(VZ,4)}, {vr(pk,4)}, {vr(VCHK,4)}", "mfma",
             R("v", VZ, 4) | R("v", pk, 4) | R("v", VCHK, 4), R("v", VCHK, 4), cacc=R("v", VCHK, 4))
def range_check(l):
    return [I(f"v_cmp_nle_f32 vcc, s{S_LO}, {vr(l)}", "valu", R("v", l), R("s", 106)),
            I(f"s_or_b64 s[{S_BAD}:{S_BAD+1}], s[{S_BAD}:{S_BAD+1}], vcc", "salu"),
            I(f"v_cmp_nge_f32 vcc, s{S_HI}, {vr(l)}", "valu", R("v", l), R("s", 106)),
            I(f"s_or_b64 s[{S_BAD}:{S_BAD+1}], s[{S_BAD}:{S_BAD+1}], vcc", "salu")]

class Chain:
    def __init__(c, step, E, rate):
        c.step, c.E, c.rate, c.k, c.ops = step, E, rate, 0, []
    def add(c, ins, preds=(), E=None, cls="low"):
        e = max(c.E, E if E is not None else c.E)
        d = max(e, c.E + int(c.k / c.rate))
        o = Op(f"ep{len(c.ops)}", c.step, (lambda st, ins=ins: ins), cls, e, d, [p for p in preds if p is not None])
        c.k += 1; c.ops.append(o); return o

def lreduce_ops(c, l, tmp, preds):
    prev = preds
    for sw in ("v_permlane32_swap_b32", "v_permlane16_swap_b32"):
        m = c.add(Vi(f"v_mov_b32 {vr(tmp)}, {vr(l)}", [l], tmp), prev)
        s_ = c.add(I(f"{sw} {vr(l)}, {vr(tmp)}", "valu", RV(l, tmp), RV(l, tmp)), [m])
        prev = [c.add(Vi(f"v_add_f32 {vr(l)}, {vr(l)}, {vr(tmp)}", [l, tmp], l), [s_])]
    return prev[0]

def finish_chunk(c, buf, rinv, rc, preds, srow, off, pk_ok=False):
    if pk_ok:
        mul = []
        for r in range(0, 8, 2):
            o = c.add(I(f"v_pk_mul_f32 {vr(buf+r,2)}, {vr(buf+r,2)}, {vr(rinv,2)} op_sel_hi:[1,0]", "valu",
                        R("v", buf + r, 2) | R("v", rinv), R("v", buf + r, 2)), [preds[r], preds[r + 1], rc])
            mul += [o, o]
    else:
        mul = [c.add(Vi(f"v_mul_f32 {vr(buf+r)}, {vr(rinv)}, {vr(buf+r)}", [rinv, buf + r], buf + r), [preds[r], rc]) for r in range(8)]
    cv = []
    for k in range(4):
        cv.append(c.add(v_cvt(buf + k, buf + 2 * k, buf + 2 * k + 1), [mul[2 * k], mul[2 * k + 1]] + cv[-1:]))
    sw = [c.add(I(f"v_permlane16_swap_b32 {vr(buf+k)}, {vr(buf+2+k)}", "valu", RV(buf + k, buf + 2 + k), RV(buf + k, buf + 2 + k)), [cv[3]]) for k in range(2)]
    st = c.add(I(f"buffer_store_dwordx4 {vr(buf,4)}, {vr(VST)}, s[{S_O}:{S_O+3}], s{srow} offen offset:{off}{STF}", "vmem",
                 R("v", buf, 4) | R("v", VST)), sw)
    ck = c.add(chk_mfma(buf), sw)
    return [st, ck]

LO_THR = f32(2.0 ** -24)
HI_THR = f32(2.0 ** 64)

def build():
    act = lambda t, sg: 0 <= sg - STAG[t] < 16
    P = Program(0, S, act)
    P.latebar = min(opt("kbarlate", 2), RF - 1)
    for sg in range(P.latebar): P.kready[sg + 1] = P.barpos(sg)
    bars = {}
    for sg in range(S):
        bars[P.barpos(sg)] = {("K", sg + 1), ("V", sg + 1)}
    NVB = opt("nvbar", 3)
    for sg in range(min(NVB, RF)):
        g = P.first[("QK", opt("vbarphase", 2), sg)] + opt("vbarshift", 0)
        bars[g] = {("V", sg)}; P.vready[sg] = g + 1
        if sg > 0: bars[P.barpos(sg - 1)].discard(("V", sg))
    bars[P.barpos(S - 1)] = "all"
    allops = {}
    for sg in range(S):
        allops[sg] = P.ops(sg) + P.dma_ops(sg)
    free1, free2 = [], []
    for sg in range(S):
        for o in allops[sg]:
            d, g = TWHERE[o.name]
            x = sg - d
            if RF <= x <= 15:
                o.gap = P.base[x] + g
            elif o.name.startswith("dma"):
                if x < RF: free1.append(o)
                elif o.blk[1] < S and o.name != "dma10": free2.append(o)
            elif sg < RF or (x < RF): free1.append(o)
            else: free2.append(o)
    END1 = P.base[RF]
    a = Asm()
    T0, T1, T2, T3, T4, T5 = [VT + 8 + k for k in range(6)]
    a.salu("s_cmp_ge_u32 s2, 256")
    a.salu("s_cbranch_scc1 L_end")
    a.raw("s_load_dwordx8 s[36:43], s[0:1], 0", "smem")
    if opt("pad", 0): a.raw("s_memrealtime s[46:47]", "smem")
    if opt("cpf", 1):
        a.salu("s_getpc_b64 s[62:63]")
        a.label("L_pc")
        a.V(f"v_lshlrev_b32 {vr(VT+6)}, 7, v0", [0], VT + 6)
        a.V(f"v_add_u32 {vr(VT+7)}, 32768, {vr(VT+6)}", [VT + 6], VT + 7)
        a.V(f"v_min_u32 {vr(VT+6)}, L_end-L_pc, {vr(VT+6)}", [VT + 6], VT + 6)
        a.V(f"v_min_u32 {vr(VT+7)}, L_end-L_pc, {vr(VT+7)}", [VT + 7], VT + 7)
    def cpf():
        for k in range(opt("cpfn", 2)):
            a.raw(f"global_load_dword {vr(VT+16+k)}, {vr(VT+6+k)}, s[62:63]", "vmem", RV(VT + 6 + k), RV(VT + 16 + k), isload=True)
    if opt("cpf", 1) == 1: cpf()
    if TS:
        a.raw(f"s_load_dwordx2 s[44:45], s[0:1], {32 if DBG else 40}", "smem")
        a.salu("s_mov_b32 s48, 0")
        a.valu(f"v_mov_b32 v{VTS0}, 0", (), R("v", VTS0))
        a.valu(f"v_mov_b32 v{VTS1}, 0", (), R("v", VTS1))
        emit_ts(a)
        a.salu("s_and_b32 s45, s45, 0xffff")
        a.salu(f"s_mov_b32 s46, {256 if DBG else 0x80000}")
        a.salu("s_mov_b32 s47, 0x00020000")
    V = a.V
    V(f"v_and_b32 {vr(VLANE)}, 63, v0", [0], VLANE)
    V(f"v_lshrrev_b32 {vr(T0)}, 6, v0", [0], T0)
    V(f"v_and_b32 {vr(T1)}, 15, v0", [0], T1)
    a.valu(f"v_readfirstlane_b32 s{S_W}, {vr(T0)}", R("v", T0), R("s", S_W))
    V(f"v_lshrrev_b32 {vr(T2)}, 4, {vr(VLANE)}", [VLANE], T2)
    V(f"v_lshrrev_b32 {vr(T3)}, 3, {vr(VLANE)}", [VLANE], T3)
    V(f"v_and_b32 {vr(T4)}, 7, {vr(VLANE)}", [VLANE], T4)
    a.salu("s_and_b32 s32, s2, 7")
    a.salu("s_lshr_b32 s33, s2, 4")
    a.salu("s_lshl_b32 s33, s33, 3")
    a.salu("s_add_u32 s32, s32, s33")
    a.salu("s_lshr_b32 s33, s2, 3")
    a.salu("s_and_b32 s33, s33, 1")
    a.salu("s_lshl_b32 s34, s32, 1")
    a.salu("s_add_u32 s34, s34, s33")
    a.salu("s_mul_i32 s35, s34, 86016")
    a.salu("s_lshl_b32 s33, s32, 18")
    a.salu(f"s_mul_i32 s{S_ROW(0)}, s{S_W}, 20480")
    for t in range(1, NT): a.salu(f"s_add_u32 s{S_ROW(t)}, s{S_ROW(0)}, {t*4096}")
    a.salu(f"s_mov_b32 s{S_ROW(NT)}, 81920")
    a.salu(f"s_and_b32 s{S_PIECE}, s{S_W}, 1")
    a.salu(f"s_lshl_b32 s{S_PIECE}, s{S_PIECE}, 13")
    a.salu(f"s_lshr_b32 s34, s{S_W}, 1")
    a.salu("s_lshl_b32 s34, s34, 7")
    a.salu(f"s_add_u32 s{S_PIECE}, s{S_PIECE}, s34")
    a.salu(f"s_lshl_b32 s{S_M0K}, s{S_W}, 12")
    a.salu(f"s_add_u32 s{S_M0V}, s{S_M0K}, {LDS_V}")
    V(f"v_lshlrev_b32 {vr(VST)}, 8, {vr(T1)}", [T1], VST)
    V(f"v_lshl_add_u32 {vr(VQOFF)}, {vr(T2)}, 4, {vr(VST)}", [T2, VST], VQOFF)
    V(f"v_lshrrev_b32 {vr(T5)}, 1, {vr(T2)}", [T2], T5)
    V(f"v_xor_b32 {vr(T0)}, {vr(T2)}, {vr(T5)}", [T2, T5], T0)
    for par in range(2):
        if par == 1: V(f"v_xor_b32 {vr(T0)}, 5, {vr(T0)}", [T0], T0)
        V(f"v_xor_b32 {vr(VDK(par))}, {vr(T4)}, {vr(T0)}", [T4, T0], VDK(par))
        V(f"v_lshlrev_b32 {vr(VDK(par))}, 4, {vr(VDK(par))}", [VDK(par)], VDK(par))
        V(f"v_lshl_add_u32 {vr(VDK(par))}, {vr(T3)}, 8, {vr(VDK(par))}", [T3, VDK(par)], VDK(par))
        V(f"v_add_u32 {vr(VDK(par))}, s{S_PIECE}, {vr(VDK(par))}", [VDK(par)], VDK(par))
    V(f"v_add_u32 {vr(VDK(2))}, 2048, {vr(VDK(0))}", [VDK(0)], VDK(2))
    V(f"v_add_u32 {vr(VDK(3))}, 3072, {vr(VDK(1))}", [VDK(1)], VDK(3))
    V(f"v_add_u32 {vr(VDK(1))}, 1024, {vr(VDK(1))}", [VDK(1)], VDK(1))
    V(f"v_lshrrev_b32 {vr(T0)}, 1, {vr(T4)}", [T4], T0)
    V(f"v_xor_b32 {vr(T0)}, {vr(T0)}, {vr(T2)}", [T0, T2], T0)
    V(f"v_lshlrev_b32 {vr(T0)}, 5, {vr(T0)}", [T0], T0)
    V(f"v_and_b32 {vr(T5)}, 1, {vr(VLANE)}", [VLANE], T5)
    V(f"v_lshl_add_u32 {vr(T0)}, {vr(T5)}, 4, {vr(T0)}", [T5, T0], T0)
    V(f"v_lshl_add_u32 {vr(T0)}, {vr(T3)}, 8, {vr(T0)}", [T3, T0], T0)
    V(f"v_add_u32 {vr(VDV(0))}, s{S_PIECE}, {vr(T0)}", [T0], VDV(0))
    for j in range(1, 4): V(f"v_add_u32 {vr(VDV(j))}, {1024*j}, {vr(VDV(0))}", [VDV(0)], VDV(j))
    a.raw("s_waitcnt lgkmcnt(0)", "wait")
    def srd(d, lo, off, size):
        a.salu(f"s_add_u32 s{d}, s{lo}, s{off}")
        a.salu(f"s_addc_u32 s{d+1}, s{lo+1}, 0")
        a.salu(f"s_and_b32 s{d+1}, s{d+1}, 0xffff")
        a.salu(f"s_mov_b32 s{d+2}, {size}")
        a.salu(f"s_mov_b32 s{d+3}, 0x00020000")
    srd(S_K, 38, 33, 262144)
    srd(S_Q, 36, 35, 86016)
    srd(S_V, 40, 33, 262144)
    srd(S_O, 42, 35, 86016)
    order = opt("order", "K0,Q0,Q5,Q1,V0,K1,Q2,Q3,V1,K2,Q4,V2,K3").split(",")
    assert sorted(order) == sorted(["K0", "K1", "K2", "K3", "V0", "V1", "V2"] + [f"Q{t}" for t in range(6)])
    def load_instrs(item):
        k, n = item[0], int(item[1])
        if k == "Q": return [q_load(n, s) for s in range(4)]
        so, base = (S_KOFF, S_M0K) if k == "K" else (S_VOFF, S_M0V)
        L = [dma(k, j, tag=(k, n)) for j in range(4)]
        return [[I(f"s_mov_b32 s{so}, {n*16384}", "salu"), I(f"s_add_u32 m0, s{base}, {n*16384}", "salu_m0"), L[0]]] + L[1:]
    loadq = [x for item in order for x in load_instrs(item)]
    allloads = list(loadq)
    def core(x): return x[-1] if isinstance(x, list) else x
    nissued = [0]
    def issue(n):
        for _ in range(n):
            if loadq:
                x = loadq.pop(0); nissued[0] += 1
                a.L += x if isinstance(x, list) else [x]
    WIN = opt("win", 12)
    if TS == 2: emit_ts(a)
    issue(opt("npre", 12))
    if TS == 2: emit_ts(a)
    if opt("cpf", 1) == 2: cpf()
    a.salu(f"s_mov_b32 s{S_C}, {f32(SCALE)}")
    a.salu(f"s_mov_b32 s{S_C+1}, {f32(SCALE)}")
    a.salu(f"s_mov_b64 s[{S_BAD}:{S_BAD+1}], 0")
    a.salu(f"s_mov_b32 s{S_LO}, {LO_THR}")
    a.salu(f"s_mov_b32 s{S_HI}, {HI_THR}")
    V(f"v_and_b32 {vr(T0)}, 1, {vr(T2)}", [T2], T0)
    V(f"v_lshl_add_u32 {vr(VST)}, {vr(T0)}, 5, {vr(VST)}", [T0, VST], VST)
    V(f"v_lshrrev_b32 {vr(T0)}, 1, {vr(T2)}", [T2], T0)
    V(f"v_lshl_add_u32 {vr(VST)}, {vr(T0)}, 4, {vr(VST)}", [T0, VST], VST)
    V(f"v_lshrrev_b32 {vr(T0)}, 1, {vr(T1)}", [T1], T0)
    V(f"v_lshrrev_b32 {vr(T5)}, 1, {vr(T0)}", [T0], T5)
    V(f"v_lshrrev_b32 {vr(T3)}, 2, {vr(T0)}", [T0], T3)
    V(f"v_xor_b32 {vr(T5)}, {vr(T5)}, {vr(T3)}", [T5, T3], T5)
    V(f"v_and_b32 {vr(T5)}, 1, {vr(T5)}", [T5], T5)
    V(f"v_xor_b32 {vr(T0)}, {vr(T0)}, {vr(T5)}", [T0, T5], T0)
    V(f"v_xor_b32 {vr(T0)}, {vr(T0)}, {vr(T2)}", [T0, T2], T0)
    for j in range(4):
        a.salu(f"s_xor_b32 s{32+j}, s{S_W}, {j}")
        a.salu(f"s_lshl_b32 s{32+j}, s{32+j}, 11")
    for p in range(2):
        if p == 1: V(f"v_xor_b32 {vr(T0)}, 4, {vr(T0)}", [T0], T0)
        V(f"v_lshlrev_b32 {vr(T5)}, 4, {vr(T0)}", [T0], T5)
        V(f"v_lshl_add_u32 {vr(T5)}, {vr(T1)}, 7, {vr(T5)}", [T1, T5], T5)
        for j in range(4): V(f"v_add_u32 {vr(VKA(j,p))}, s{32+j}, {vr(T5)}", [T5], VKA(j, p))
    V(f"v_lshrrev_b32 {vr(T0)}, 2, {vr(T1)}", [T1], T0)
    V(f"v_lshl_add_u32 {vr(T0)}, {vr(T2)}, 2, {vr(T0)}", [T2, T0], T0)
    V(f"v_lshlrev_b32 {vr(T0)}, 7, {vr(T0)}", [T0], T0)
    V(f"v_and_b32 {vr(T5)}, 3, {vr(T1)}", [T1], T5)
    V(f"v_lshl_add_u32 {vr(T0)}, {vr(T5)}, 3, {vr(T0)}", [T5, T0], T0)
    V(f"v_add_u32 {vr(T0)}, {LDS_V}, {vr(T0)}", [T0], T0)
    V(f"v_lshrrev_b32 {vr(T5)}, 3, {vr(T1)}", [T1], T5)
    V(f"v_lshl_add_u32 {vr(T5)}, {vr(T2)}, 1, {vr(T5)}", [T2, T5], T5)
    V(f"v_and_b32 {vr(T5)}, 3, {vr(T5)}", [T5], T5)
    for c in range(4):
        V(f"v_xor_b32 {vr(T3)}, {c}, {vr(T5)}", [T5], T3)
        V(f"v_lshl_add_u32 {vr(T3)}, {vr(T3)}, 5, {vr(T0)}", [T3, T0], T3)
        for j in range(4): V(f"v_add_u32 {vr(VVA(j,c))}, s{32+j}, {vr(T3)}", [T3], VVA(j, c))
    a.salu(f"s_lshl_b32 s32, s{S_W}, 13")
    a.salu(f"s_add_u32 s32, s32, {LDS_X}")
    a.salu(f"s_lshl_b32 s33, s{S_W}, 11")
    a.salu(f"s_add_u32 s33, s33, {LDS_X}")
    V(f"v_lshlrev_b32 {vr(T0)}, 4, {vr(VLANE)}", [VLANE], T0)
    V(f"v_add_u32 {vr(VXW)}, s32, {vr(T0)}", [T0], VXW)
    V(f"v_add_u32 {vr(VXR)}, s33, {vr(T0)}", [T0], VXR)
    V(f"v_lshlrev_b32 {vr(VT+14)}, 2, {vr(VLANE)}", [VLANE], VT + 14)
    V(f"v_add_u32 {vr(VT+15)}, s{S_M0K}, {vr(VT+14)}", [VT + 14], VT + 15)
    for r in list(range(PX + 2, PX + 4)) + list(range(VZ, VZ + 4)) + list(range(VCHK, VCHK + 4)) + [VL(t) for t in range(NT + 1)]:
        V(f"v_mov_b32 {vr(r)}, 0", [], r)
    emit_ts(a)
    first_tiles = [int(x[1]) for x in order if x[0] == "Q" and STAG[int(x[1])] == 0]
    for t in first_tiles:
        if TS == 2:
            a.V(f"v_mov_b32 {vr(VT)}, {vr(VQ(t,0))}", [VQ(t, 0)], VT); emit_ts(a)
            a.V(f"v_mov_b32 {vr(VT)}, {vr(VQ(t,3))}", [VQ(t, 3)], VT); emit_ts(a)
        scale_tile_pk(a, t, VT)
    emit_ts(a)
    a.raw("s_barrier", "barrier", needs={("K", 0)})
    emit_ts(a)
    sops = []
    for t in range(NT + 1):
        if STAG[t] > 0:
            D = P.pos[("QK", t, 0, 0, STAG[t])] - 3
            sops += scale_ops(t, max(0, D - opt("qswin", 25)), D)
    reg1 = {(o.step, o.name) for o in free1 if o.name.startswith("dma")}
    free1 = [o for o in free1 if not o.name.startswith("dma")]
    after = [-1] * len(allloads)
    for sg in range(RF):
        for k, n0, blk in (("V", 0, sg + 3), ("K", 5, sg + 4)):
            so, base = (S_KOFF, S_M0K) if k == "K" else (S_VOFF, S_M0V)
            pre = [I(f"s_mov_b32 s{so}, {(blk % 16)*16384}", "salu"), I(f"s_add_u32 m0, s{base}, {(blk % 4)*16384}", "salu_m0")]
            assert (sg, f"dma{n0 + 1}") in reg1, "first dma of a group deferred: not supported"
            for j in range(4):
                if (sg, f"dma{n0 + 1 + j}") in reg1:
                    d = dma(k, j, tag=(k, blk))
                    allloads.append(pre + [d] if j == 0 else d); after.append(sg)
    adv_in_r1 = (RF - 1, "dma10") in reg1
    gaps1, pend = schedule(free1 + sops, -1, END1, flush=True)
    assert not pend
    def emit_region(x, gaps, g0, g1):
        for g in range(g0, g1):
            if g >= 0 and g < len(P.spine):
                if TS and g in P.base.values() and g > 0: emit_ts(x)
                emit_mfma(x, P.spine[g])
            if g in bars:
                x.raw("s_barrier", "barrier", needs=bars[g], needlds=(g in ldsbars), barstep=barstep.get(g, -1))
            for o in gaps.get(g, []): emit_op(x, o)
    ldsbars = set()
    barstep = {P.barpos(sg): sg for sg in range(S)}
    emit_region(a, gaps1, -1, END1)
    a.raw("s_nop 0", "nop", forceall=True)
    if adv_in_r1: a.L += [o for o in allops[RF - 1] if o.name == "dma10"][0].mk(0)
    niter = (16 - RF + 3) // 4
    a.salu(f"s_mov_b32 s{S_CNT}, {niter}")
    emit_ts(a)
    a.raw("s_waitcnt lgkmcnt(0)", "wait")
    if RF % 4: a.salu(f"s_branch L_blk{RF % 4}")
    L2 = []; n = nissued[0]; started = False; passed = -1; maxneed = -1; cnt = 0
    lastq = max(k for k, x in enumerate(allloads) if core(x).kind != "dma")
    cores = {id(core(x)) for x in allloads}
    def put(tgt):
        nonlocal n
        while n < min(tgt, len(allloads)) and after[n] <= passed:
            x = allloads[n]; L2.extend(x if isinstance(x, list) else [x]); n += 1
    for i in a.L:
        need = -1
        if i is core(allloads[0]): started = True
        if started and id(i) not in cores:
            for k, x in enumerate(allloads):
                c = core(x)
                if c.kind == "dma":
                    nd = getattr(i, "needs", None)
                    if nd is not None and c.tag in nd: need = k
                elif c.wr & (i.rd | i.wr): need = k
            maxneed = max(maxneed, need)
            if getattr(i, "forceall", False):
                print("loads flushed at end of region 1:", len(allloads) - n); put(len(allloads)); continue
            if need >= 0: put(need + WIN + 1)
        L2.append(i)
        passed = max(passed, getattr(i, "barstep", -1))
        if i.kind == "mfma" and maxneed >= lastq - opt("qslack", 0):
            cnt += 1
            if cnt % opt("lrate", 4) == 0: put(n + 1)
    assert n == len(allloads)
    r1, _ = insert_lgkm_waits(L2)
    r1, vq1 = insert_vm_waits(r1)
    if TS == 3:
        x = Asm(); seen = False; inb = False; names = []
        for k, i in enumerate(r1):
            special = seen and (i.kind in ("dma", "vmem", "barrier", "salu_m0") or (i.kind == "wait" and "vmcnt" in i.text) or (i.kind == "salu" and i.text.startswith("s_mov_b32 s2")))
            nxt = r1[k + 1] if k + 1 < len(r1) else None
            if special and not inb:
                grp = []
                for j in r1[k:]:
                    if j.kind in ("dma", "vmem", "barrier", "salu_m0") or (j.kind == "wait" and "vmcnt" in j.text) or (j.kind == "salu" and j.text.startswith("s_mov_b32 s2")): grp.append(j)
                    else: break
                stampit = any(j.kind in ("barrier", "wait") for j in grp)
                if stampit: emit_ts(x); names.append("/".join(("B" if j.kind == "barrier" else "W" if j.kind == "wait" else "L") for j in grp if j.kind in ("barrier", "wait", "dma", "vmem")))
                inb = True
            if inb and not special:
                if stampit: emit_ts(x)
                inb = False
            x.L.append(i)
            if i.kind == "mfma": seen = True
            if i.kind == "smem" and "memtime" in i.text: names.append("ts")
        print("stamps:", names)
        r1 = x.L
    r1 = fix_hazards(r1)

    PF = Program(0, 2, lambda t, sg: True)
    PROTO = {o.name: o for o in PF.ops(1) + PF.dma_ops(1)}
    blocks = []
    for st in range(4):
        b = Asm()
        for g, tag in enumerate(BM):
            k, t, x, y, _ = tag
            b.L.append(mfma_qk(t, x, y) if k == "QK" else mfma_pv(t, x, y))
            if g == BAR_POS:
                b.raw("s_waitcnt vmcnt(12)", "wait")
                b.raw("s_barrier", "barrier", loopbar=True)
            for d, name in TEMPLATE[g]:
                r = PROTO[name].mk((st + d) % 4)
                for i in (r if isinstance(r, list) else [r]):
                    if i.kind == "dma": i.rel = (PROTO[name].blk[0], PROTO[name].blk[1] - 1 + d)
                    if i.kind == "salu_m0":
                        which = i.pre; ahead = 3 if which == "V" else 4
                        if (12 + st + d) + ahead == S and 12 + st + d <= 15 + 1:
                            sr = (S_V if which == "V" else S_K) + 2
                            b.salu(f"s_cmp_eq_u32 s{S_CNT}, {1 if st + d >= 0 else 1}")
                            b.salu(f"s_cselect_b32 s{sr}, 0, s{sr}")
                            assert st + d >= 0
                    b.L.append(i)
        blocks.append(b.L)
    flat = [i for bl in blocks for i in bl]
    marks = {id(bl[0]): k for k, bl in enumerate(blocks)}
    _, q1 = insert_lgkm_waits(flat, [])
    body, q2 = insert_lgkm_waits(flat, q1)
    assert [i.text for i in q1] == [i.text for i in q2]
    body2 = []
    for i in body:
        if id(i) in marks and marks[id(i)] > 0:
            lab = I(f"L_blk{marks[id(i)]}:", "label")
            if body2[-1].kind == "wait" and "lgkm" in body2[-1].text: body2.insert(len(body2) - 1, lab)
            else: body2.append(lab)
        body2.append(i)
    body = body2
    abl = opt("abl", "").split(",")
    tailctl = [I(f"s_sub_u32 s{S_CNT}, s{S_CNT}, 1", "salu"), I(f"s_cmp_lg_u32 s{S_CNT}, 0", "salu"), I("s_cbranch_scc1 L_loop", "salu")]
    if TS:
        x = Asm(); emit_ts(x); tailctl = x.L + tailctl
    chk = fix_hazards(body + tailctl + body, report="loop")
    assert len(chk) == len(body) * 2 + len(tailctl), "hazards in loop"
    q = list(vq1)
    for sg in range(RF, 16):
        for i in blocks[sg % 4]:
            if i.kind == "dma": q.append(I("", "dma", tag=(i.rel[0], sg + i.rel[1])))
            if getattr(i, "loopbar", False):
                q = q[-12:]
                badtags = {o.tag for o in q if o.kind == "dma"} & {("K", sg + 1), ("V", sg + 1)}
                assert not badtags, f"vmcnt(12) insufficient at step {sg}: {badtags}"
                assert not any(getattr(o, "isload", False) for o in q)
    vq2 = q

    start2 = P.base[16]; end2 = len(P.spine)
    opbyname = {(o.step, o.name): o for sg in allops for o in allops[sg]}
    eops = []
    rate = opt("eprate", 2.0)
    lastgap = end2 - 1
    for t in range(NT):
        sl = STAG[t] + 15
        E0 = max(start2, P.pos[("PV", t, 0, 7, sl)] + 1)
        c = Chain(sl, E0, rate)
        tmp = SP(0, t)
        adds = [opbyname[(sl, f"add{t}{j}{k}")] for j in range(4) for k in range(4)]
        lr = lreduce_ops(c, VL(t), tmp, adds)
        rc = c.add(I(f"v_rcp_f32 {vr(tmp+2)}, {vr(VL(t))}", "trans", R("v", VL(t)), R("v", tmp + 2)), [lr])
        c.add(range_check(VL(t)), [lr])
        done = {}
        for m in range(4):
            buf = VQ(t, 0) + 8 * (m % 2)
            Em = P.pos[("PV", t, 1, 2 * m + 1, sl)]
            exposed = Em + 4 >= lastgap
            c.E = max(c.E, min(Em + 4, lastgap)); c.k = 0
            rd = [c.add(I(f"v_accvgpr_read_b32 {vr(buf+r)}, {ar(AO(t,2*m)+r)}", "valu", R("a", AO(t, 2 * m) + r), R("v", buf + r)),
                        done.get(m - 2, [])) for r in range(8)]
            done[m] = finish_chunk(c, buf, tmp + 2, rc, rd, S_ROW(t), 64 * m, pk_ok=exposed)
        eops += c.ops
    slx = STAG[NT] + 15
    xq = VQ(NT, 0)
    E0 = max(start2, P.pos[("PV", NT, 0, 7, slx)] + 4)
    xbar_step = slx + 1
    extra_bar = False
    assert xbar_step + 1 <= S - 1 and S - 4 <= slx
    xbar = P.barpos(xbar_step)
    c = Chain(slx, min(E0, lastgap), max(rate, 60.0 / max(1, xbar - E0 - 6)))
    adds = [opbyname[(slx, f"add{NT}0{k}")] for k in range(4)]
    lr = lreduce_ops(c, VL(NT), SX, adds)
    LXO = (S % 4) * 16384
    wl = c.add(I(f"ds_write_b32 {vr(VT+15)}, {vr(VL(NT))} offset:{LXO}", "ldsw", RV(VT + 15, VL(NT)), needs={("K", S)}), [lr])
    wr = {}
    for dt in range(8):
        buf = xq + 4 * (dt % 4)
        rd = [c.add(I(f"v_accvgpr_read_b32 {vr(buf+r)}, {ar(AO(NT,dt)+r)}", "valu", R("a", AO(NT, dt) + r), R("v", buf + r)),
                    [wr.get(dt - 4)]) for r in range(4)]
        wr[dt] = c.add(I(f"ds_write_b128 {vr(VXW)}, {vr(buf,4)} offset:{1024*dt}", "ldsw", R("v", VXW) | R("v", buf, 4)), rd)
    for o in c.ops: o.hardD = xbar - 1 if not extra_bar else 10 ** 9
    xops1 = c.ops
    def xcombine(c):
        lp = [c.add(I(f"ds_read_b32 {vr(SX+w)}, {vr(VT+14)} offset:{LXO + 4096*w}", "lds", RV(VT + 14), RV(SX + w))) for w in range(4)]
        r0 = [c.add(I(f"ds_read_b128 {vr(xq+4*w,4)}, {vr(VXR)} offset:{8192*w}", "lds", RV(VXR), R("v", xq + 4 * w, 4))) for w in range(4)]
        c.E += 6; c.k = 0
        s1 = c.add(Vi(f"v_add_f32 {vr(SX)}, {vr(SX)}, {vr(SX+1)}", [SX, SX + 1], SX), lp)
        s2 = c.add(Vi(f"v_add_f32 {vr(SX+2)}, {vr(SX+2)}, {vr(SX+3)}", [SX + 2, SX + 3], SX + 2), lp)
        s3 = c.add(Vi(f"v_add_f32 {vr(VL(NT))}, {vr(SX)}, {vr(SX+2)}", [SX, SX + 2], VL(NT)), [s1, s2])
        rc = c.add(I(f"v_rcp_f32 {vr(PX)}, {vr(VL(NT))}", "trans", RV(VL(NT)), RV(PX)), [s3])
        c.add(range_check(VL(NT)), [s3])
        def sum4(b0, b1, b2, b3, pr):
            res = []
            for r in range(4):
                x = c.add(Vi(f"v_add_f32 {vr(b0+r)}, {vr(b0+r)}, {vr(b1+r)}", [b0 + r, b1 + r], b0 + r), pr)
                y = c.add(Vi(f"v_add_f32 {vr(b2+r)}, {vr(b2+r)}, {vr(b3+r)}", [b2 + r, b3 + r], b2 + r), pr)
                res.append(c.add(Vi(f"v_add_f32 {vr(b0+r)}, {vr(b0+r)}, {vr(b2+r)}", [b0 + r, b2 + r], b0 + r), [x, y]))
            return res
        h0 = sum4(xq, xq + 4, xq + 8, xq + 12, r0)
        bufs = [xq + 4, xq + 8, xq + 12, SX]
        r1_ = [c.add(I(f"ds_read_b128 {vr(bufs[w],4)}, {vr(VXR)} offset:{8192*w + 1024}", "lds", RV(VXR), R("v", bufs[w], 4)), h0 + [s3]) for w in range(4)]
        c.E += int(c.k / c.rate) + 6; c.k = 0
        h1 = sum4(bufs[0], bufs[1], bufs[2], bufs[3], r1_)
        so = c.add([I(f"s_lshl_b32 s{S_T}, s{S_W}, 6", "salu"), I(f"s_add_u32 s{S_T}, s{S_T}, 81920", "salu")], cls="free")
        rc.extra = so
        finish_chunk(c, xq, PX, rc, h0 + h1, S_T, 0)
        return so
    e = Asm()
    if not extra_bar:
        c2 = Chain(slx, xbar + 1, rate); xcombine(c2); xops2 = c2.ops
        ldsbars.add(xbar); ldsbars.add(P.barpos(xbar_step + 1))
        for o in xops2:
            x = o.mk(0)
            if not isinstance(x, list) and x.kind == "lds": o.hardD = P.barpos(xbar_step + 1) - 1
    else:
        xops2 = []
    gaps2, pend = schedule(free2 + eops + xops1 + xops2, start2, end2 + 1, flush=True)
    assert not pend
    emit_region(e, gaps2, start2, end2 + 1)
    if extra_bar:
        e.raw("s_barrier", "barrier", needlds=True)
        c2 = Chain(slx, 0, rate); xcombine(c2)
        g3, pend = schedule(c2.ops, 0, 1, flush=True)
        for o in g3[0]: emit_op(e, o)
    e.valu(f"v_cmp_u_f32 vcc, {vr(VCHK)}, {vr(VCHK+1)}", R("v", VCHK, 2), R("s", 106))
    e.salu(f"s_or_b64 s[{S_BAD}:{S_BAD+1}], s[{S_BAD}:{S_BAD+1}], vcc")
    e.salu(f"s_cmp_lg_u64 s[{S_BAD}:{S_BAD+1}], 0")
    if opt("forceslow", 0) == 1: e.salu("s_cmp_eq_u32 s2, s2")
    if opt("forceslow", 0) == 2: e.salu(f"s_cmp_eq_u32 s{S_W}, 2")
    e.salu("s_cbranch_scc1 L_slow")
    emit_ts_store(e)
    if opt("pad", 0):
        e.raw("s_waitcnt vmcnt(0)", "wait")
        e.label("L_pad")
        e.raw("s_memrealtime s[50:51]", "smem")
        e.raw("s_waitcnt lgkmcnt(0)", "wait")
        e.salu("s_sub_u32 s50, s50, s46")
        e.salu(f"s_cmp_lt_u32 s50, {opt('pad', 0) * 100}")
        e.salu("s_cbranch_scc1 L_pad")
    e.label("L_end")
    e.raw("s_endpgm", "other")
    r2, _ = insert_lgkm_waits(e.L, q2)
    r2, _ = insert_vm_waits(r2, vq2)
    r2 = fix_hazards(r2, ctx=body[-30:] + tailctl)
    return P, r1, body, tailctl, r2, extra_bar

def build_slow(extra_bar):
    s = Asm()
    Vs = s.V
    def VM(t): return 164 + t
    SS = 96; MX = 160; AL = 161; TM = 162
    def PP(t): return 112 + 8 * t
    s.label("L_slow")
    s.raw("s_waitcnt vmcnt(0) lgkmcnt(0)", "wait")
    s.salu(f"s_mov_b32 s{S_K+2}, 262144")
    s.salu(f"s_mov_b32 s{S_V+2}, 262144")
    for t in range(NT + 1):
        for k in range(4): s.L.append(q_load(t, k))
    for r in range(192): s.valu(f"v_accvgpr_write_b32 {ar(r)}, 0", (), R("a", r))
    for t in range(NT + 1):
        Vs(f"v_mov_b32 {vr(VL(t))}, 0", [], VL(t))
        Vs(f"v_mov_b32 {vr(VM(t))}, 0xff800000", [], VM(t))
    s.salu(f"s_lshl_b32 s{S_M0K}, s{S_W}, 14")
    s.salu(f"s_sub_u32 s32, s{S_M0K}, {LDS_V}")
    for j in range(4):
        Vs(f"v_subrev_u32 {vr(VDK(j))}, s{S_PIECE}, {vr(VDK(j))}", [VDK(j)], VDK(j))
        Vs(f"v_subrev_u32 {vr(VDV(j))}, s{S_PIECE}, {vr(VDV(j))}", [VDV(j)], VDV(j))
        for p in range(2): Vs(f"v_add_u32 {vr(VKA(j,p))}, s{S_M0K}, {vr(VKA(j,p))}", [VKA(j, p)], VKA(j, p))
        for c in range(4): Vs(f"v_add_u32 {vr(VVA(j,c))}, s32, {vr(VVA(j,c))}", [VVA(j, c)], VVA(j, c))
    s.raw("s_waitcnt vmcnt(0)", "wait")
    for t in range(NT + 1): scale_tile_pk(s, t, VT)
    s.salu("s_mov_b32 s33, 0")
    s.salu(f"s_mov_b32 s{S_CNT}, 16")
    s.label("L_slow_loop")
    def fill(which):
        so = S_KOFF if which == "K" else S_VOFF
        for pc in range(4):
            s.salu(f"s_add_u32 s{so}, s33, {(pc & 1) * 8192 + (pc >> 1) * 128}")
            s.raw(f"s_add_u32 m0, s{S_M0K}, {4096*pc}", "salu_m0")
            s.nop(1)
            for j in range(4): s.L.append(dma(which, j))
        s.raw("s_waitcnt vmcnt(0)", "wait")
    fill("K")
    def KF(j, k): return 192 + 16 * j + 4 * k
    for j in range(4):
        for k in range(4):
            s.raw(f"ds_read_b128 {ar(KF(j,k),4)}, {vr(VKA(j, k % 2))} offset:{(k//2)*8192}", "lds", R("v", VKA(j, k % 2)), R("a", KF(j, k), 4))
        s.raw("s_waitcnt lgkmcnt(0)", "wait")
    fill("V")
    for t in range(NT + 1):
        for j in range(4):
            for k in range(4):
                d = SS + 4 * j
                c = "0" if k == 0 else vr(d, 4)
                s.raw(f"v_mfma_f32_16x16x32_bf16 {vr(d,4)}, {ar(KF(j,k),4)}, {vr(VQ(t,k),4)}, {c}", "mfma",
                      R("a", KF(j, k), 4) | R("v", VQ(t, k), 4) | (R("v", d, 4) if k else set()), R("v", d, 4),
                      cacc=R("v", d, 4) if k else set())
        s.nop(10)
        Vs(f"v_max3_f32 {vr(MX)}, {vr(SS)}, {vr(SS+1)}, {vr(SS+2)}", [SS, SS + 1, SS + 2], MX)
        for r in range(3, 15, 2):
            Vs(f"v_max3_f32 {vr(MX)}, {vr(MX)}, {vr(SS+r)}, {vr(SS+r+1)}", [MX, SS + r, SS + r + 1], MX)
        Vs(f"v_max_f32 {vr(MX)}, {vr(MX)}, {vr(SS+15)}", [MX, SS + 15], MX)
        for sw in ("v_permlane32_swap_b32", "v_permlane16_swap_b32"):
            Vs(f"v_mov_b32 {vr(TM)}, {vr(MX)}", [MX], TM)
            s.nop(2)
            s.valu(f"{sw} {vr(MX)}, {vr(TM)}", RV(MX, TM), RV(MX, TM))
            s.nop(2)
            Vs(f"v_max_f32 {vr(MX)}, {vr(MX)}, {vr(TM)}", [MX, TM], MX)
        Vs(f"v_max_f32 {vr(MX)}, {vr(MX)}, {vr(VM(t))}", [MX, VM(t)], MX)
        Vs(f"v_sub_f32 {vr(AL)}, {vr(VM(t))}, {vr(MX)}", [MX, VM(t)], AL)
        Vs(f"v_exp_f32 {vr(AL)}, {vr(AL)}", [AL], AL, "trans")
        Vs(f"v_mov_b32 {vr(VM(t))}, {vr(MX)}", [MX], VM(t))
        for r in range(16): Vs(f"v_sub_f32 {vr(SS+r)}, {vr(SS+r)}, {vr(MX)}", [SS + r, MX], SS + r)
        for r in range(16): Vs(f"v_exp_f32 {vr(SS+r)}, {vr(SS+r)}", [SS + r], SS + r, "trans")
        Vs(f"v_mul_f32 {vr(VL(t))}, {vr(VL(t))}, {vr(AL)}", [VL(t), AL], VL(t))
        for r in range(16): Vs(f"v_add_f32 {vr(VL(t))}, {vr(VL(t))}, {vr(SS+r)}", [VL(t), SS + r], VL(t))
        for r in range(8): Vs(f"v_cvt_pk_bf16_f32 {vr(PP(t)+r)}, {vr(SS+2*r)}, {vr(SS+2*r+1)}", [SS + 2 * r, SS + 2 * r + 1], PP(t) + r)
        for r in range(32):
            tm = VT + (r % 8)
            s.valu(f"v_accvgpr_read_b32 {vr(tm)}, {ar(AO(t,0)+r)}", R("a", AO(t, 0) + r), R("v", tm))
            Vs(f"v_mul_f32 {vr(tm)}, {vr(tm)}, {vr(AL)}", [tm, AL], tm)
            s.valu(f"v_accvgpr_write_b32 {ar(AO(t,0)+r)}, {vr(tm)}", R("v", tm), R("a", AO(t, 0) + r))
    s.nop(10)
    def VF(p, dt): return 192 + 32 * p + 4 * dt
    for p in range(2):
        for dt in range(8):
            for h in range(2):
                j = 2 * p + h
                s.raw(f"ds_read_b64_tr_b16 {ar(VF(p,dt)+2*h,2)}, {vr(VVA(j, dt % 4))} offset:{(dt//4)*8192}", "lds",
                      R("v", VVA(j, dt % 4)), R("a", VF(p, dt) + 2 * h, 2))
            if dt % 4 == 3: s.raw("s_waitcnt lgkmcnt(0)", "wait")
    for t in range(NT + 1):
        for p in range(2):
            for dt in range(8):
                d = AO(t, dt)
                s.raw(f"v_mfma_f32_16x16x32_bf16 {ar(d,4)}, {ar(VF(p,dt),4)}, {vr(PP(t)+4*p,4)}, {ar(d,4)}", "mfma",
                      R("a", VF(p, dt), 4) | R("v", PP(t) + 4 * p, 4) | R("a", d, 4), R("a", d, 4), cacc=R("a", d, 4))
    s.nop(10)
    s.salu("s_add_u32 s33, s33, 16384")
    s.salu(f"s_sub_u32 s{S_CNT}, s{S_CNT}, 1")
    s.salu(f"s_cmp_lg_u32 s{S_CNT}, 0")
    s.salu("s_cbranch_scc1 L_slow_loop")
    for t in range(NT + 1):
        c = Chain(0, 0, 1.0)
        lr = lreduce_ops(c, VL(t), TM, [])
        rc = c.add(I(f"v_rcp_f32 {vr(MX)}, {vr(VL(t))}", "trans", RV(VL(t)), RV(MX)), [lr])
        if t < NT:
            for m in range(4):
                buf = 8 * m
                rd = [c.add(I(f"v_accvgpr_read_b32 {vr(buf+r)}, {ar(AO(t,2*m)+r)}", "valu", R("a", AO(t, 2 * m) + r), R("v", buf + r))) for r in range(8)]
                finish_chunk(c, buf, MX, rc, rd, S_ROW(t), 64 * m)
            for o in c.ops: emit_op(s, o)
            s.raw("s_waitcnt vmcnt(0)", "wait")
        else:
            for o in c.ops: emit_op(s, o)
            for r in range(32):
                s.valu(f"v_accvgpr_read_b32 {vr(r)}, {ar(AO(NT,0)+r)}", R("a", AO(NT, 0) + r), R("v", r))
            Vs(f"v_lshlrev_b32 {vr(TM)}, 4, {vr(VLANE)}", [VLANE], TM)
            Vs(f"v_add_u32 {vr(TM)}, s{S_M0K}, {vr(TM)}", [TM], TM)
            for dt in range(8):
                s.raw(f"ds_write_b128 {vr(TM)}, {vr(4*dt,4)} offset:{1024*dt}", "ldsw", RV(TM) | R("v", 4 * dt, 4))
            s.salu(f"s_lshl_b32 s33, s{S_W}, 11")
            Vs(f"v_add_u32 {vr(AL)}, s33, {vr(TM)}", [TM], AL)
            s.raw("s_waitcnt lgkmcnt(0)", "wait")
            for h in range(2):
                s.raw(f"ds_read_b128 {vr(32+4*h,4)}, {vr(AL)} offset:{1024*h}", "lds", RV(AL), R("v", 32 + 4 * h, 4))
            s.raw("s_waitcnt lgkmcnt(0)", "wait")
            s.salu(f"s_lshl_b32 s{S_T}, s{S_W}, 6")
            s.salu(f"s_add_u32 s{S_T}, s{S_T}, 81920")
            c = Chain(0, 0, 1.0)
            finish_chunk(c, 32, MX, None, [None] * 8, S_T, 0)
            for o in c.ops: emit_op(s, o)
    s.raw("s_waitcnt vmcnt(0)", "wait")
    s.raw("s_endpgm", "other")
    return fix_hazards(s.L)

def main():
    P, r1, body, tailctl, r2, extra_bar = build()
    slow = build_slow(extra_bar)
    lines = []
    ref = open("standalone__gqa_softmax__near_ridge.s.ref").read().splitlines()
    for l in ref:
        if l.startswith("; @launch"): break
        lines.append(l)
    lines.append("; @launch grid=(256,1,1) block=(256,1,1) lds=163840")
    lines.append('.amdgcn_target "amdgcn-amd-amdhsa--gfx950"')
    lines.append(".text")
    lines.append(f".globl {KNAME}")
    lines.append(".p2align 8")
    lines.append(f".type {KNAME},@function")
    lines.append(f"{KNAME}:")
    def dump(L):
        for i in L: lines.append(i.text if i.kind == "label" else "    " + i.text)
    dump(r1)
    lines.append(".p2align 6")
    lines.append("L_loop:")
    dump(body); dump(tailctl); dump(r2); dump(slow)
    lines.append('.section .rodata,"a"')
    lines.append(".p2align 6")
    lines.append(f".amdhsa_kernel {KNAME}")
    lines.append("  .amdhsa_next_free_vgpr 512")
    lines.append("  .amdhsa_next_free_sgpr 64")
    lines.append("  .amdhsa_accum_offset 256")
    lines.append("  .amdhsa_group_segment_fixed_size 0")
    lines.append("  .amdhsa_kernarg_size 48")
    lines.append("  .amdhsa_user_sgpr_count 2")
    lines.append("  .amdhsa_user_sgpr_kernarg_segment_ptr 1")
    lines.append("  .amdhsa_system_sgpr_workgroup_id_x 1")
    lines.append(".end_amdhsa_kernel")
    open(OUT, "w").write("\n".join(lines) + "\n")
    nn = lambda L: sum(1 for i in L if i.kind == "nop")
    print("written", OUT, "r1", len(r1), f"(nops {nn(r1)})", "body", len(body), "waits", sum(1 for i in body if i.kind == "wait"),
          "r2", len(r2), f"(nops {nn(r2)})", "slow", len(slow))

if __name__ == "__main__":
    if "stats" in OPTS:
        for g, l in enumerate(TEMPLATE): print(g, BM[g], l)
    else:
        main()
```

```python
import struct, sys, math

KNAME = "standalone__gqa_softmax__near_ridge_kernel"
OUT = sys.argv[1] if len(sys.argv) > 1 else "standalone__gqa_softmax__near_ridge.s"
OPTS = dict(a.split("=") for a in sys.argv[2:])
def opt(name, default):
    return type(default)(OPTS.get(name, default))

STF = {"none": "", "sc1": " sc1", "nt": " nt", "sc01": " sc0 sc1", "sc1nt": " sc1 nt"}[opt("stf", "sc1")]
QF = " nt" if opt("qnt", 1) else ""
KVF = " nt" if opt("kvnt", 1) else ""
def f32(x): return "0x%08x" % struct.unpack("<I", struct.pack("<f", x))[0]
SCALE = math.log2(math.e) / math.sqrt(128.0)

NT = 5
def VQ(t, s): return 16 * t + 4 * s
def SP(p, t): return 96 + 40 * p + 8 * t
SX = 176
def VL(t): return 180 + t
def VKA(j, p): return 186 + 2 * j + p
def VVA(j, c): return 194 + 4 * j + c
def VDK(j): return 210 + j
def VDV(j): return 214 + j
VLANE = 218
PX = 220
VZ = 224
VCHK = 228
VQOFF = 232
VST = 233
VXW = 234
VXR = 235
VT = 236
VTS0, VTS1, VTS2 = 219, 254, 255
def AO(t, dt): return 32 * t + 4 * dt
def AK(b, s): return 192 + 16 * b + 4 * s
def AV(b, i): return 224 + 16 * b + 4 * i
S_Q, S_K, S_V, S_O = 4, 8, 12, 16
S_W = 20; S_KOFF = 21; S_VOFF = 22; S_CNT = 23; S_M0K = 24; S_M0V = 25; S_PIECE = 26
S_C = 28
S_BAD = 30
S_T = 32
S_LO, S_HI = 54, 55
def S_ROW(t): return 56 + t
LDS_V = 65536
LDS_X = 131072

STAG = tuple(int(c) for c in opt("stag", "001120"))
SMAX = max(STAG); S = 16 + SMAX; RF = SMAX + 1
assert min(STAG[:NT]) == 0

def vr(n, k=1): return f"v{n}" if k == 1 else f"v[{n}:{n+k-1}]"
def ar(n, k=1): return f"a{n}" if k == 1 else f"a[{n}:{n+k-1}]"
def R(kind, n, k=1): return {(kind, n + i) for i in range(k)}
def RV(*regs): return set().union(*[R("v", r) for r in regs]) if regs else set()

class I:
    def __init__(s, text, kind, rd=(), wr=(), **kw):
        s.text, s.kind, s.rd, s.wr = text, kind, set(rd), set(wr)
        s.__dict__.update(kw)
    def __repr__(s): return s.text

class Asm:
    def __init__(s): s.L = []
    def raw(s, text, kind="other", rd=(), wr=(), **kw):
        s.L.append(I(text, kind, rd, wr, **kw)); return s.L[-1]
    def label(s, name): s.L.append(I(name + ":", "label"))
    def nop(s, n):
        while n > 0:
            k = min(n, 16); s.raw(f"s_nop {k-1}", "nop"); s.L[-1].ws = k; n -= k
    def salu(s, text): return s.raw(text, "salu")
    def valu(s, text, rd=(), wr=()): return s.raw(text, "valu", rd, wr)
    def V(s, txt, rd, wr, kind="valu"): return s.raw(txt, kind, RV(*rd), RV(wr) if wr is not None else ())

def mfma_qk(t, j, s):
    d = SX if t == NT else SP(j // 2, t) + 4 * (j % 2)
    a = AK(j % 2, s); b = VQ(t, s)
    c = "0" if s == 0 else vr(d, 4)
    rd = R("a", a, 4) | R("v", b, 4) | (R("v", d, 4) if s else set())
    return I(f"v_mfma_f32_16x16x32_bf16 {vr(d,4)}, {ar(a,4)}, {vr(b,4)}, {c}", "mfma", rd, R("v", d, 4),
             cacc=R("v", d, 4) if s else set())
def mfma_pv(t, p, dt, first=False):
    d = AO(t, dt); a = AV(dt // 4, dt % 4)
    b = PX if t == NT else SP(p, t)
    c = "0" if first else ar(d, 4)
    return I(f"v_mfma_f32_16x16x32_bf16 {ar(d,4)}, {ar(a,4)}, {vr(b,4)}, {c}", "mfma",
             R("a", a, 4) | R("v", b, 4) | (set() if first else R("a", d, 4)), R("a", d, 4),
             cacc=set() if first else R("a", d, 4))
def lds_k(j, s, stage):
    d = AK(j % 2, s)
    return I(f"ds_read_b128 {ar(d,4)}, {vr(VKA(j, s % 2))} offset:{stage*16384 + (s//2)*8192}", "lds",
             R("v", VKA(j, s % 2)), R("a", d, 4), grp=("k", j, stage))
def lds_v(p, dt, h, stage):
    d = AV(dt // 4, dt % 4) + 2 * h
    j = 2 * p + h
    g = opt("vgrp", 4)
    return I(f"ds_read_b64_tr_b16 {ar(d,2)}, {vr(VVA(j, dt % 4))} offset:{stage*16384 + (dt//4)*8192}", "lds",
             R("v", VVA(j, dt % 4)), R("a", d, 2), grp=("v", p, dt // g, stage))
def v_exp(r): return I(f"v_exp_f32 {vr(r)}, {vr(r)}", "trans", R("v", r), R("v", r))
def v_addl(t, r): return I(f"v_add_f32 {vr(VL(t))}, {vr(VL(t))}, {vr(r)}", "valu", R("v", r) | R("v", VL(t)), R("v", VL(t)))
def v_cvt(d, a, b): return I(f"v_cvt_pk_bf16_f32 {vr(d)}, {vr(a)}, {vr(b)}", "valu", R("v", a) | R("v", b), R("v", d))
def dma(which, j, tag=None):
    if which == "K":
        return I(f"buffer_load_dwordx4 {vr(VDK(j))}, s[{S_K}:{S_K+3}], s{S_KOFF} offen offset:{1024*j}{KVF} lds", "dma", R("v", VDK(j)), tag=tag)
    return I(f"buffer_load_dwordx4 {vr(VDV(j))}, s[{S_V}:{S_V+3}], s{S_VOFF} offen offset:{1024*j}{KVF} lds", "dma", R("v", VDV(j)), tag=tag)
def q_load(t, s):
    return I(f"buffer_load_dwordx4 {vr(VQ(t,s),4)}, {vr(VQOFF)}, s[{S_Q}:{S_Q+3}], s{S_ROW(t)} offen offset:{64*s}{QF}", "vmem",
             R("v", VQOFF), R("v", VQ(t, s), 4), isload=True)
def Vi(txt, rd, wr, kind="valu"): return I(txt, kind, RV(*rd), RV(*wr) if isinstance(wr, (list, tuple)) else RV(wr))

def step_spine(sg, act):
    M = []
    def Q(j):
        for t in range(NT):
            if act(t, sg):
                for s in range(4): M.append(("QK", t, j, s, sg))
        if j == 0 and act(NT, sg):
            for s in range(4): M.append(("QK", NT, 0, s, sg))
    def P(p, half, s2):
        for dt in range(4 * half, 4 * half + 4):
            for t in range(NT):
                if act(t, s2): M.append(("PV", t, p, dt, s2))
            if p == 0 and act(NT, s2): M.append(("PV", NT, 0, dt, s2))
    Q(0); P(1, 0, sg - 1); Q(1); P(1, 1, sg - 1); Q(2); P(0, 0, sg); Q(3); P(0, 1, sg)
    return M

class Op:
    count = 0
    def __init__(s, name, step, mk, cls, E, D, preds=(), seq=None, Emin=None):
        s.name, s.step, s.mk, s.cls, s.E, s.D, s.preds = name, step, mk, cls, E, D, list(preds)
        s.gap = None
        Op.count += 1
        s.seq = Op.count if seq is None else seq
        s.Emin = E if Emin is None else Emin

EXP_LAG = opt("explag", 4)
LDS_LEAD = opt("ldslead", 9)

class Program:
    def __init__(P, s0, s1, act):
        P.act, P.s0, P.s1 = act, s0, s1
        P.spine = []; P.base = {}
        for sg in range(s0, s1 + 1):
            P.base[sg] = len(P.spine); P.spine += step_spine(sg, act)
        P.base[s1 + 1] = len(P.spine)
        P.pos = {tag: i for i, tag in enumerate(P.spine)}
        P.first = {}; P.last = {}
        for i, (k, t, x, y, sg) in enumerate(P.spine):
            for key in ((k, x, y, sg), (k, x, sg), (k, x, y // 4, "h", sg)):
                P.first.setdefault(key, i); P.last[key] = i
        P.kready = {}; P.vready = {}
    def has(P, sg): return ("QK", 0, sg) in P.first
    def barpos(P, sg):
        if sg < getattr(P, "latebar", 0): return P.base[sg + 1] - 1 - opt("latebarshift", 0)
        return P.first[("QK", 3, 3, sg)] + opt("barshift", 0)
    def ops(P, sg):
        act, pos = P.act, P.pos
        ops = []
        BIG = 10 ** 6
        for t in range(NT + 1):
            if not act(t, sg): continue
            for j in range(4 if t < NT else 1):
                p = j // 2
                r0 = SX if t == NT else SP(p, t) + 4 * (j % 2)
                mend = pos[("QK", t, j, 3, sg)]
                cons = pos.get(("PV", t, p, 0, sg), BIG)
                dc = cons - 3
                exps = [Op(f"exp{t}{j}{k}", sg, lambda st, r=r0 + k: v_exp(r), "exp", mend + EXP_LAG, dc - 4, Emin=mend) for k in range(4)]
                adds = [Op(f"add{t}{j}{k}", sg, lambda st, r=r0 + k, t=t: v_addl(t, r), "plain", 0, dc - 2, [exps[k]]) for k in range(4)]
                dst = PX if t == NT else SP(p, t) + 2 * (j % 2)
                c0 = Op(f"cvt{t}{j}0", sg, lambda st, d=dst, r=r0: v_cvt(d, r, r + 1), "plain", 0, dc - 1, adds[0:2])
                c1 = Op(f"cvt{t}{j}1", sg, lambda st, d=dst + 1, r=r0: v_cvt(d, r + 2, r + 3), "plain", 0, dc, adds[2:4] + [c0])
                if j % 2 == 1:
                    prev = [o for o in ops if o.name == f"cvt{t}{j-1}1"][0]
                    c0.preds.append(prev); c1.preds.append(prev)
                for o in exps + adds + [c0, c1]: o.hardD = cons - 1
                for k, o in enumerate(exps + adds + [c0, c1]): o.seq = mend * 100 + k
                ops += exps + adds + [c0, c1]
        kr = P.kready.get(sg, P.barpos(sg - 1) + 1 if P.has(sg - 1) else -1)
        vrdy = P.vready.get(sg, P.barpos(sg - 1) + 1 if P.has(sg - 1) else -1)
        for j in range(4):
            fu = P.first[("QK", j, sg)]
            for s in range(4):
                if j >= 2: E = P.last[("QK", j - 2, s, sg)]
                else: E = P.last.get(("QK", j + 2, s, sg - 1), -1)
                E = max(E, kr)
                o = Op(f"ldk{j}{s}", sg, lambda st, j=j, s=s: lds_k(j, s, st), "mem", E, fu - LDS_LEAD - 3 + s)
                o.hardD = fu - 1; ops.append(o)
        g = opt("vgrp", 4)
        for p in range(2):
            for dt in range(8):
                if ("PV", p, dt, sg) not in P.first: continue
                fu = P.first[("PV", p, dt - dt % g, sg)]
                if p == 0: E = P.last.get(("PV", 1, dt, sg - 1), -1)
                else: E = P.last[("PV", 0, dt, sg)]
                E = max(E, vrdy)
                for h in range(2):
                    o = Op(f"ldv{p}{dt}{h}", sg, lambda st, p=p, dt=dt, h=h: lds_v(p, dt, h, st), "mem", E,
                           fu - LDS_LEAD - 2 * (g - 1 - dt % g) - 1 + h)
                    o.hardD = P.first[("PV", p, dt, sg)] - 1; ops.append(o)
        return ops
    def dma_ops(P, sg):
        ops = []; prev = None
        E = P.barpos(sg) + 1
        seq = [("m0V",), ("V", 0), ("V", 1), ("V", 2), ("V", 3), ("m0K",), ("K", 0), ("K", 1), ("K", 2), ("K", 3), ("adv",)]
        sp = opt("dmaspread", 5)
        for n, it in enumerate(seq):
            cls = "free"
            if it[0] == "m0V":
                mk = lambda st: I(f"s_add_u32 m0, s{S_M0V}, {((st + 3) % 4) * 16384}", "salu_m0", pre="V")
            elif it[0] == "m0K":
                mk = lambda st: I(f"s_add_u32 m0, s{S_M0K}, {(st % 4) * 16384}", "salu_m0", pre="K")
            elif it[0] == "adv":
                mk = lambda st: [I(f"s_add_u32 s{S_KOFF}, s{S_KOFF}, 16384", "salu"), I(f"s_add_u32 s{S_VOFF}, s{S_VOFF}, 16384", "salu"),
                                 I(f"s_bitset0_b32 s{S_KOFF}, 18", "salu"), I(f"s_bitset0_b32 s{S_VOFF}, 18", "salu")]
            else:
                mk = lambda st, it=it: dma(it[0], it[1]); cls = "mem"
            o = Op(f"dma{n}", sg, mk, cls, E + sp * n, E + sp * n + 8, [prev] if prev else [])
            o.blk = (it[0][-1], sg + (3 if it[0][-1] == "V" else 4))
            ops.append(o); prev = o
        return ops

def schedule(ops, g0, g1, flush=False):
    gaps = {}
    LW = opt("ldswin", 28)
    PANIC = opt("panic", 14)
    pend = sorted(ops, key=lambda o: (o.D, o.seq))
    for g in range(g0, g1):
        last = flush and g == g1 - 1
        def ready(o): return o.E <= g and all(p.gap is not None and p.gap < g for p in o.preds)
        cand = [o for o in pend if ready(o)]
        placed = [o for o in cand if o.cls == "free"]
        mem = [o for o in cand if o.cls == "mem"]
        exps = sorted([o for o in cand if o.cls == "exp"], key=lambda o: o.seq)
        plain = sorted([o for o in cand if o.cls == "plain"], key=lambda o: o.seq)
        low = sorted([o for o in cand if o.cls == "low"], key=lambda o: o.seq)
        soft = [o for o in pend if o.cls in ("exp", "plain") and o.E <= g + 200]
        slack = min([o.D - g for o in soft], default=999)
        forced = [o for o in mem if o.D <= g]
        due = [o for o in mem if g >= o.D - LW and o not in forced]
        used = 0
        if forced:
            placed += forced; used += 4 * len(forced)
        elif due and plain:
            placed.append(due[0]); used += 4
        if used:
            if plain and used < 8: placed.append(plain.pop(0)); used += 4
        elif len(plain) >= opt("backlog", 3) or (plain and not exps):
            placed += plain[:2]; used += 4 * len(plain[:2]); plain = plain[2:]
        elif exps:
            placed.append(exps.pop(0)); used += 8
        elif due:
            placed.append(due[0]); used += 4
        if slack < PANIC and plain:
            placed.append(plain.pop(0)); used += 4
        for o in exps + plain:
            if o.D <= g and o not in placed: placed.append(o)
        for o in low:
            if used < 8 or o.D <= g: placed.append(o); used += 4
        order = {"free": 0, "mem": 1, "exp": 2, "plain": 3, "low": 3}
        placed.sort(key=lambda o: order[o.cls])
        for o in placed:
            o.gap = g; pend.remove(o)
        again = True
        while again:
            again = False
            need = set()
            def mark(o):
                if o.gap is None and id(o) not in need:
                    need.add(id(o))
                    for p in o.preds: mark(p)
            for o in pend:
                if last or getattr(o, "hardD", 10 ** 9) <= g: mark(o)
            for o in sorted(pend, key=lambda o: (o.D, o.seq)):
                if id(o) in need and all(p.gap is not None for p in o.preds):
                    assert o.Emin <= g or last, f"cannot meet hard deadline {o.name} step {o.step} g {g} Emin {o.Emin}"
                    o.gap = g; placed.append(o); pend.remove(o); again = True
                    break
        gaps[g] = placed
    return gaps, pend

def build_template():
    P = Program(0, 10, lambda t, sg: True)
    NBk = P.base[1] - P.base[0]
    allops = []
    for b in range(1, 10): allops += P.ops(b) + P.dma_ops(b)
    gaps, pend = schedule(allops, 0, P.base[10])
    def rel(b): return [[(o.step - b, o.name) for o in gaps[P.base[b] + g]] for g in range(NBk)]
    assert rel(5) == rel(6) == rel(7), "schedule not periodic"
    return rel(6), NBk, [tag[:4] + (tag[4] - 1,) for tag in P.spine[P.base[1]:P.base[2]]], P.barpos(1) - P.base[1]
TEMPLATE, NB, BM, BAR_POS = build_template()
TWHERE = {name: (d, g) for g, l in enumerate(TEMPLATE) for d, name in l}

def emit_mfma(a, tag):
    k, t, x, y, sg = tag
    if k == "QK": a.L.append(mfma_qk(t, x, y))
    else: a.L.append(mfma_pv(t, x, y, first=(x == 0 and sg == STAG[t])))
def emit_op(a, o, tagdma=True):
    r = o.mk(o.step % 4)
    for i in (r if isinstance(r, list) else [r]):
        if i.kind == "dma" and getattr(i, "tag", None) is None: i.tag = o.blk
        a.L.append(i)

def insert_lgkm_waits(L, carry_in=None):
    out = []
    q = list(carry_in or [])
    for i in L:
        if i.kind == "wait" and "lgkmcnt(0)" in i.text: q = []
        need = -1
        touched = i.rd | i.wr
        for k, o in enumerate(q):
            if o.wr & touched: need = k
        if getattr(i, "needlds", False): need = len(q) - 1
        if need >= 0:
            gr = getattr(q[need], "grp", None)
            if gr is not None:
                for k, o in enumerate(q):
                    if getattr(o, "grp", None) == gr: need = max(need, k)
            n = min(14, len(q) - 1 - need)
            out.append(I(f"s_waitcnt lgkmcnt({n})", "wait"))
            q = q[len(q) - n:] if n else []
        out.append(i)
        if i.kind in ("lds", "ldsw"): q.append(i)
    return out, q

def insert_vm_waits(L, carry_in=None):
    out = []
    q = list(carry_in or [])
    issued = {}
    for i in L:
        if i.kind == "dma": issued[i.tag] = issued.get(i.tag, 0) + 1
        if carry_in is None and getattr(i, "needs", None) is not None:
            for tg in i.needs: assert issued.get(tg, 0) == 4, f"{tg} not issued before its barrier"
        if i.kind == "wait" and "vmcnt(" in i.text:
            n = int(i.text.split("vmcnt(")[1].split(")")[0]); q = q[len(q) - n:] if n < len(q) else q
            if n == 0: q = []
        need = -1
        touched = i.rd | i.wr
        for k, o in enumerate(q):
            if getattr(o, "isload", False) and (o.wr & touched): need = k
            nd = getattr(i, "needs", None)
            if nd is not None and o.kind == "dma" and (nd == "all" or o.tag in nd): need = k
        if need >= 0:
            n = min(62, len(q) - 1 - need)
            out.append(I(f"s_waitcnt vmcnt({n})", "wait"))
            q = q[len(q) - n:] if n else []
        out.append(i)
        if i.kind in ("dma", "vmem"): q.append(i)
    return out, q

def hazard_need(p, c):
    need = 0
    if p.kind == "mfma":
        if c.kind in ("valu", "trans", "lds", "dma", "vmem", "ldsw") and (p.wr & (c.rd | c.wr)): need = 8
        if c.kind == "mfma":
            cacc = getattr(c, "cacc", set())
            if p.wr & (c.rd - cacc): need = 8
            elif (p.wr & cacc) and p.wr != cacc: need = 6
        if c.kind in ("valu", "trans") and (c.wr & getattr(p, "cacc", set())): need = max(need, 3)
    elif p.kind in ("valu", "trans"):
        if c.kind == "mfma" and (p.wr & c.rd): need = 2
        if p.kind == "trans" and c.kind in ("valu", "vmem", "ldsw") and (p.wr & c.rd): need = 1
        if "permlane" in c.text and (p.wr & (c.rd | c.wr)): need = 2
        if "readfirstlane" in c.text and (p.wr & c.rd): need = 1
        if any(k == "s" for k, _ in (p.wr & c.rd)):
            need = max(need, 5 if c.kind in ("vmem", "dma") else 2 if c.kind in ("valu", "trans") else 0)
    elif p.kind == "salu_m0":
        if c.kind == "dma": need = 1
    elif p.kind in ("vmem", "ldsw") and ("store" in p.text or "write" in p.text):
        if c.kind in ("valu", "trans") and (c.wr & p.rd): need = 2
    return need
def ws(i): return getattr(i, "ws", 1)
def fix_hazards(L, ctx=(), report=None):
    out = list(ctx); n0 = len(out)
    for c in L:
        if c.kind != "label":
            extra = 0; dist = 0
            for p in reversed(out):
                if p.kind == "label": continue
                e = hazard_need(p, c) - dist
                if e > extra: extra = e; who = p
                dist += ws(p)
                if dist >= 10: break
            if extra > 0:
                if report: print(f"HAZARD[{report}]: {who.text} -> {c.text} short by {extra}")
                n = I(f"s_nop {extra-1}", "nop"); n.ws = extra; out.append(n)
        out.append(c)
    return out[n0:]

TS = opt("ts", 0)
DBG = opt("dbg", 0)
def emit_ts(a):
    if not TS: return
    a.raw("s_memtime s[50:51]", "smem")
    a.raw("s_memrealtime s[52:53]", "smem")
    a.raw("s_waitcnt lgkmcnt(0)", "wait")
    a.salu("s_lshl_b64 exec, 1, s48")
    a.raw(f"v_mov_b32 v{VTS0}, s50", "valu", (), R("v", VTS0))
    a.raw(f"v_mov_b32 v{VTS1}, s52", "valu", (), R("v", VTS1))
    a.salu("s_mov_b64 exec, -1")
    a.salu("s_add_u32 s48, s48, 1")
def emit_ts_store(a):
    if not TS: return
    emit_ts(a)
    a.raw("s_waitcnt vmcnt(0)", "wait")
    emit_ts(a)
    a.salu(f"s_lshl_b32 s49, s2, 2")
    a.salu(f"s_add_u32 s49, s49, s{S_W}")
    if DBG:
        a.salu(f"s_cmp_eq_u32 s49, {opt('dbgwave', 0)}")
        a.salu(f"s_cselect_b32 s49, 0, 16")
    a.salu(f"s_lshl_b32 s49, s49, 9")
    if DBG:
        a.valu(f"v_readfirstlane_b32 s50, v{VTS1}", R("v", VTS1), R("s", 50))
        a.nop(2)
        a.valu(f"v_subrev_u32 v{VTS0}, s50, v{VTS1}", R("v", VTS1), R("v", VTS0))
    a.valu(f"v_lshlrev_b32 v{VTS2}, 2, v{VLANE}", R("v", VLANE), R("v", VTS2))
    a.nop(2)
    a.raw(f"buffer_store_dword v{VTS0}, v{VTS2}, s[44:47], s49 offen", "vmem", R("v", VTS0) | R("v", VTS2))
    a.raw(f"buffer_store_dword v{VTS1}, v{VTS2}, s[44:47], s49 offen offset:256", "vmem", R("v", VTS1) | R("v", VTS2))
    a.raw("s_waitcnt vmcnt(0)", "wait")

def scale_tile_pk(a, t, tmp0, hook=None):
    for r in range(16):
        q = VQ(t, 0) + r
        tmp = tmp0 + 2 * (r % 4)
        a.V(f"v_lshlrev_b32 {vr(tmp)}, 16, {vr(q)}", [q], tmp)
        a.V(f"v_and_b32 {vr(tmp+1)}, 0xffff0000, {vr(q)}", [q], tmp + 1)
        a.valu(f"v_pk_mul_f32 {vr(tmp,2)}, {vr(tmp,2)}, s[{S_C}:{S_C+1}]", R("v", tmp, 2), R("v", tmp, 2))
        a.V(f"v_cvt_pk_bf16_f32 {vr(q)}, {vr(tmp)}, {vr(tmp+1)}", [tmp, tmp + 1], q)
        if hook: hook(r)

def scale_ops(t, E, D):
    ops = []; n = 80; k = 0
    tmp0 = (VT if t == NT else SP(0, t))
    lastc = {}
    def mk(name, txt, rd, wr, preds):
        nonlocal k
        d = E + (D - E) * (k + 1) // n
        o = Op(name, STAG[t] - 1, lambda st: Vi(txt, rd, wr), "low", E, d, preds); o.hardD = D + 2; k += 1
        ops.append(o); return o
    for r in range(16):
        q = VQ(t, 0) + r; tmp = tmp0 + 2 * (r % 4)
        pr = [lastc[r - 4]] if r >= 4 else []
        lo = mk(f"qs{t}{r}a", f"v_lshlrev_b32 {vr(tmp)}, 16, {vr(q)}", [q], tmp, pr)
        hi = mk(f"qs{t}{r}b", f"v_and_b32 {vr(tmp+1)}, 0xffff0000, {vr(q)}", [q], tmp + 1, pr)
        m0 = mk(f"qs{t}{r}c", f"v_mul_f32 {vr(tmp)}, s{S_C}, {vr(tmp)}", [tmp], tmp, [lo])
        m1 = mk(f"qs{t}{r}d", f"v_mul_f32 {vr(tmp+1)}, s{S_C}, {vr(tmp+1)}", [tmp + 1], tmp + 1, [hi])
        lastc[r] = mk(f"qs{t}{r}e", f"v_cvt_pk_bf16_f32 {vr(q)}, {vr(tmp)}, {vr(tmp+1)}", [tmp, tmp + 1], q, [m0, m1])
    return ops

def chk_mfma(pk):
    return I(f"v_mfma_f32_16x16x32_bf16 {vr(VCHK,4)}, {vr(VZ,4)}, {vr(pk,4)}, {vr(VCHK,4)}", "mfma",
             R("v", VZ, 4) | R("v", pk, 4) | R("v", VCHK, 4), R("v", VCHK, 4), cacc=R("v", VCHK, 4))
def range_check(l):
    return [I(f"v_cmp_nle_f32 vcc, s{S_LO}, {vr(l)}", "valu", R("v", l), R("s", 106)),
            I(f"s_or_b64 s[{S_BAD}:{S_BAD+1}], s[{S_BAD}:{S_BAD+1}], vcc", "salu"),
            I(f"v_cmp_nge_f32 vcc, s{S_HI}, {vr(l)}", "valu", R("v", l), R("s", 106)),
            I(f"s_or_b64 s[{S_BAD}:{S_BAD+1}], s[{S_BAD}:{S_BAD+1}], vcc", "salu")]

class Chain:
    def __init__(c, step, E, rate):
        c.step, c.E, c.rate, c.k, c.ops = step, E, rate, 0, []
    def add(c, ins, preds=(), E=None, cls="low"):
        e = max(c.E, E if E is not None else c.E)
        d = max(e, c.E + int(c.k / c.rate))
        o = Op(f"ep{len(c.ops)}", c.step, (lambda st, ins=ins: ins), cls, e, d, [p for p in preds if p is not None])
        c.k += 1; c.ops.append(o); return o

def lreduce_ops(c, l, tmp, preds):
    prev = preds
    for sw in ("v_permlane32_swap_b32", "v_permlane16_swap_b32"):
        m = c.add(Vi(f"v_mov_b32 {vr(tmp)}, {vr(l)}", [l], tmp), prev)
        s_ = c.add(I(f"{sw} {vr(l)}, {vr(tmp)}", "valu", RV(l, tmp), RV(l, tmp)), [m])
        prev = [c.add(Vi(f"v_add_f32 {vr(l)}, {vr(l)}, {vr(tmp)}", [l, tmp], l), [s_])]
    return prev[0]

def finish_chunk(c, buf, rinv, rc, preds, srow, off, pk_ok=False):
    if pk_ok:
        mul = []
        for r in range(0, 8, 2):
            o = c.add(I(f"v_pk_mul_f32 {vr(buf+r,2)}, {vr(buf+r,2)}, {vr(rinv,2)} op_sel_hi:[1,0]", "valu",
                        R("v", buf + r, 2) | R("v", rinv), R("v", buf + r, 2)), [preds[r], preds[r + 1], rc])
            mul += [o, o]
    else:
        mul = [c.add(Vi(f"v_mul_f32 {vr(buf+r)}, {vr(rinv)}, {vr(buf+r)}", [rinv, buf + r], buf + r), [preds[r], rc]) for r in range(8)]
    cv = []
    for k in range(4):
        cv.append(c.add(v_cvt(buf + k, buf + 2 * k, buf + 2 * k + 1), [mul[2 * k], mul[2 * k + 1]] + cv[-1:]))
    sw = [c.add(I(f"v_permlane16_swap_b32 {vr(buf+k)}, {vr(buf+2+k)}", "valu", RV(buf + k, buf + 2 + k), RV(buf + k, buf + 2 + k)), [cv[3]]) for k in range(2)]
    st = c.add(I(f"buffer_store_dwordx4 {vr(buf,4)}, {vr(VST)}, s[{S_O}:{S_O+3}], s{srow} offen offset:{off}{STF}", "vmem",
                 R("v", buf, 4) | R("v", VST)), sw)
    ck = c.add(chk_mfma(buf), sw)
    return [st, ck]

LO_THR = f32(2.0 ** -24)
HI_THR = f32(2.0 ** 64)

def build():
    act = lambda t, sg: 0 <= sg - STAG[t] < 16
    P = Program(0, S, act)
    P.latebar = min(opt("kbarlate", 2), RF - 1)
    for sg in range(P.latebar): P.kready[sg + 1] = P.barpos(sg)
    bars = {}
    for sg in range(S):
        bars[P.barpos(sg)] = {("K", sg + 1), ("V", sg + 1)}
    NVB = opt("nvbar", 3)
    for sg in range(min(NVB, RF)):
        g = P.first[("QK", opt("vbarphase", 2), sg)] + opt("vbarshift", 0)
        bars[g] = {("V", sg)}; P.vready[sg] = g + 1
        if sg > 0: bars[P.barpos(sg - 1)].discard(("V", sg))
    bars[P.barpos(S - 1)] = "all"
    allops = {}
    for sg in range(S):
        allops[sg] = P.ops(sg) + P.dma_ops(sg)
    free1, free2 = [], []
    for sg in range(S):
        for o in allops[sg]:
            d, g = TWHERE[o.name]
            x = sg - d
            if RF <= x <= 15:
                o.gap = P.base[x] + g
            elif o.name.startswith("dma"):
                if x < RF: free1.append(o)
                elif o.blk[1] < S and o.name != "dma10": free2.append(o)
            elif sg < RF or (x < RF): free1.append(o)
            else: free2.append(o)
    END1 = P.base[RF]
    a = Asm()
    T0, T1, T2, T3, T4, T5 = [VT + 8 + k for k in range(6)]
    a.salu("s_cmp_ge_u32 s2, 256")
    a.salu("s_cbranch_scc1 L_end")
    a.raw("s_load_dwordx8 s[36:43], s[0:1], 0", "smem")
    if opt("pad", 0): a.raw("s_memrealtime s[46:47]", "smem")
    if opt("gpad", 0):
        a.raw("s_load_dwordx2 s[48:49], s[0:1], 32", "smem")
        a.raw("s_waitcnt lgkmcnt(0)", "wait")
        a.salu("s_not_b32 s50, s46")
        a.raw("v_mov_b32 v254, s50", "valu", (), R("v", 254))
        a.raw("v_mov_b32 v255, 0", "valu", (), R("v", 255))
        a.salu("s_mov_b64 exec, 1")
        a.raw("global_atomic_umax v255, v254, s[48:49] sc1", "vmem", RV(254, 255))
        a.salu("s_mov_b64 exec, -1")
    if opt("cpf", 1):
        a.salu("s_getpc_b64 s[62:63]")
        a.label("L_pc")
        a.V(f"v_lshlrev_b32 {vr(VT+6)}, 7, v0", [0], VT + 6)
        a.V(f"v_add_u32 {vr(VT+7)}, 32768, {vr(VT+6)}", [VT + 6], VT + 7)
        a.V(f"v_min_u32 {vr(VT+6)}, L_end-L_pc, {vr(VT+6)}", [VT + 6], VT + 6)
        a.V(f"v_min_u32 {vr(VT+7)}, L_end-L_pc, {vr(VT+7)}", [VT + 7], VT + 7)
    def cpf():
        for k in range(opt("cpfn", 2)):
            a.raw(f"global_load_dword {vr(VT+16+k)}, {vr(VT+6+k)}, s[62:63]", "vmem", RV(VT + 6 + k), RV(VT + 16 + k), isload=True)
    if opt("cpf", 1) == 1: cpf()
    if TS:
        a.raw(f"s_load_dwordx2 s[44:45], s[0:1], {32 if DBG else 40}", "smem")
        a.salu("s_mov_b32 s48, 0")
        a.valu(f"v_mov_b32 v{VTS0}, 0", (), R("v", VTS0))
        a.valu(f"v_mov_b32 v{VTS1}, 0", (), R("v", VTS1))
        emit_ts(a)
        a.salu("s_and_b32 s45, s45, 0xffff")
        a.salu(f"s_mov_b32 s46, {256 if DBG else 0x80000}")
        a.salu("s_mov_b32 s47, 0x00020000")
    V = a.V
    V(f"v_and_b32 {vr(VLANE)}, 63, v0", [0], VLANE)
    V(f"v_lshrrev_b32 {vr(T0)}, 6, v0", [0], T0)
    V(f"v_and_b32 {vr(T1)}, 15, v0", [0], T1)
    a.valu(f"v_readfirstlane_b32 s{S_W}, {vr(T0)}", R("v", T0), R("s", S_W))
    V(f"v_lshrrev_b32 {vr(T2)}, 4, {vr(VLANE)}", [VLANE], T2)
    V(f"v_lshrrev_b32 {vr(T3)}, 3, {vr(VLANE)}", [VLANE], T3)
    V(f"v_and_b32 {vr(T4)}, 7, {vr(VLANE)}", [VLANE], T4)
    a.salu("s_and_b32 s32, s2, 7")
    a.salu("s_lshr_b32 s33, s2, 4")
    a.salu("s_lshl_b32 s33, s33, 3")
    a.salu("s_add_u32 s32, s32, s33")
    a.salu("s_lshr_b32 s33, s2, 3")
    a.salu("s_and_b32 s33, s33, 1")
    a.salu("s_lshl_b32 s34, s32, 1")
    a.salu("s_add_u32 s34, s34, s33")
    a.salu("s_mul_i32 s35, s34, 86016")
    a.salu("s_lshl_b32 s33, s32, 18")
    a.salu(f"s_mul_i32 s{S_ROW(0)}, s{S_W}, 20480")
    for t in range(1, NT): a.salu(f"s_add_u32 s{S_ROW(t)}, s{S_ROW(0)}, {t*4096}")
    a.salu(f"s_mov_b32 s{S_ROW(NT)}, 81920")
    a.salu(f"s_and_b32 s{S_PIECE}, s{S_W}, 1")
    a.salu(f"s_lshl_b32 s{S_PIECE}, s{S_PIECE}, 13")
    a.salu(f"s_lshr_b32 s34, s{S_W}, 1")
    a.salu("s_lshl_b32 s34, s34, 7")
    a.salu(f"s_add_u32 s{S_PIECE}, s{S_PIECE}, s34")
    a.salu(f"s_lshl_b32 s{S_M0K}, s{S_W}, 12")
    a.salu(f"s_add_u32 s{S_M0V}, s{S_M0K}, {LDS_V}")
    V(f"v_lshlrev_b32 {vr(VST)}, 8, {vr(T1)}", [T1], VST)
    V(f"v_lshl_add_u32 {vr(VQOFF)}, {vr(T2)}, 4, {vr(VST)}", [T2, VST], VQOFF)
    V(f"v_lshrrev_b32 {vr(T5)}, 1, {vr(T2)}", [T2], T5)
    V(f"v_xor_b32 {vr(T0)}, {vr(T2)}, {vr(T5)}", [T2, T5], T0)
    for par in range(2):
        if par == 1: V(f"v_xor_b32 {vr(T0)}, 5, {vr(T0)}", [T0], T0)
        V(f"v_xor_b32 {vr(VDK(par))}, {vr(T4)}, {vr(T0)}", [T4, T0], VDK(par))
        V(f"v_lshlrev_b32 {vr(VDK(par))}, 4, {vr(VDK(par))}", [VDK(par)], VDK(par))
        V(f"v_lshl_add_u32 {vr(VDK(par))}, {vr(T3)}, 8, {vr(VDK(par))}", [T3, VDK(par)], VDK(par))
        V(f"v_add_u32 {vr(VDK(par))}, s{S_PIECE}, {vr(VDK(par))}", [VDK(par)], VDK(par))
    V(f"v_add_u32 {vr(VDK(2))}, 2048, {vr(VDK(0))}", [VDK(0)], VDK(2))
    V(f"v_add_u32 {vr(VDK(3))}, 3072, {vr(VDK(1))}", [VDK(1)], VDK(3))
    V(f"v_add_u32 {vr(VDK(1))}, 1024, {vr(VDK(1))}", [VDK(1)], VDK(1))
    V(f"v_lshrrev_b32 {vr(T0)}, 1, {vr(T4)}", [T4], T0)
    V(f"v_xor_b32 {vr(T0)}, {vr(T0)}, {vr(T2)}", [T0, T2], T0)
    V(f"v_lshlrev_b32 {vr(T0)}, 5, {vr(T0)}", [T0], T0)
    V(f"v_and_b32 {vr(T5)}, 1, {vr(VLANE)}", [VLANE], T5)
    V(f"v_lshl_add_u32 {vr(T0)}, {vr(T5)}, 4, {vr(T0)}", [T5, T0], T0)
    V(f"v_lshl_add_u32 {vr(T0)}, {vr(T3)}, 8, {vr(T0)}", [T3, T0], T0)
    V(f"v_add_u32 {vr(VDV(0))}, s{S_PIECE}, {vr(T0)}", [T0], VDV(0))
    for j in range(1, 4): V(f"v_add_u32 {vr(VDV(j))}, {1024*j}, {vr(VDV(0))}", [VDV(0)], VDV(j))
    a.raw("s_waitcnt lgkmcnt(0)", "wait")
    def srd(d, lo, off, size):
        a.salu(f"s_add_u32 s{d}, s{lo}, s{off}")
        a.salu(f"s_addc_u32 s{d+1}, s{lo+1}, 0")
        a.salu(f"s_and_b32 s{d+1}, s{d+1}, 0xffff")
        a.salu(f"s_mov_b32 s{d+2}, {size}")
        a.salu(f"s_mov_b32 s{d+3}, 0x00020000")
    srd(S_K, 38, 33, 262144)
    srd(S_Q, 36, 35, 86016)
    srd(S_V, 40, 33, 262144)
    srd(S_O, 42, 35, 86016)
    order = opt("order", "K0,Q0,Q5,Q1,V0,K1,Q2,Q3,V1,K2,Q4,V2,K3").split(",")
    assert sorted(order) == sorted(["K0", "K1", "K2", "K3", "V0", "V1", "V2"] + [f"Q{t}" for t in range(6)])
    def load_instrs(item):
        k, n = item[0], int(item[1])
        if k == "Q": return [q_load(n, s) for s in range(4)]
        so, base = (S_KOFF, S_M0K) if k == "K" else (S_VOFF, S_M0V)
        L = [dma(k, j, tag=(k, n)) for j in range(4)]
        return [[I(f"s_mov_b32 s{so}, {n*16384}", "salu"), I(f"s_add_u32 m0, s{base}, {n*16384}", "salu_m0"), L[0]]] + L[1:]
    loadq = [x for item in order for x in load_instrs(item)]
    allloads = list(loadq)
    def core(x): return x[-1] if isinstance(x, list) else x
    nissued = [0]
    def issue(n):
        for _ in range(n):
            if loadq:
                x = loadq.pop(0); nissued[0] += 1
                a.L += x if isinstance(x, list) else [x]
    WIN = opt("win", 12)
    if TS == 2: emit_ts(a)
    issue(opt("npre", 12))
    if TS == 2: emit_ts(a)
    if opt("cpf", 1) == 2: cpf()
    a.salu(f"s_mov_b32 s{S_C}, {f32(SCALE)}")
    a.salu(f"s_mov_b32 s{S_C+1}, {f32(SCALE)}")
    a.salu(f"s_mov_b64 s[{S_BAD}:{S_BAD+1}], 0")
    a.salu(f"s_mov_b32 s{S_LO}, {LO_THR}")
    a.salu(f"s_mov_b32 s{S_HI}, {HI_THR}")
    V(f"v_and_b32 {vr(T0)}, 1, {vr(T2)}", [T2], T0)
    V(f"v_lshl_add_u32 {vr(VST)}, {vr(T0)}, 5, {vr(VST)}", [T0, VST], VST)
    V(f"v_lshrrev_b32 {vr(T0)}, 1, {vr(T2)}", [T2], T0)
    V(f"v_lshl_add_u32 {vr(VST)}, {vr(T0)}, 4, {vr(VST)}", [T0, VST], VST)
    V(f"v_lshrrev_b32 {vr(T0)}, 1, {vr(T1)}", [T1], T0)
    V(f"v_lshrrev_b32 {vr(T5)}, 1, {vr(T0)}", [T0], T5)
    V(f"v_lshrrev_b32 {vr(T3)}, 2, {vr(T0)}", [T0], T3)
    V(f"v_xor_b32 {vr(T5)}, {vr(T5)}, {vr(T3)}", [T5, T3], T5)
    V(f"v_and_b32 {vr(T5)}, 1, {vr(T5)}", [T5], T5)
    V(f"v_xor_b32 {vr(T0)}, {vr(T0)}, {vr(T5)}", [T0, T5], T0)
    V(f"v_xor_b32 {vr(T0)}, {vr(T0)}, {vr(T2)}", [T0, T2], T0)
    for j in range(4):
        a.salu(f"s_xor_b32 s{32+j}, s{S_W}, {j}")
        a.salu(f"s_lshl_b32 s{32+j}, s{32+j}, 11")
    for p in range(2):
        if p == 1: V(f"v_xor_b32 {vr(T0)}, 4, {vr(T0)}", [T0], T0)
        V(f"v_lshlrev_b32 {vr(T5)}, 4, {vr(T0)}", [T0], T5)
        V(f"v_lshl_add_u32 {vr(T5)}, {vr(T1)}, 7, {vr(T5)}", [T1, T5], T5)
        for j in range(4): V(f"v_add_u32 {vr(VKA(j,p))}, s{32+j}, {vr(T5)}", [T5], VKA(j, p))
    V(f"v_lshrrev_b32 {vr(T0)}, 2, {vr(T1)}", [T1], T0)
    V(f"v_lshl_add_u32 {vr(T0)}, {vr(T2)}, 2, {vr(T0)}", [T2, T0], T0)
    V(f"v_lshlrev_b32 {vr(T0)}, 7, {vr(T0)}", [T0], T0)
    V(f"v_and_b32 {vr(T5)}, 3, {vr(T1)}", [T1], T5)
    V(f"v_lshl_add_u32 {vr(T0)}, {vr(T5)}, 3, {vr(T0)}", [T5, T0], T0)
    V(f"v_add_u32 {vr(T0)}, {LDS_V}, {vr(T0)}", [T0], T0)
    V(f"v_lshrrev_b32 {vr(T5)}, 3, {vr(T1)}", [T1], T5)
    V(f"v_lshl_add_u32 {vr(T5)}, {vr(T2)}, 1, {vr(T5)}", [T2, T5], T5)
    V(f"v_and_b32 {vr(T5)}, 3, {vr(T5)}", [T5], T5)
    for c in range(4):
        V(f"v_xor_b32 {vr(T3)}, {c}, {vr(T5)}", [T5], T3)
        V(f"v_lshl_add_u32 {vr(T3)}, {vr(T3)}, 5, {vr(T0)}", [T3, T0], T3)
        for j in range(4): V(f"v_add_u32 {vr(VVA(j,c))}, s{32+j}, {vr(T3)}", [T3], VVA(j, c))
    a.salu(f"s_lshl_b32 s32, s{S_W}, 13")
    a.salu(f"s_add_u32 s32, s32, {LDS_X}")
    a.salu(f"s_lshl_b32 s33, s{S_W}, 11")
    a.salu(f"s_add_u32 s33, s33, {LDS_X}")
    V(f"v_lshlrev_b32 {vr(T0)}, 4, {vr(VLANE)}", [VLANE], T0)
    V(f"v_add_u32 {vr(VXW)}, s32, {vr(T0)}", [T0], VXW)
    V(f"v_add_u32 {vr(VXR)}, s33, {vr(T0)}", [T0], VXR)
    V(f"v_lshlrev_b32 {vr(VT+14)}, 2, {vr(VLANE)}", [VLANE], VT + 14)
    V(f"v_add_u32 {vr(VT+15)}, s{S_M0K}, {vr(VT+14)}", [VT + 14], VT + 15)
    for r in list(range(PX + 2, PX + 4)) + list(range(VZ, VZ + 4)) + list(range(VCHK, VCHK + 4)) + [VL(t) for t in range(NT + 1)]:
        V(f"v_mov_b32 {vr(r)}, 0", [], r)
    emit_ts(a)
    first_tiles = [int(x[1]) for x in order if x[0] == "Q" and STAG[int(x[1])] == 0]
    for t in first_tiles:
        if TS == 2:
            a.V(f"v_mov_b32 {vr(VT)}, {vr(VQ(t,0))}", [VQ(t, 0)], VT); emit_ts(a)
            a.V(f"v_mov_b32 {vr(VT)}, {vr(VQ(t,3))}", [VQ(t, 3)], VT); emit_ts(a)
        scale_tile_pk(a, t, VT)
    emit_ts(a)
    a.raw("s_barrier", "barrier", needs={("K", 0)})
    emit_ts(a)
    sops = []
    for t in range(NT + 1):
        if STAG[t] > 0:
            D = P.pos[("QK", t, 0, 0, STAG[t])] - 3
            sops += scale_ops(t, max(0, D - opt("qswin", 25)), D)
    reg1 = {(o.step, o.name) for o in free1 if o.name.startswith("dma")}
    free1 = [o for o in free1 if not o.name.startswith("dma")]
    after = [-1] * len(allloads)
    for sg in range(RF):
        for k, n0, blk in (("V", 0, sg + 3), ("K", 5, sg + 4)):
            so, base = (S_KOFF, S_M0K) if k == "K" else (S_VOFF, S_M0V)
            pre = [I(f"s_mov_b32 s{so}, {(blk % 16)*16384}", "salu"), I(f"s_add_u32 m0, s{base}, {(blk % 4)*16384}", "salu_m0")]
            assert (sg, f"dma{n0 + 1}") in reg1, "first dma of a group deferred: not supported"
            for j in range(4):
                if (sg, f"dma{n0 + 1 + j}") in reg1:
                    d = dma(k, j, tag=(k, blk))
                    allloads.append(pre + [d] if j == 0 else d); after.append(sg)
    adv_in_r1 = (RF - 1, "dma10") in reg1
    gaps1, pend = schedule(free1 + sops, -1, END1, flush=True)
    assert not pend
    def emit_region(x, gaps, g0, g1):
        for g in range(g0, g1):
            if g >= 0 and g < len(P.spine):
                if TS and g in P.base.values() and g > 0: emit_ts(x)
                emit_mfma(x, P.spine[g])
            if g in bars:
                x.raw("s_barrier", "barrier", needs=bars[g], needlds=(g in ldsbars), barstep=barstep.get(g, -1))
            for o in gaps.get(g, []): emit_op(x, o)
    ldsbars = set()
    barstep = {P.barpos(sg): sg for sg in range(S)}
    emit_region(a, gaps1, -1, END1)
    a.raw("s_nop 0", "nop", forceall=True)
    if adv_in_r1: a.L += [o for o in allops[RF - 1] if o.name == "dma10"][0].mk(0)
    niter = (16 - RF + 3) // 4
    a.salu(f"s_mov_b32 s{S_CNT}, {niter}")
    emit_ts(a)
    a.raw("s_waitcnt lgkmcnt(0)", "wait")
    if RF % 4: a.salu(f"s_branch L_blk{RF % 4}")
    L2 = []; n = nissued[0]; started = False; passed = -1; maxneed = -1; cnt = 0
    lastq = max(k for k, x in enumerate(allloads) if core(x).kind != "dma")
    cores = {id(core(x)) for x in allloads}
    def put(tgt):
        nonlocal n
        while n < min(tgt, len(allloads)) and after[n] <= passed:
            x = allloads[n]; L2.extend(x if isinstance(x, list) else [x]); n += 1
    for i in a.L:
        need = -1
        if i is core(allloads[0]): started = True
        if started and id(i) not in cores:
            for k, x in enumerate(allloads):
                c = core(x)
                if c.kind == "dma":
                    nd = getattr(i, "needs", None)
                    if nd is not None and c.tag in nd: need = k
                elif c.wr & (i.rd | i.wr): need = k
            maxneed = max(maxneed, need)
            if getattr(i, "forceall", False):
                print("loads flushed at end of region 1:", len(allloads) - n); put(len(allloads)); continue
            if need >= 0: put(need + WIN + 1)
        L2.append(i)
        passed = max(passed, getattr(i, "barstep", -1))
        if i.kind == "mfma" and maxneed >= lastq - opt("qslack", 0):
            cnt += 1
            if cnt % opt("lrate", 4) == 0: put(n + 1)
    assert n == len(allloads)
    r1, _ = insert_lgkm_waits(L2)
    r1, vq1 = insert_vm_waits(r1)
    if TS == 3:
        x = Asm(); seen = False; inb = False; names = []
        for k, i in enumerate(r1):
            special = seen and (i.kind in ("dma", "vmem", "barrier", "salu_m0") or (i.kind == "wait" and "vmcnt" in i.text) or (i.kind == "salu" and i.text.startswith("s_mov_b32 s2")))
            nxt = r1[k + 1] if k + 1 < len(r1) else None
            if special and not inb:
                grp = []
                for j in r1[k:]:
                    if j.kind in ("dma", "vmem", "barrier", "salu_m0") or (j.kind == "wait" and "vmcnt" in j.text) or (j.kind == "salu" and j.text.startswith("s_mov_b32 s2")): grp.append(j)
                    else: break
                stampit = any(j.kind in ("barrier", "wait") for j in grp)
                if stampit: emit_ts(x); names.append("/".join(("B" if j.kind == "barrier" else "W" if j.kind == "wait" else "L") for j in grp if j.kind in ("barrier", "wait", "dma", "vmem")))
                inb = True
            if inb and not special:
                if stampit: emit_ts(x)
                inb = False
            x.L.append(i)
            if i.kind == "mfma": seen = True
            if i.kind == "smem" and "memtime" in i.text: names.append("ts")
        print("stamps:", names)
        r1 = x.L
    r1 = fix_hazards(r1)

    PF = Program(0, 2, lambda t, sg: True)
    PROTO = {o.name: o for o in PF.ops(1) + PF.dma_ops(1)}
    blocks = []
    for st in range(4):
        b = Asm()
        for g, tag in enumerate(BM):
            k, t, x, y, _ = tag
            b.L.append(mfma_qk(t, x, y) if k == "QK" else mfma_pv(t, x, y))
            if g == BAR_POS:
                b.raw("s_waitcnt vmcnt(12)", "wait")
                b.raw("s_barrier", "barrier", loopbar=True)
            for d, name in TEMPLATE[g]:
                r = PROTO[name].mk((st + d) % 4)
                for i in (r if isinstance(r, list) else [r]):
                    if i.kind == "dma": i.rel = (PROTO[name].blk[0], PROTO[name].blk[1] - 1 + d)
                    if i.kind == "salu_m0":
                        which = i.pre; ahead = 3 if which == "V" else 4
                        if (12 + st + d) + ahead == S and 12 + st + d <= 15 + 1:
                            sr = (S_V if which == "V" else S_K) + 2
                            b.salu(f"s_cmp_eq_u32 s{S_CNT}, {1 if st + d >= 0 else 1}")
                            b.salu(f"s_cselect_b32 s{sr}, 0, s{sr}")
                            assert st + d >= 0
                    b.L.append(i)
        blocks.append(b.L)
    flat = [i for bl in blocks for i in bl]
    marks = {id(bl[0]): k for k, bl in enumerate(blocks)}
    _, q1 = insert_lgkm_waits(flat, [])
    body, q2 = insert_lgkm_waits(flat, q1)
    assert [i.text for i in q1] == [i.text for i in q2]
    body2 = []
    for i in body:
        if id(i) in marks and marks[id(i)] > 0:
            lab = I(f"L_blk{marks[id(i)]}:", "label")
            if body2[-1].kind == "wait" and "lgkm" in body2[-1].text: body2.insert(len(body2) - 1, lab)
            else: body2.append(lab)
        body2.append(i)
    body = body2
    abl = opt("abl", "").split(",")
    tailctl = [I(f"s_sub_u32 s{S_CNT}, s{S_CNT}, 1", "salu"), I(f"s_cmp_lg_u32 s{S_CNT}, 0", "salu"), I("s_cbranch_scc1 L_loop", "salu")]
    if TS:
        x = Asm(); emit_ts(x); tailctl = x.L + tailctl
    chk = fix_hazards(body + tailctl + body, report="loop")
    assert len(chk) == len(body) * 2 + len(tailctl), "hazards in loop"
    q = list(vq1)
    for sg in range(RF, 16):
        for i in blocks[sg % 4]:
            if i.kind == "dma": q.append(I("", "dma", tag=(i.rel[0], sg + i.rel[1])))
            if getattr(i, "loopbar", False):
                q = q[-12:]
                badtags = {o.tag for o in q if o.kind == "dma"} & {("K", sg + 1), ("V", sg + 1)}
                assert not badtags, f"vmcnt(12) insufficient at step {sg}: {badtags}"
                assert not any(getattr(o, "isload", False) for o in q)
    vq2 = q

    start2 = P.base[16]; end2 = len(P.spine)
    opbyname = {(o.step, o.name): o for sg in allops for o in allops[sg]}
    eops = []
    rate = opt("eprate", 2.0)
    lastgap = end2 - 1
    for t in range(NT):
        sl = STAG[t] + 15
        E0 = max(start2, P.pos[("PV", t, 0, 7, sl)] + 1)
        c = Chain(sl, E0, rate)
        tmp = SP(0, t)
        adds = [opbyname[(sl, f"add{t}{j}{k}")] for j in range(4) for k in range(4)]
        lr = lreduce_ops(c, VL(t), tmp, adds)
        rc = c.add(I(f"v_rcp_f32 {vr(tmp+2)}, {vr(VL(t))}", "trans", R("v", VL(t)), R("v", tmp + 2)), [lr])
        c.add(range_check(VL(t)), [lr])
        done = {}
        for m in range(4):
            buf = VQ(t, 0) + 8 * (m % 2)
            Em = P.pos[("PV", t, 1, 2 * m + 1, sl)]
            exposed = Em + 4 >= lastgap
            c.E = max(c.E, min(Em + 4, lastgap)); c.k = 0
            rd = [c.add(I(f"v_accvgpr_read_b32 {vr(buf+r)}, {ar(AO(t,2*m)+r)}", "valu", R("a", AO(t, 2 * m) + r), R("v", buf + r)),
                        done.get(m - 2, [])) for r in range(8)]
            done[m] = finish_chunk(c, buf, tmp + 2, rc, rd, S_ROW(t), 64 * m, pk_ok=exposed)
        eops += c.ops
    slx = STAG[NT] + 15
    xq = VQ(NT, 0)
    E0 = max(start2, P.pos[("PV", NT, 0, 7, slx)] + 4)
    xbar_step = slx + 1
    extra_bar = False
    assert xbar_step + 1 <= S - 1 and S - 4 <= slx
    xbar = P.barpos(xbar_step)
    c = Chain(slx, min(E0, lastgap), max(rate, 60.0 / max(1, xbar - E0 - 6)))
    adds = [opbyname[(slx, f"add{NT}0{k}")] for k in range(4)]
    lr = lreduce_ops(c, VL(NT), SX, adds)
    LXO = (S % 4) * 16384
    wl = c.add(I(f"ds_write_b32 {vr(VT+15)}, {vr(VL(NT))} offset:{LXO}", "ldsw", RV(VT + 15, VL(NT)), needs={("K", S)}), [lr])
    wr = {}
    for dt in range(8):
        buf = xq + 4 * (dt % 4)
        rd = [c.add(I(f"v_accvgpr_read_b32 {vr(buf+r)}, {ar(AO(NT,dt)+r)}", "valu", R("a", AO(NT, dt) + r), R("v", buf + r)),
                    [wr.get(dt - 4)]) for r in range(4)]
        wr[dt] = c.add(I(f"ds_write_b128 {vr(VXW)}, {vr(buf,4)} offset:{1024*dt}", "ldsw", R("v", VXW) | R("v", buf, 4)), rd)
    for o in c.ops: o.hardD = xbar - 1 if not extra_bar else 10 ** 9
    xops1 = c.ops
    def xcombine(c):
        lp = [c.add(I(f"ds_read_b32 {vr(SX+w)}, {vr(VT+14)} offset:{LXO + 4096*w}", "lds", RV(VT + 14), RV(SX + w))) for w in range(4)]
        r0 = [c.add(I(f"ds_read_b128 {vr(xq+4*w,4)}, {vr(VXR)} offset:{8192*w}", "lds", RV(VXR), R("v", xq + 4 * w, 4))) for w in range(4)]
        c.E += 6; c.k = 0
        s1 = c.add(Vi(f"v_add_f32 {vr(SX)}, {vr(SX)}, {vr(SX+1)}", [SX, SX + 1], SX), lp)
        s2 = c.add(Vi(f"v_add_f32 {vr(SX+2)}, {vr(SX+2)}, {vr(SX+3)}", [SX + 2, SX + 3], SX + 2), lp)
        s3 = c.add(Vi(f"v_add_f32 {vr(VL(NT))}, {vr(SX)}, {vr(SX+2)}", [SX, SX + 2], VL(NT)), [s1, s2])
        rc = c.add(I(f"v_rcp_f32 {vr(PX)}, {vr(VL(NT))}", "trans", RV(VL(NT)), RV(PX)), [s3])
        c.add(range_check(VL(NT)), [s3])
        def sum4(b0, b1, b2, b3, pr):
            res = []
            for r in range(4):
                x = c.add(Vi(f"v_add_f32 {vr(b0+r)}, {vr(b0+r)}, {vr(b1+r)}", [b0 + r, b1 + r], b0 + r), pr)
                y = c.add(Vi(f"v_add_f32 {vr(b2+r)}, {vr(b2+r)}, {vr(b3+r)}", [b2 + r, b3 + r], b2 + r), pr)
                res.append(c.add(Vi(f"v_add_f32 {vr(b0+r)}, {vr(b0+r)}, {vr(b2+r)}", [b0 + r, b2 + r], b0 + r), [x, y]))
            return res
        h0 = sum4(xq, xq + 4, xq + 8, xq + 12, r0)
        bufs = [xq + 4, xq + 8, xq + 12, SX]
        r1_ = [c.add(I(f"ds_read_b128 {vr(bufs[w],4)}, {vr(VXR)} offset:{8192*w + 1024}", "lds", RV(VXR), R("v", bufs[w], 4)), h0 + [s3]) for w in range(4)]
        c.E += int(c.k / c.rate) + 6; c.k = 0
        h1 = sum4(bufs[0], bufs[1], bufs[2], bufs[3], r1_)
        so = c.add([I(f"s_lshl_b32 s{S_T}, s{S_W}, 6", "salu"), I(f"s_add_u32 s{S_T}, s{S_T}, 81920", "salu")], cls="free")
        rc.extra = so
        finish_chunk(c, xq, PX, rc, h0 + h1, S_T, 0)
        return so
    e = Asm()
    if not extra_bar:
        c2 = Chain(slx, xbar + 1, rate); xcombine(c2); xops2 = c2.ops
        ldsbars.add(xbar); ldsbars.add(P.barpos(xbar_step + 1))
        for o in xops2:
            x = o.mk(0)
            if not isinstance(x, list) and x.kind == "lds": o.hardD = P.barpos(xbar_step + 1) - 1
    else:
        xops2 = []
    gaps2, pend = schedule(free2 + eops + xops1 + xops2, start2, end2 + 1, flush=True)
    assert not pend
    emit_region(e, gaps2, start2, end2 + 1)
    if extra_bar:
        e.raw("s_barrier", "barrier", needlds=True)
        c2 = Chain(slx, 0, rate); xcombine(c2)
        g3, pend = schedule(c2.ops, 0, 1, flush=True)
        for o in g3[0]: emit_op(e, o)
    e.valu(f"v_cmp_u_f32 vcc, {vr(VCHK)}, {vr(VCHK+1)}", R("v", VCHK, 2), R("s", 106))
    e.salu(f"s_or_b64 s[{S_BAD}:{S_BAD+1}], s[{S_BAD}:{S_BAD+1}], vcc")
    e.salu(f"s_cmp_lg_u64 s[{S_BAD}:{S_BAD+1}], 0")
    if opt("forceslow", 0) == 1: e.salu("s_cmp_eq_u32 s2, s2")
    if opt("forceslow", 0) == 2: e.salu(f"s_cmp_eq_u32 s{S_W}, 2")
    e.salu("s_cbranch_scc1 L_slow")
    emit_ts_store(e)
    if opt("pad", 0):
        e.raw("s_waitcnt vmcnt(0)", "wait")
        if opt("gpad", 0):
            e.raw("global_load_dword v254, v255, s[48:49] sc0 sc1", "vmem", RV(255), RV(254))
            e.raw("s_waitcnt vmcnt(0)", "wait")
            e.raw("v_readfirstlane_b32 s50, v254", "valu", RV(254), R("s", 50))
            e.nop(2)
            e.salu("s_not_b32 s46, s50")
        e.label("L_pad")
        e.raw("s_memrealtime s[50:51]", "smem")
        e.raw("s_waitcnt lgkmcnt(0)", "wait")
        e.salu("s_sub_u32 s50, s50, s46")
        e.salu(f"s_cmp_lt_u32 s50, {opt('pad', 0) * 100}")
        e.salu("s_cbranch_scc1 L_pad")
    e.label("L_end")
    e.raw("s_endpgm", "other")
    r2, _ = insert_lgkm_waits(e.L, q2)
    r2, _ = insert_vm_waits(r2, vq2)
    r2 = fix_hazards(r2, ctx=body[-30:] + tailctl)
    return P, r1, body, tailctl, r2, extra_bar

def build_slow(extra_bar):
    s = Asm()
    Vs = s.V
    def VM(t): return 164 + t
    SS = 96; MX = 160; AL = 161; TM = 162
    def PP(t): return 112 + 8 * t
    s.label("L_slow")
    s.raw("s_waitcnt vmcnt(0) lgkmcnt(0)", "wait")
    s.salu(f"s_mov_b32 s{S_K+2}, 262144")
    s.salu(f"s_mov_b32 s{S_V+2}, 262144")
    for t in range(NT + 1):
        for k in range(4): s.L.append(q_load(t, k))
    for r in range(192): s.valu(f"v_accvgpr_write_b32 {ar(r)}, 0", (), R("a", r))
    for t in range(NT + 1):
        Vs(f"v_mov_b32 {vr(VL(t))}, 0", [], VL(t))
        Vs(f"v_mov_b32 {vr(VM(t))}, 0xff800000", [], VM(t))
    s.salu(f"s_lshl_b32 s{S_M0K}, s{S_W}, 14")
    s.salu(f"s_sub_u32 s32, s{S_M0K}, {LDS_V}")
    for j in range(4):
        Vs(f"v_subrev_u32 {vr(VDK(j))}, s{S_PIECE}, {vr(VDK(j))}", [VDK(j)], VDK(j))
        Vs(f"v_subrev_u32 {vr(VDV(j))}, s{S_PIECE}, {vr(VDV(j))}", [VDV(j)], VDV(j))
        for p in range(2): Vs(f"v_add_u32 {vr(VKA(j,p))}, s{S_M0K}, {vr(VKA(j,p))}", [VKA(j, p)], VKA(j, p))
        for c in range(4): Vs(f"v_add_u32 {vr(VVA(j,c))}, s32, {vr(VVA(j,c))}", [VVA(j, c)], VVA(j, c))
    s.raw("s_waitcnt vmcnt(0)", "wait")
    for t in range(NT + 1): scale_tile_pk(s, t, VT)
    s.salu("s_mov_b32 s33, 0")
    s.salu(f"s_mov_b32 s{S_CNT}, 16")
    s.label("L_slow_loop")
    def fill(which):
        so = S_KOFF if which == "K" else S_VOFF
        for pc in range(4):
            s.salu(f"s_add_u32 s{so}, s33, {(pc & 1) * 8192 + (pc >> 1) * 128}")
            s.raw(f"s_add_u32 m0, s{S_M0K}, {4096*pc}", "salu_m0")
            s.nop(1)
            for j in range(4): s.L.append(dma(which, j))
        s.raw("s_waitcnt vmcnt(0)", "wait")
    fill("K")
    def KF(j, k): return 192 + 16 * j + 4 * k
    for j in range(4):
        for k in range(4):
            s.raw(f"ds_read_b128 {ar(KF(j,k),4)}, {vr(VKA(j, k % 2))} offset:{(k//2)*8192}", "lds", R("v", VKA(j, k % 2)), R("a", KF(j, k), 4))
        s.raw("s_waitcnt lgkmcnt(0)", "wait")
    fill("V")
    for t in range(NT + 1):
        for j in range(4):
            for k in range(4):
                d = SS + 4 * j
                c = "0" if k == 0 else vr(d, 4)
                s.raw(f"v_mfma_f32_16x16x32_bf16 {vr(d,4)}, {ar(KF(j,k),4)}, {vr(VQ(t,k),4)}, {c}", "mfma",
                      R("a", KF(j, k), 4) | R("v", VQ(t, k), 4) | (R("v", d, 4) if k else set()), R("v", d, 4),
                      cacc=R("v", d, 4) if k else set())
        s.nop(10)
        Vs(f"v_max3_f32 {vr(MX)}, {vr(SS)}, {vr(SS+1)}, {vr(SS+2)}", [SS, SS + 1, SS + 2], MX)
        for r in range(3, 15, 2):
            Vs(f"v_max3_f32 {vr(MX)}, {vr(MX)}, {vr(SS+r)}, {vr(SS+r+1)}", [MX, SS + r, SS + r + 1], MX)
        Vs(f"v_max_f32 {vr(MX)}, {vr(MX)}, {vr(SS+15)}", [MX, SS + 15], MX)
        for sw in ("v_permlane32_swap_b32", "v_permlane16_swap_b32"):
            Vs(f"v_mov_b32 {vr(TM)}, {vr(MX)}", [MX], TM)
            s.nop(2)
            s.valu(f"{sw} {vr(MX)}, {vr(TM)}", RV(MX, TM), RV(MX, TM))
            s.nop(2)
            Vs(f"v_max_f32 {vr(MX)}, {vr(MX)}, {vr(TM)}", [MX, TM], MX)
        Vs(f"v_max_f32 {vr(MX)}, {vr(MX)}, {vr(VM(t))}", [MX, VM(t)], MX)
        Vs(f"v_sub_f32 {vr(AL)}, {vr(VM(t))}, {vr(MX)}", [MX, VM(t)], AL)
        Vs(f"v_exp_f32 {vr(AL)}, {vr(AL)}", [AL], AL, "trans")
        Vs(f"v_mov_b32 {vr(VM(t))}, {vr(MX)}", [MX], VM(t))
        for r in range(16): Vs(f"v_sub_f32 {vr(SS+r)}, {vr(SS+r)}, {vr(MX)}", [SS + r, MX], SS + r)
        for r in range(16): Vs(f"v_exp_f32 {vr(SS+r)}, {vr(SS+r)}", [SS + r], SS + r, "trans")
        Vs(f"v_mul_f32 {vr(VL(t))}, {vr(VL(t))}, {vr(AL)}", [VL(t), AL], VL(t))
        for r in range(16): Vs(f"v_add_f32 {vr(VL(t))}, {vr(VL(t))}, {vr(SS+r)}", [VL(t), SS + r], VL(t))
        for r in range(8): Vs(f"v_cvt_pk_bf16_f32 {vr(PP(t)+r)}, {vr(SS+2*r)}, {vr(SS+2*r+1)}", [SS + 2 * r, SS + 2 * r + 1], PP(t) + r)
        for r in range(32):
            tm = VT + (r % 8)
            s.valu(f"v_accvgpr_read_b32 {vr(tm)}, {ar(AO(t,0)+r)}", R("a", AO(t, 0) + r), R("v", tm))
            Vs(f"v_mul_f32 {vr(tm)}, {vr(tm)}, {vr(AL)}", [tm, AL], tm)
            s.valu(f"v_accvgpr_write_b32 {ar(AO(t,0)+r)}, {vr(tm)}", R("v", tm), R("a", AO(t, 0) + r))
    s.nop(10)
    def VF(p, dt): return 192 + 32 * p + 4 * dt
    for p in range(2):
        for dt in range(8):
            for h in range(2):
                j = 2 * p + h
                s.raw(f"ds_read_b64_tr_b16 {ar(VF(p,dt)+2*h,2)}, {vr(VVA(j, dt % 4))} offset:{(dt//4)*8192}", "lds",
                      R("v", VVA(j, dt % 4)), R("a", VF(p, dt) + 2 * h, 2))
            if dt % 4 == 3: s.raw("s_waitcnt lgkmcnt(0)", "wait")
    for t in range(NT + 1):
        for p in range(2):
            for dt in range(8):
                d = AO(t, dt)
                s.raw(f"v_mfma_f32_16x16x32_bf16 {ar(d,4)}, {ar(VF(p,dt),4)}, {vr(PP(t)+4*p,4)}, {ar(d,4)}", "mfma",
                      R("a", VF(p, dt), 4) | R("v", PP(t) + 4 * p, 4) | R("a", d, 4), R("a", d, 4), cacc=R("a", d, 4))
    s.nop(10)
    s.salu("s_add_u32 s33, s33, 16384")
    s.salu(f"s_sub_u32 s{S_CNT}, s{S_CNT}, 1")
    s.salu(f"s_cmp_lg_u32 s{S_CNT}, 0")
    s.salu("s_cbranch_scc1 L_slow_loop")
    for t in range(NT + 1):
        c = Chain(0, 0, 1.0)
        lr = lreduce_ops(c, VL(t), TM, [])
        rc = c.add(I(f"v_rcp_f32 {vr(MX)}, {vr(VL(t))}", "trans", RV(VL(t)), RV(MX)), [lr])
        if t < NT:
            for m in range(4):
                buf = 8 * m
                rd = [c.add(I(f"v_accvgpr_read_b32 {vr(buf+r)}, {ar(AO(t,2*m)+r)}", "valu", R("a", AO(t, 2 * m) + r), R("v", buf + r))) for r in range(8)]
                finish_chunk(c, buf, MX, rc, rd, S_ROW(t), 64 * m)
            for o in c.ops: emit_op(s, o)
            s.raw("s_waitcnt vmcnt(0)", "wait")
        else:
            for o in c.ops: emit_op(s, o)
            for r in range(32):
                s.valu(f"v_accvgpr_read_b32 {vr(r)}, {ar(AO(NT,0)+r)}", R("a", AO(NT, 0) + r), R("v", r))
            Vs(f"v_lshlrev_b32 {vr(TM)}, 4, {vr(VLANE)}", [VLANE], TM)
            Vs(f"v_add_u32 {vr(TM)}, s{S_M0K}, {vr(TM)}", [TM], TM)
            for dt in range(8):
                s.raw(f"ds_write_b128 {vr(TM)}, {vr(4*dt,4)} offset:{1024*dt}", "ldsw", RV(TM) | R("v", 4 * dt, 4))
            s.salu(f"s_lshl_b32 s33, s{S_W}, 11")
            Vs(f"v_add_u32 {vr(AL)}, s33, {vr(TM)}", [TM], AL)
            s.raw("s_waitcnt lgkmcnt(0)", "wait")
            for h in range(2):
                s.raw(f"ds_read_b128 {vr(32+4*h,4)}, {vr(AL)} offset:{1024*h}", "lds", RV(AL), R("v", 32 + 4 * h, 4))
            s.raw("s_waitcnt lgkmcnt(0)", "wait")
            s.salu(f"s_lshl_b32 s{S_T}, s{S_W}, 6")
            s.salu(f"s_add_u32 s{S_T}, s{S_T}, 81920")
            c = Chain(0, 0, 1.0)
            finish_chunk(c, 32, MX, None, [None] * 8, S_T, 0)
            for o in c.ops: emit_op(s, o)
    s.raw("s_waitcnt vmcnt(0)", "wait")
    s.raw("s_endpgm", "other")
    return fix_hazards(s.L)

def main():
    P, r1, body, tailctl, r2, extra_bar = build()
    slow = build_slow(extra_bar)
    lines = []
    ref = open("standalone__gqa_softmax__near_ridge.s.ref").read().splitlines()
    for l in ref:
        if l.startswith("; @launch"): break
        lines.append(l)
    lines.append("; @launch grid=(256,1,1) block=(256,1,1) lds=163840")
    lines.append('.amdgcn_target "amdgcn-amd-amdhsa--gfx950"')
    lines.append(".text")
    lines.append(f".globl {KNAME}")
    lines.append(".p2align 8")
    lines.append(f".type {KNAME},@function")
    lines.append(f"{KNAME}:")
    def dump(L):
        for i in L: lines.append(i.text if i.kind == "label" else "    " + i.text)
    dump(r1)
    lines.append(".p2align 6")
    lines.append("L_loop:")
    dump(body); dump(tailctl); dump(r2); dump(slow)
    lines.append('.section .rodata,"a"')
    lines.append(".p2align 6")
    lines.append(f".amdhsa_kernel {KNAME}")
    lines.append("  .amdhsa_next_free_vgpr 512")
    lines.append("  .amdhsa_next_free_sgpr 64")
    lines.append("  .amdhsa_accum_offset 256")
    lines.append("  .amdhsa_group_segment_fixed_size 0")
    lines.append("  .amdhsa_kernarg_size 48")
    lines.append("  .amdhsa_user_sgpr_count 2")
    lines.append("  .amdhsa_user_sgpr_kernarg_segment_ptr 1")
    lines.append("  .amdhsa_system_sgpr_workgroup_id_x 1")
    lines.append(".end_amdhsa_kernel")
    open(OUT, "w").write("\n".join(lines) + "\n")
    nn = lambda L: sum(1 for i in L if i.kind == "nop")
    print("written", OUT, "r1", len(r1), f"(nops {nn(r1)})", "body", len(body), "waits", sum(1 for i in body if i.kind == "wait"),
          "r2", len(r2), f"(nops {nn(r2)})", "slow", len(slow))

if __name__ == "__main__":
    if "stats" in OPTS:
        for g, l in enumerate(TEMPLATE): print(g, BM[g], l)
    else:
        main()
```

```python
import struct, sys, math

KNAME = "standalone__gqa_softmax__near_ridge_kernel"
OUT = sys.argv[1] if len(sys.argv) > 1 else "standalone__gqa_softmax__near_ridge.s"
OPTS = dict(a.split("=") for a in sys.argv[2:])
def opt(name, default):
    return type(default)(OPTS.get(name, default))

STF = {"none": "", "sc1": " sc1", "nt": " nt", "sc01": " sc0 sc1", "sc1nt": " sc1 nt"}[opt("stf", "sc1")]
QF = " nt" if opt("qnt", 1) else ""
KVF = " nt" if opt("kvnt", 1) else ""
def f32(x): return "0x%08x" % struct.unpack("<I", struct.pack("<f", x))[0]
SCALE = math.log2(math.e) / math.sqrt(128.0)

NT = 5
def VQ(t, s): return 16 * t + 4 * s
def SP(p, t): return 96 + 40 * p + 8 * t
SX = 176
def VL(t): return 180 + t
def VKA(j, p): return 186 + 2 * j + p
def VVA(j, c): return 194 + 4 * j + c
def VDK(j): return 210 + j
def VDV(j): return 214 + j
VLANE = 218
PX = 220
VZ = 224
VCHK = 228
VQOFF = 232
VST = 233
VXW = 234
VXR = 235
VT = 236
VTS0, VTS1, VTS2 = 219, 254, 255
def AO(t, dt): return 32 * t + 4 * dt
def AK(b, s): return 192 + 16 * b + 4 * s
def AV(b, i): return 224 + 16 * b + 4 * i
S_Q, S_K, S_V, S_O = 4, 8, 12, 16
S_W = 20; S_KOFF = 21; S_VOFF = 21; S_CNT = 23; S_M0K = 24; S_M0V = 25; S_PIECE = 26
S_C = 28
S_BAD = 30
S_T = 32
S_LO, S_HI = 54, 55
def S_ROW(t): return 56 + t
LDS_V = 65536
LDS_X = 131072

LM = [int(c) for c in opt("lm", "34").strip("-")]
VONE = VT + 8
def VLM(t): return VT + 4 * LM.index(t)
STAG = tuple(int(c) for c in opt("stag", "001120"))
SMAX = max(STAG); S = 16 + SMAX; RF = SMAX + 1
assert min(STAG[:NT]) == 0

def vr(n, k=1): return f"v{n}" if k == 1 else f"v[{n}:{n+k-1}]"
def ar(n, k=1): return f"a{n}" if k == 1 else f"a[{n}:{n+k-1}]"
def R(kind, n, k=1): return {(kind, n + i) for i in range(k)}
def RV(*regs): return set().union(*[R("v", r) for r in regs]) if regs else set()

class I:
    def __init__(s, text, kind, rd=(), wr=(), **kw):
        s.text, s.kind, s.rd, s.wr = text, kind, set(rd), set(wr)
        s.__dict__.update(kw)
    def __repr__(s): return s.text

class Asm:
    def __init__(s): s.L = []
    def raw(s, text, kind="other", rd=(), wr=(), **kw):
        s.L.append(I(text, kind, rd, wr, **kw)); return s.L[-1]
    def label(s, name): s.L.append(I(name + ":", "label"))
    def nop(s, n):
        while n > 0:
            k = min(n, 16); s.raw(f"s_nop {k-1}", "nop"); s.L[-1].ws = k; n -= k
    def salu(s, text): return s.raw(text, "salu")
    def valu(s, text, rd=(), wr=()): return s.raw(text, "valu", rd, wr)
    def V(s, txt, rd, wr, kind="valu"): return s.raw(txt, kind, RV(*rd), RV(wr) if wr is not None else ())

def mfma_qk(t, j, s):
    d = SX if t == NT else SP(j // 2, t) + 4 * (j % 2)
    a = AK(j % 2, s); b = VQ(t, s)
    c = "0" if s == 0 else vr(d, 4)
    rd = R("a", a, 4) | R("v", b, 4) | (R("v", d, 4) if s else set())
    return I(f"v_mfma_f32_16x16x32_bf16 {vr(d,4)}, {ar(a,4)}, {vr(b,4)}, {c}", "mfma", rd, R("v", d, 4),
             cacc=R("v", d, 4) if s else set())
def mfma_pv(t, p, dt, first=False):
    d = AO(t, dt); a = AV(dt // 4, dt % 4)
    b = PX if t == NT else SP(p, t)
    c = "0" if first else ar(d, 4)
    return I(f"v_mfma_f32_16x16x32_bf16 {ar(d,4)}, {ar(a,4)}, {vr(b,4)}, {c}", "mfma",
             R("a", a, 4) | R("v", b, 4) | (set() if first else R("a", d, 4)), R("a", d, 4),
             cacc=set() if first else R("a", d, 4))
def mfma_ls(t, p, first=False):
    d = VLM(t); b = SP(p, t)
    c = "0" if first else vr(d, 4)
    return I(f"v_mfma_f32_16x16x32_bf16 {vr(d,4)}, {vr(VONE,4)}, {vr(b,4)}, {c}", "mfma",
             R("v", VONE, 4) | R("v", b, 4) | (set() if first else R("v", d, 4)), R("v", d, 4),
             cacc=set() if first else R("v", d, 4))
def mk_mfma(k, t, x, y, first=False):
    if k == "QK": return mfma_qk(t, x, y)
    if k == "LS": return mfma_ls(t, x, first)
    return mfma_pv(t, x, y, first)
def lds_k(j, s, stage):
    d = AK(j % 2, s)
    return I(f"ds_read_b128 {ar(d,4)}, {vr(VKA(j, s % 2))} offset:{stage*16384 + (s//2)*8192}", "lds",
             R("v", VKA(j, s % 2)), R("a", d, 4), grp=("k", j, stage))
def lds_v(p, dt, h, stage):
    d = AV(dt // 4, dt % 4) + 2 * h
    j = 2 * p + h
    g = opt("vgrp", 4)
    return I(f"ds_read_b64_tr_b16 {ar(d,2)}, {vr(VVA(j, dt % 4))} offset:{stage*16384 + (dt//4)*8192}", "lds",
             R("v", VVA(j, dt % 4)), R("a", d, 2), grp=("v", p, dt // g, stage))
def v_exp(r): return I(f"v_exp_f32 {vr(r)}, {vr(r)}", "trans", R("v", r), R("v", r))
def v_addl(t, r): return I(f"v_add_f32 {vr(VL(t))}, {vr(VL(t))}, {vr(r)}", "valu", R("v", r) | R("v", VL(t)), R("v", VL(t)))
def v_cvt(d, a, b): return I(f"v_cvt_pk_bf16_f32 {vr(d)}, {vr(a)}, {vr(b)}", "valu", R("v", a) | R("v", b), R("v", d))
def dma(which, j, tag=None):
    if which == "K":
        return I(f"buffer_load_dwordx4 {vr(VDK(j))}, s[{S_K}:{S_K+3}], s{S_KOFF} offen offset:{1024*j}{KVF} lds", "dma", R("v", VDK(j)), tag=tag)
    return I(f"buffer_load_dwordx4 {vr(VDV(j))}, s[{S_V}:{S_V+3}], s{S_VOFF} offen offset:{1024*j}{KVF} lds", "dma", R("v", VDV(j)), tag=tag)
def q_load(t, s):
    return I(f"buffer_load_dwordx4 {vr(VQ(t,s),4)}, {vr(VQOFF)}, s[{S_Q}:{S_Q+3}], s{S_ROW(t)} offen offset:{64*s}{QF}", "vmem",
             R("v", VQOFF), R("v", VQ(t, s), 4), isload=True)
def Vi(txt, rd, wr, kind="valu"): return I(txt, kind, RV(*rd), RV(*wr) if isinstance(wr, (list, tuple)) else RV(wr))

def step_spine(sg, act):
    M = []
    def Q(j):
        for t in range(NT):
            if act(t, sg):
                for s in range(4): M.append(("QK", t, j, s, sg))
        if j == 0 and act(NT, sg):
            for s in range(4): M.append(("QK", NT, 0, s, sg))
    def P(p, half, s2):
        for dt in range(4 * half, 4 * half + 4):
            for t in range(NT):
                if act(t, s2): M.append(("PV", t, p, dt, s2))
            if p == 0 and act(NT, s2): M.append(("PV", NT, 0, dt, s2))
        if half == 0:
            for t in LM:
                if act(t, s2): M.append(("LS", t, p, 0, s2))
    Q(0); P(1, 0, sg - 1); Q(1); P(1, 1, sg - 1); Q(2); P(0, 0, sg); Q(3); P(0, 1, sg)
    return M

class Op:
    count = 0
    def __init__(s, name, step, mk, cls, E, D, preds=(), seq=None, Emin=None):
        s.name, s.step, s.mk, s.cls, s.E, s.D, s.preds = name, step, mk, cls, E, D, list(preds)
        s.gap = None
        Op.count += 1
        s.seq = Op.count if seq is None else seq
        s.Emin = E if Emin is None else Emin

EXP_LAG = opt("explag", 8)
LDS_LEAD = opt("ldslead", 9)

class Program:
    def __init__(P, s0, s1, act):
        P.act, P.s0, P.s1 = act, s0, s1
        P.spine = []; P.base = {}
        for sg in range(s0, s1 + 1):
            P.base[sg] = len(P.spine); P.spine += step_spine(sg, act)
        P.base[s1 + 1] = len(P.spine)
        P.pos = {tag: i for i, tag in enumerate(P.spine)}
        P.first = {}; P.last = {}
        for i, (k, t, x, y, sg) in enumerate(P.spine):
            for key in ((k, x, y, sg), (k, x, sg), (k, x, y // 4, "h", sg)):
                P.first.setdefault(key, i); P.last[key] = i
        P.kready = {}; P.vready = {}
    def has(P, sg): return ("QK", 0, sg) in P.first
    def reserve(P, bargaps):
        r = {}
        prev = None
        for i, (k, t, x, y, sg) in enumerate(P.spine):
            ph = (k, x, sg) if k == "QK" else ("PV", x, y // 4, sg)
            if k != "LS" and ph != prev: r[i - 1] = 4
            if k != "LS": prev = ph
        for g in bargaps: r[g] = 8
        return r
    def barpos(P, sg):
        if sg < getattr(P, "latebar", 0): return P.base[sg + 1] - 1 - opt("latebarshift", 0)
        return P.first[("QK", 3, 3, sg)] + opt("barshift", 0)
    def ops(P, sg):
        act, pos = P.act, P.pos
        ops = []
        BIG = 10 ** 6
        for t in range(NT + 1):
            if not act(t, sg): continue
            for j in range(4 if t < NT else 1):
                p = j // 2
                r0 = SX if t == NT else SP(p, t) + 4 * (j % 2)
                mend = pos[("QK", t, j, 3, sg)]
                cons = pos.get(("PV", t, p, 0, sg), BIG)
                dc = cons - 3
                exps = [Op(f"exp{t}{j}{k}", sg, lambda st, r=r0 + k: v_exp(r), "exp", mend + EXP_LAG, dc - 4, Emin=mend) for k in range(4)]
                adds = [Op(f"add{t}{j}{k}", sg, lambda st, r=r0 + k, t=t: v_addl(t, r), "plain", 0, dc - 2, [exps[k]]) for k in range(4)]
                pre = adds
                if t in LM: pre = exps; adds = []
                dst = PX if t == NT else SP(p, t) + 2 * (j % 2)
                c0 = Op(f"cvt{t}{j}0", sg, lambda st, d=dst, r=r0: v_cvt(d, r, r + 1), "plain", 0, dc - 1, pre[0:2])
                c1 = Op(f"cvt{t}{j}1", sg, lambda st, d=dst + 1, r=r0: v_cvt(d, r + 2, r + 3), "plain", 0, dc, pre[2:4] + [c0])
                if j % 2 == 1:
                    prev = [o for o in ops if o.name == f"cvt{t}{j-1}1"][0]
                    c0.preds.append(prev); c1.preds.append(prev)
                for o in exps + adds + [c0, c1]: o.hardD = cons - 1
                for k, o in enumerate(exps + adds + [c0, c1]): o.seq = mend * 100 + k
                ops += exps + adds + [c0, c1]
        kr = P.kready.get(sg, P.barpos(sg - 1) + 1 if P.has(sg - 1) else -1)
        vrdy = P.vready.get(sg, P.barpos(sg - 1) + 1 if P.has(sg - 1) else -1)
        for j in range(4):
            fu = P.first[("QK", j, sg)]
            for s in range(4):
                if j >= 2: E = P.last[("QK", j - 2, s, sg)]
                else: E = P.last.get(("QK", j + 2, s, sg - 1), -1)
                E = max(E, kr)
                o = Op(f"ldk{j}{s}", sg, lambda st, j=j, s=s: lds_k(j, s, st), "mem", E, fu - LDS_LEAD - 3 + s)
                o.hardD = fu - 1; ops.append(o)
        g = opt("vgrp", 4)
        for p in range(2):
            for dt in range(8):
                if ("PV", p, dt, sg) not in P.first: continue
                fu = P.first[("PV", p, dt - dt % g, sg)]
                if p == 0: E = P.last.get(("PV", 1, dt, sg - 1), -1)
                else: E = P.last[("PV", 0, dt, sg)]
                E = max(E, vrdy)
                for h in range(2):
                    o = Op(f"ldv{p}{dt}{h}", sg, lambda st, p=p, dt=dt, h=h: lds_v(p, dt, h, st), "mem", E,
                           fu - LDS_LEAD - 2 * (g - 1 - dt % g) - 1 + h)
                    o.hardD = P.first[("PV", p, dt, sg)] - 1; ops.append(o)
        return ops
    def dma_ops(P, sg):
        ops = []; prev = None
        E = P.barpos(sg) + 1
        seq = [("m0V",), ("V", 0), ("V", 1), ("V", 2), ("V", 3), ("m0K",), ("K", 0), ("K", 1), ("K", 2), ("K", 3), ("adv",)]
        sp = opt("dmaspread", 5)
        for n, it in enumerate(seq):
            cls = "free"
            if it[0] == "m0V":
                mk = lambda st: I(f"s_add_u32 m0, s{S_M0V}, {((st + 3) % 4) * 16384}", "salu_m0", pre="V")
            elif it[0] == "m0K":
                mk = lambda st: I(f"s_add_u32 m0, s{S_M0K}, {((st + 3) % 4) * 16384}", "salu_m0", pre="K")
            elif it[0] == "adv":
                mk = lambda st: [I(f"s_add_u32 s{S_KOFF}, s{S_KOFF}, 16384", "salu")] + ([I(f"s_bitset0_b32 s{S_KOFF}, 18", "salu")] if st % 4 == 0 else [])
            else:
                mk = lambda st, it=it: dma(it[0], it[1]); cls = "mem"
            o = Op(f"dma{n}", sg, mk, cls, E + sp * n, E + sp * n + 8, [prev] if prev else [])
            o.blk = (it[0][-1], sg + 3)
            ops.append(o); prev = o
        return ops

def opcost(o):
    if o.cls == "exp": return 8
    if o.cls == "mem" and o.name.startswith("dma"): return 8
    return 4
def schedule(ops, g0, g1, flush=False, reserve={}):
    gaps = {}
    LW = opt("ldswin", 40)
    pend = sorted(ops, key=lambda o: (o.D, o.seq))
    for g in range(g0, g1):
        last = flush and g == g1 - 1
        def ready(o): return o.E <= g and all(p.gap is not None and p.gap < g for p in o.preds)
        cand = [o for o in pend if ready(o) and not (o.cls == "mem" and g < o.D - LW)]
        placed = [o for o in cand if o.D <= g]
        cap = 8 - reserve.get(g, 0)
        used = sum(opcost(o) for o in placed)
        rest = [o for o in cand if o.D > g]
        while used < cap:
            rem = cap - used
            haslds = any(o.cls == "mem" for o in placed)
            fit = [o for o in rest if opcost(o) <= rem and not (haslds and o.cls == "mem")]
            if not fit: break
            o = fit[0]
            if rem == 8 and opcost(o) == 4:
                second = [x for x in fit[1:] if opcost(x) == 4 and not (x.cls == "mem" and o.cls == "mem")]
                big = [x for x in fit if opcost(x) == 8]
                if not second and big and o.D - g > 2: o = big[0]
            placed.append(o); rest.remove(o); used += opcost(o)
        order = {"free": 0, "mem": 1, "exp": 2, "plain": 3, "low": 3}
        placed.sort(key=lambda o: order[o.cls])
        for o in placed:
            o.gap = g; pend.remove(o)
        again = True
        while again:
            again = False
            need = set()
            def mark(o):
                if o.gap is None and id(o) not in need:
                    need.add(id(o))
                    for p in o.preds: mark(p)
            for o in pend:
                if last or getattr(o, "hardD", 10 ** 9) <= g: mark(o)
            for o in sorted(pend, key=lambda o: (o.D, o.seq)):
                if id(o) in need and all(p.gap is not None for p in o.preds):
                    assert o.Emin <= g or last, f"cannot meet hard deadline {o.name} step {o.step} g {g} Emin {o.Emin}"
                    o.gap = g; placed.append(o); pend.remove(o); again = True
                    break
        gaps[g] = placed
    return gaps, pend

def build_template():
    P = Program(0, 10, lambda t, sg: True)
    NBk = P.base[1] - P.base[0]
    allops = []
    for b in range(1, 10): allops += P.ops(b) + P.dma_ops(b)
    gaps, pend = schedule(allops, 0, P.base[10], reserve=P.reserve([P.barpos(b) for b in range(10)]))
    def rel(b): return [[(o.step - b, o.name) for o in gaps[P.base[b] + g]] for g in range(NBk)]
    assert rel(5) == rel(6) == rel(7), "schedule not periodic"
    return rel(6), NBk, [tag[:4] + (tag[4] - 1,) for tag in P.spine[P.base[1]:P.base[2]]], P.barpos(1) - P.base[1]
TEMPLATE, NB, BM, BAR_POS = build_template()
TWHERE = {name: (d, g) for g, l in enumerate(TEMPLATE) for d, name in l}

def emit_mfma(a, tag):
    k, t, x, y, sg = tag
    a.L.append(mk_mfma(k, t, x, y, first=(x == 0 and sg == STAG[t])))
def emit_op(a, o, tagdma=True):
    r = o.mk(o.step % 4)
    for i in (r if isinstance(r, list) else [r]):
        if i.kind == "dma" and getattr(i, "tag", None) is None: i.tag = o.blk
        a.L.append(i)

def insert_lgkm_waits(L, carry_in=None):
    out = []
    q = list(carry_in or [])
    for i in L:
        if i.kind == "wait" and "lgkmcnt(0)" in i.text: q = []
        need = -1
        touched = i.rd | i.wr
        for k, o in enumerate(q):
            if o.wr & touched: need = k
        if getattr(i, "needlds", False): need = len(q) - 1
        if need >= 0:
            gr = getattr(q[need], "grp", None)
            if gr is not None:
                for k, o in enumerate(q):
                    if getattr(o, "grp", None) == gr: need = max(need, k)
            n = min(14, len(q) - 1 - need)
            out.append(I(f"s_waitcnt lgkmcnt({n})", "wait"))
            q = q[len(q) - n:] if n else []
        out.append(i)
        if i.kind in ("lds", "ldsw"): q.append(i)
    return out, q

def insert_vm_waits(L, carry_in=None):
    out = []
    q = list(carry_in or [])
    issued = {}
    for i in L:
        if i.kind == "dma": issued[i.tag] = issued.get(i.tag, 0) + 1
        if carry_in is None and getattr(i, "needs", None) is not None:
            for tg in i.needs: assert issued.get(tg, 0) == 4, f"{tg} not issued before its barrier"
        if i.kind == "wait" and "vmcnt(" in i.text:
            n = int(i.text.split("vmcnt(")[1].split(")")[0]); q = q[len(q) - n:] if n < len(q) else q
            if n == 0: q = []
        need = -1
        touched = i.rd | i.wr
        for k, o in enumerate(q):
            if getattr(o, "isload", False) and (o.wr & touched): need = k
            nd = getattr(i, "needs", None)
            if nd is not None and o.kind == "dma" and (nd == "all" or o.tag in nd): need = k
        if need >= 0:
            n = min(62, len(q) - 1 - need)
            out.append(I(f"s_waitcnt vmcnt({n})", "wait"))
            q = q[len(q) - n:] if n else []
        out.append(i)
        if i.kind in ("dma", "vmem"): q.append(i)
    return out, q

def hazard_need(p, c):
    need = 0
    if p.kind == "mfma":
        if c.kind in ("valu", "trans", "lds", "dma", "vmem", "ldsw") and (p.wr & (c.rd | c.wr)): need = 8
        if c.kind == "mfma":
            cacc = getattr(c, "cacc", set())
            if p.wr & (c.rd - cacc): need = 8
            elif (p.wr & cacc) and p.wr != cacc: need = 6
        if c.kind in ("valu", "trans") and (c.wr & getattr(p, "cacc", set())): need = max(need, 3)
    elif p.kind in ("valu", "trans"):
        if c.kind == "mfma" and (p.wr & c.rd): need = 2
        if p.kind == "trans" and c.kind in ("valu", "vmem", "ldsw") and (p.wr & c.rd): need = 1
        if "permlane" in c.text and (p.wr & (c.rd | c.wr)): need = 2
        if "readfirstlane" in c.text and (p.wr & c.rd): need = 1
        if any(k == "s" for k, _ in (p.wr & c.rd)):
            need = max(need, 5 if c.kind in ("vmem", "dma") else 2 if c.kind in ("valu", "trans") else 0)
    elif p.kind == "salu_m0":
        if c.kind == "dma": need = 1
    elif p.kind in ("vmem", "ldsw") and ("store" in p.text or "write" in p.text):
        if c.kind in ("valu", "trans") and (c.wr & p.rd): need = 2
    return need
def ws(i): return getattr(i, "ws", 1)
def fix_hazards(L, ctx=(), report=None):
    out = list(ctx); n0 = len(out)
    for c in L:
        if c.kind != "label":
            extra = 0; dist = 0
            for p in reversed(out):
                if p.kind == "label": continue
                e = hazard_need(p, c) - dist
                if e > extra: extra = e; who = p
                dist += ws(p)
                if dist >= 10: break
            if extra > 0:
                if report: print(f"HAZARD[{report}]: {who.text} -> {c.text} short by {extra}")
                n = I(f"s_nop {extra-1}", "nop"); n.ws = extra; out.append(n)
        out.append(c)
    return out[n0:]

TS = opt("ts", 0)
DBG = opt("dbg", 0)
def emit_ts(a):
    if not TS: return
    a.raw("s_memtime s[50:51]", "smem")
    a.raw("s_memrealtime s[52:53]", "smem")
    a.raw("s_waitcnt lgkmcnt(0)", "wait")
    a.salu("s_lshl_b64 exec, 1, s48")
    a.raw(f"v_mov_b32 v{VTS0}, s50", "valu", (), R("v", VTS0))
    a.raw(f"v_mov_b32 v{VTS1}, s52", "valu", (), R("v", VTS1))
    a.salu("s_mov_b64 exec, -1")
    a.salu("s_add_u32 s48, s48, 1")
def emit_ts_store(a):
    if not TS: return
    emit_ts(a)
    a.raw("s_waitcnt vmcnt(0)", "wait")
    emit_ts(a)
    a.salu(f"s_lshl_b32 s49, s2, 2")
    a.salu(f"s_add_u32 s49, s49, s{S_W}")
    if DBG:
        a.salu(f"s_cmp_eq_u32 s49, {opt('dbgwave', 0)}")
        a.salu(f"s_cselect_b32 s49, 0, 16")
    a.salu(f"s_lshl_b32 s49, s49, 9")
    if DBG:
        a.valu(f"v_readfirstlane_b32 s50, v{VTS1}", R("v", VTS1), R("s", 50))
        a.nop(2)
        a.valu(f"v_subrev_u32 v{VTS0}, s50, v{VTS1}", R("v", VTS1), R("v", VTS0))
    a.valu(f"v_lshlrev_b32 v{VTS2}, 2, v{VLANE}", R("v", VLANE), R("v", VTS2))
    a.nop(2)
    a.raw(f"buffer_store_dword v{VTS0}, v{VTS2}, s[44:47], s49 offen", "vmem", R("v", VTS0) | R("v", VTS2))
    a.raw(f"buffer_store_dword v{VTS1}, v{VTS2}, s[44:47], s49 offen offset:256", "vmem", R("v", VTS1) | R("v", VTS2))
    a.raw("s_waitcnt vmcnt(0)", "wait")

def scale_tile_pk(a, t, tmp0, hook=None):
    for r in range(16):
        q = VQ(t, 0) + r
        tmp = tmp0 + 2 * (r % 4)
        a.V(f"v_lshlrev_b32 {vr(tmp)}, 16, {vr(q)}", [q], tmp)
        a.V(f"v_and_b32 {vr(tmp+1)}, 0xffff0000, {vr(q)}", [q], tmp + 1)
        a.valu(f"v_pk_mul_f32 {vr(tmp,2)}, {vr(tmp,2)}, s[{S_C}:{S_C+1}]", R("v", tmp, 2), R("v", tmp, 2))
        a.V(f"v_cvt_pk_bf16_f32 {vr(q)}, {vr(tmp)}, {vr(tmp+1)}", [tmp, tmp + 1], q)
        if hook: hook(r)

def scale_ops(t, E, D):
    ops = []; n = 80; k = 0
    tmp0 = (VT if t == NT else SP(0, t))
    lastc = {}
    def mk(name, txt, rd, wr, preds):
        nonlocal k
        d = E + (D - E) * (k + 1) // n
        o = Op(name, STAG[t] - 1, lambda st: Vi(txt, rd, wr), "low", E, d, preds); o.hardD = D + 2; k += 1
        ops.append(o); return o
    for r in range(16):
        q = VQ(t, 0) + r; tmp = tmp0 + 2 * (r % 4)
        pr = [lastc[r - 4]] if r >= 4 else []
        lo = mk(f"qs{t}{r}a", f"v_lshlrev_b32 {vr(tmp)}, 16, {vr(q)}", [q], tmp, pr)
        hi = mk(f"qs{t}{r}b", f"v_and_b32 {vr(tmp+1)}, 0xffff0000, {vr(q)}", [q], tmp + 1, pr)
        m0 = mk(f"qs{t}{r}c", f"v_mul_f32 {vr(tmp)}, s{S_C}, {vr(tmp)}", [tmp], tmp, [lo])
        m1 = mk(f"qs{t}{r}d", f"v_mul_f32 {vr(tmp+1)}, s{S_C}, {vr(tmp+1)}", [tmp + 1], tmp + 1, [hi])
        lastc[r] = mk(f"qs{t}{r}e", f"v_cvt_pk_bf16_f32 {vr(q)}, {vr(tmp)}, {vr(tmp+1)}", [tmp, tmp + 1], q, [m0, m1])
    return ops

def chk_mfma(pk):
    return I(f"v_mfma_f32_16x16x32_bf16 {vr(VCHK,4)}, {vr(VZ,4)}, {vr(pk,4)}, {vr(VCHK,4)}", "mfma",
             R("v", VZ, 4) | R("v", pk, 4) | R("v", VCHK, 4), R("v", VCHK, 4), cacc=R("v", VCHK, 4))
def range_check(l):
    return [I(f"v_cmp_nle_f32 vcc, s{S_LO}, {vr(l)}", "valu", R("v", l), R("s", 106)),
            I(f"s_or_b64 s[{S_BAD}:{S_BAD+1}], s[{S_BAD}:{S_BAD+1}], vcc", "salu"),
            I(f"v_cmp_nge_f32 vcc, s{S_HI}, {vr(l)}", "valu", R("v", l), R("s", 106)),
            I(f"s_or_b64 s[{S_BAD}:{S_BAD+1}], s[{S_BAD}:{S_BAD+1}], vcc", "salu")]

class Chain:
    def __init__(c, step, E, rate):
        c.step, c.E, c.rate, c.k, c.ops = step, E, rate, 0, []
    def add(c, ins, preds=(), E=None, cls="low"):
        e = max(c.E, E if E is not None else c.E)
        d = max(e, c.E + int(c.k / c.rate))
        o = Op(f"ep{len(c.ops)}", c.step, (lambda st, ins=ins: ins), cls, e, d, [p for p in preds if p is not None])
        c.k += 1; c.ops.append(o); return o

def lreduce_ops(c, l, tmp, preds):
    prev = preds
    for sw in ("v_permlane32_swap_b32", "v_permlane16_swap_b32"):
        m = c.add(Vi(f"v_mov_b32 {vr(tmp)}, {vr(l)}", [l], tmp), prev)
        s_ = c.add(I(f"{sw} {vr(l)}, {vr(tmp)}", "valu", RV(l, tmp), RV(l, tmp)), [m])
        prev = [c.add(Vi(f"v_add_f32 {vr(l)}, {vr(l)}, {vr(tmp)}", [l, tmp], l), [s_])]
    return prev[0]

def finish_chunk(c, buf, rinv, rc, preds, srow, off, pk_ok=False):
    if pk_ok:
        mul = []
        for r in range(0, 8, 2):
            o = c.add(I(f"v_pk_mul_f32 {vr(buf+r,2)}, {vr(buf+r,2)}, {vr(rinv,2)} op_sel_hi:[1,0]", "valu",
                        R("v", buf + r, 2) | R("v", rinv), R("v", buf + r, 2)), [preds[r], preds[r + 1], rc])
            mul += [o, o]
    else:
        mul = [c.add(Vi(f"v_mul_f32 {vr(buf+r)}, {vr(rinv)}, {vr(buf+r)}", [rinv, buf + r], buf + r), [preds[r], rc]) for r in range(8)]
    cv = []
    for k in range(4):
        cv.append(c.add(v_cvt(buf + k, buf + 2 * k, buf + 2 * k + 1), [mul[2 * k], mul[2 * k + 1]] + cv[-1:]))
    sw = [c.add(I(f"v_permlane16_swap_b32 {vr(buf+k)}, {vr(buf+2+k)}", "valu", RV(buf + k, buf + 2 + k), RV(buf + k, buf + 2 + k)), [cv[3]]) for k in range(2)]
    st = c.add(I(f"buffer_store_dwordx4 {vr(buf,4)}, {vr(VST)}, s[{S_O}:{S_O+3}], s{srow} offen offset:{off}{STF}", "vmem",
                 R("v", buf, 4) | R("v", VST)), sw)
    ck = c.add(chk_mfma(buf), sw)
    return [st, ck]

LO_THR = f32(2.0 ** -24)
HI_THR = f32(2.0 ** 64)

def build():
    act = lambda t, sg: 0 <= sg - STAG[t] < 16
    P = Program(0, S, act)
    P.latebar = min(opt("kbarlate", 2), RF - 1)
    for sg in range(P.latebar): P.kready[sg + 1] = P.barpos(sg)
    bars = {}
    for sg in range(S):
        bars[P.barpos(sg)] = {("K", sg + 1), ("V", sg + 1)}
    NVB = opt("nvbar", 3)
    for sg in range(min(NVB, RF)):
        g = P.first[("QK", opt("vbarphase", 2), sg)] + opt("vbarshift", 0)
        bars[g] = {("V", sg)}; P.vready[sg] = g + 1
        if sg > 0: bars[P.barpos(sg - 1)].discard(("V", sg))
    bars[P.barpos(S - 1)] = "all"
    allops = {}
    for sg in range(S):
        allops[sg] = P.ops(sg) + P.dma_ops(sg)
    free1, free2 = [], []
    for sg in range(S):
        for o in allops[sg]:
            d, g = TWHERE[o.name]
            x = sg - d
            if RF <= x <= 15:
                o.gap = P.base[x] + g
            elif o.name.startswith("dma"):
                if x < RF: free1.append(o)
                elif o.blk[1] < S and o.name != "dma10": free2.append(o)
            elif sg < RF or (x < RF): free1.append(o)
            else: free2.append(o)
    END1 = P.base[RF]
    a = Asm()
    T0, T1, T2, T3, T4, T5 = [VT + 8 + k for k in range(6)]
    a.salu("s_cmp_ge_u32 s2, 256")
    a.salu("s_cbranch_scc1 L_end")
    a.raw("s_load_dwordx8 s[36:43], s[0:1], 0", "smem")
    if opt("pad", 0): a.raw("s_memrealtime s[46:47]", "smem")
    if opt("gpad", 0):
        a.raw("s_load_dwordx2 s[48:49], s[0:1], 32", "smem")
        a.raw("s_waitcnt lgkmcnt(0)", "wait")
        a.salu("s_not_b32 s50, s46")
        a.raw("v_mov_b32 v254, s50", "valu", (), R("v", 254))
        a.raw("v_mov_b32 v255, 0", "valu", (), R("v", 255))
        a.salu("s_mov_b64 exec, 1")
        a.raw("global_atomic_umax v255, v254, s[48:49] sc1", "vmem", RV(254, 255))
        a.salu("s_mov_b64 exec, -1")
    if opt("cpf", 1):
        a.salu("s_getpc_b64 s[62:63]")
        a.label("L_pc")
        a.V(f"v_lshlrev_b32 {vr(VT+6)}, 7, v0", [0], VT + 6)
        a.V(f"v_add_u32 {vr(VT+7)}, 32768, {vr(VT+6)}", [VT + 6], VT + 7)
        a.V(f"v_min_u32 {vr(VT+6)}, L_end-L_pc, {vr(VT+6)}", [VT + 6], VT + 6)
        a.V(f"v_min_u32 {vr(VT+7)}, L_end-L_pc, {vr(VT+7)}", [VT + 7], VT + 7)
    def cpf():
        for k in range(opt("cpfn", 2)):
            a.raw(f"global_load_dword {vr(VT+16)}, {vr(VT+6+k)}, s[62:63]", "vmem", RV(VT + 6 + k))
    if opt("cpf", 1) == 1: cpf()
    if TS:
        a.raw(f"s_load_dwordx2 s[44:45], s[0:1], {32 if DBG else 40}", "smem")
        a.salu("s_mov_b32 s48, 0")
        a.valu(f"v_mov_b32 v{VTS0}, 0", (), R("v", VTS0))
        a.valu(f"v_mov_b32 v{VTS1}, 0", (), R("v", VTS1))
        emit_ts(a)
        a.salu("s_and_b32 s45, s45, 0xffff")
        a.salu(f"s_mov_b32 s46, {256 if DBG else 0x80000}")
        a.salu("s_mov_b32 s47, 0x00020000")
    V = a.V
    V(f"v_and_b32 {vr(VLANE)}, 63, v0", [0], VLANE)
    V(f"v_lshrrev_b32 {vr(T0)}, 6, v0", [0], T0)
    V(f"v_and_b32 {vr(T1)}, 15, v0", [0], T1)
    a.valu(f"v_readfirstlane_b32 s{S_W}, {vr(T0)}", R("v", T0), R("s", S_W))
    V(f"v_lshrrev_b32 {vr(T2)}, 4, {vr(VLANE)}", [VLANE], T2)
    V(f"v_lshrrev_b32 {vr(T3)}, 3, {vr(VLANE)}", [VLANE], T3)
    V(f"v_and_b32 {vr(T4)}, 7, {vr(VLANE)}", [VLANE], T4)
    a.salu("s_and_b32 s32, s2, 7")
    a.salu("s_lshr_b32 s33, s2, 4")
    a.salu("s_lshl_b32 s33, s33, 3")
    a.salu("s_add_u32 s32, s32, s33")
    a.salu("s_lshr_b32 s33, s2, 3")
    a.salu("s_and_b32 s33, s33, 1")
    a.salu("s_lshl_b32 s34, s32, 1")
    a.salu("s_add_u32 s34, s34, s33")
    a.salu("s_mul_i32 s35, s34, 86016")
    a.salu("s_lshl_b32 s33, s32, 18")
    a.salu(f"s_mul_i32 s{S_ROW(0)}, s{S_W}, 20480")
    for t in range(1, NT): a.salu(f"s_add_u32 s{S_ROW(t)}, s{S_ROW(0)}, {t*4096}")
    a.salu(f"s_mov_b32 s{S_ROW(NT)}, 81920")
    a.salu(f"s_and_b32 s{S_PIECE}, s{S_W}, 1")
    a.salu(f"s_lshl_b32 s{S_PIECE}, s{S_PIECE}, 13")
    a.salu(f"s_lshr_b32 s34, s{S_W}, 1")
    a.salu("s_lshl_b32 s34, s34, 7")
    a.salu(f"s_add_u32 s{S_PIECE}, s{S_PIECE}, s34")
    a.salu(f"s_lshl_b32 s{S_M0K}, s{S_W}, 12")
    a.salu(f"s_add_u32 s{S_M0V}, s{S_M0K}, {LDS_V}")
    V(f"v_lshlrev_b32 {vr(VST)}, 8, {vr(T1)}", [T1], VST)
    V(f"v_lshl_add_u32 {vr(VQOFF)}, {vr(T2)}, 4, {vr(VST)}", [T2, VST], VQOFF)
    V(f"v_lshrrev_b32 {vr(T5)}, 1, {vr(T2)}", [T2], T5)
    V(f"v_xor_b32 {vr(T0)}, {vr(T2)}, {vr(T5)}", [T2, T5], T0)
    for par in range(2):
        if par == 1: V(f"v_xor_b32 {vr(T0)}, 5, {vr(T0)}", [T0], T0)
        V(f"v_xor_b32 {vr(VDK(par))}, {vr(T4)}, {vr(T0)}", [T4, T0], VDK(par))
        V(f"v_lshlrev_b32 {vr(VDK(par))}, 4, {vr(VDK(par))}", [VDK(par)], VDK(par))
        V(f"v_lshl_add_u32 {vr(VDK(par))}, {vr(T3)}, 8, {vr(VDK(par))}", [T3, VDK(par)], VDK(par))
        V(f"v_add_u32 {vr(VDK(par))}, s{S_PIECE}, {vr(VDK(par))}", [VDK(par)], VDK(par))
    V(f"v_add_u32 {vr(VDK(2))}, 2048, {vr(VDK(0))}", [VDK(0)], VDK(2))
    V(f"v_add_u32 {vr(VDK(3))}, 3072, {vr(VDK(1))}", [VDK(1)], VDK(3))
    V(f"v_add_u32 {vr(VDK(1))}, 1024, {vr(VDK(1))}", [VDK(1)], VDK(1))
    V(f"v_lshrrev_b32 {vr(T0)}, 1, {vr(T4)}", [T4], T0)
    V(f"v_xor_b32 {vr(T0)}, {vr(T0)}, {vr(T2)}", [T0, T2], T0)
    V(f"v_lshlrev_b32 {vr(T0)}, 5, {vr(T0)}", [T0], T0)
    V(f"v_and_b32 {vr(T5)}, 1, {vr(VLANE)}", [VLANE], T5)
    V(f"v_lshl_add_u32 {vr(T0)}, {vr(T5)}, 4, {vr(T0)}", [T5, T0], T0)
    V(f"v_lshl_add_u32 {vr(T0)}, {vr(T3)}, 8, {vr(T0)}", [T3, T0], T0)
    V(f"v_add_u32 {vr(VDV(0))}, s{S_PIECE}, {vr(T0)}", [T0], VDV(0))
    for j in range(1, 4): V(f"v_add_u32 {vr(VDV(j))}, {1024*j}, {vr(VDV(0))}", [VDV(0)], VDV(j))
    a.raw("s_waitcnt lgkmcnt(0)", "wait")
    def srd(d, lo, off, size):
        a.salu(f"s_add_u32 s{d}, s{lo}, s{off}")
        a.salu(f"s_addc_u32 s{d+1}, s{lo+1}, 0")
        a.salu(f"s_and_b32 s{d+1}, s{d+1}, 0xffff")
        a.salu(f"s_mov_b32 s{d+2}, {size}")
        a.salu(f"s_mov_b32 s{d+3}, 0x00020000")
    srd(S_K, 38, 33, 262144)
    srd(S_Q, 36, 35, 86016)
    srd(S_V, 40, 33, 262144)
    srd(S_O, 42, 35, 86016)
    order = opt("order", "K0,Q0,Q5,Q1,V0,K1,Q2,Q3,V1,K2,Q4,V2").split(",")
    assert sorted(order) == sorted(["K0", "K1", "K2", "V0", "V1", "V2"] + [f"Q{t}" for t in range(6)])
    def load_instrs(item):
        k, n = item[0], int(item[1])
        if k == "Q": return [q_load(n, s) for s in range(4)]
        so, base = (S_KOFF, S_M0K) if k == "K" else (S_VOFF, S_M0V)
        L = [dma(k, j, tag=(k, n)) for j in range(4)]
        return [[I(f"s_mov_b32 s{so}, {n*16384}", "salu"), I(f"s_add_u32 m0, s{base}, {n*16384}", "salu_m0"), L[0]]] + L[1:]
    loadq = [x for item in order for x in load_instrs(item)]
    allloads = list(loadq)
    def core(x): return x[-1] if isinstance(x, list) else x
    nissued = [0]
    def issue(n):
        for _ in range(n):
            if loadq:
                x = loadq.pop(0); nissued[0] += 1
                a.L += x if isinstance(x, list) else [x]
    WIN = opt("win", 12)
    if TS == 2: emit_ts(a)
    issue(opt("npre", 12))
    if TS == 2: emit_ts(a)
    if opt("cpf", 1) == 2: cpf()
    a.salu(f"s_mov_b32 s{S_C}, {f32(SCALE)}")
    a.salu(f"s_mov_b32 s{S_C+1}, {f32(SCALE)}")
    a.salu(f"s_mov_b64 s[{S_BAD}:{S_BAD+1}], 0")
    a.salu(f"s_mov_b32 s{S_LO}, {LO_THR}")
    a.salu(f"s_mov_b32 s{S_HI}, {HI_THR}")
    V(f"v_and_b32 {vr(T0)}, 1, {vr(T2)}", [T2], T0)
    V(f"v_lshl_add_u32 {vr(VST)}, {vr(T0)}, 5, {vr(VST)}", [T0, VST], VST)
    V(f"v_lshrrev_b32 {vr(T0)}, 1, {vr(T2)}", [T2], T0)
    V(f"v_lshl_add_u32 {vr(VST)}, {vr(T0)}, 4, {vr(VST)}", [T0, VST], VST)
    V(f"v_lshrrev_b32 {vr(T0)}, 1, {vr(T1)}", [T1], T0)
    V(f"v_lshrrev_b32 {vr(T5)}, 1, {vr(T0)}", [T0], T5)
    V(f"v_lshrrev_b32 {vr(T3)}, 2, {vr(T0)}", [T0], T3)
    V(f"v_xor_b32 {vr(T5)}, {vr(T5)}, {vr(T3)}", [T5, T3], T5)
    V(f"v_and_b32 {vr(T5)}, 1, {vr(T5)}", [T5], T5)
    V(f"v_xor_b32 {vr(T0)}, {vr(T0)}, {vr(T5)}", [T0, T5], T0)
    V(f"v_xor_b32 {vr(T0)}, {vr(T0)}, {vr(T2)}", [T0, T2], T0)
    for j in range(4):
        a.salu(f"s_xor_b32 s{32+j}, s{S_W}, {j}")
        a.salu(f"s_lshl_b32 s{32+j}, s{32+j}, 11")
    for p in range(2):
        if p == 1: V(f"v_xor_b32 {vr(T0)}, 4, {vr(T0)}", [T0], T0)
        V(f"v_lshlrev_b32 {vr(T5)}, 4, {vr(T0)}", [T0], T5)
        V(f"v_lshl_add_u32 {vr(T5)}, {vr(T1)}, 7, {vr(T5)}", [T1, T5], T5)
        for j in range(4): V(f"v_add_u32 {vr(VKA(j,p))}, s{32+j}, {vr(T5)}", [T5], VKA(j, p))
    V(f"v_lshrrev_b32 {vr(T0)}, 2, {vr(T1)}", [T1], T0)
    V(f"v_lshl_add_u32 {vr(T0)}, {vr(T2)}, 2, {vr(T0)}", [T2, T0], T0)
    V(f"v_lshlrev_b32 {vr(T0)}, 7, {vr(T0)}", [T0], T0)
    V(f"v_and_b32 {vr(T5)}, 3, {vr(T1)}", [T1], T5)
    V(f"v_lshl_add_u32 {vr(T0)}, {vr(T5)}, 3, {vr(T0)}", [T5, T0], T0)
    V(f"v_add_u32 {vr(T0)}, {LDS_V}, {vr(T0)}", [T0], T0)
    V(f"v_lshrrev_b32 {vr(T5)}, 3, {vr(T1)}", [T1], T5)
    V(f"v_lshl_add_u32 {vr(T5)}, {vr(T2)}, 1, {vr(T5)}", [T2, T5], T5)
    V(f"v_and_b32 {vr(T5)}, 3, {vr(T5)}", [T5], T5)
    for c in range(4):
        V(f"v_xor_b32 {vr(T3)}, {c}, {vr(T5)}", [T5], T3)
        V(f"v_lshl_add_u32 {vr(T3)}, {vr(T3)}, 5, {vr(T0)}", [T3, T0], T3)
        for j in range(4): V(f"v_add_u32 {vr(VVA(j,c))}, s{32+j}, {vr(T3)}", [T3], VVA(j, c))
    a.salu(f"s_lshl_b32 s32, s{S_W}, 13")
    a.salu(f"s_add_u32 s32, s32, {LDS_X}")
    a.salu(f"s_lshl_b32 s33, s{S_W}, 11")
    a.salu(f"s_add_u32 s33, s33, {LDS_X}")
    V(f"v_lshlrev_b32 {vr(T0)}, 4, {vr(VLANE)}", [VLANE], T0)
    V(f"v_add_u32 {vr(VXW)}, s32, {vr(T0)}", [T0], VXW)
    V(f"v_add_u32 {vr(VXR)}, s33, {vr(T0)}", [T0], VXR)
    V(f"v_lshlrev_b32 {vr(VT+14)}, 2, {vr(VLANE)}", [VLANE], VT + 14)
    V(f"v_add_u32 {vr(VT+15)}, s{S_M0K}, {vr(VT+14)}", [VT + 14], VT + 15)
    for r in list(range(PX + 2, PX + 4)) + list(range(VZ, VZ + 4)) + list(range(VCHK, VCHK + 4)) + [VL(t) for t in range(NT + 1)]:
        V(f"v_mov_b32 {vr(r)}, 0", [], r)
    for r in range(4): V(f"v_mov_b32 {vr(VONE+r)}, 0x3f803f80", [], VONE + r)
    if opt("cpf2", 1):
        a.salu(f"s_lshl_b32 s32, s{S_W}, 12")
        a.salu(f"s_add_u32 s32, s32, L_r2-L_pc")
        V(f"v_lshlrev_b32 {vr(VT+13)}, 7, {vr(VLANE)}", [VLANE], VT + 13)
        V(f"v_add_u32 {vr(VT+13)}, s32, {vr(VT+13)}", [VT + 13], VT + 13)
        V(f"v_min_u32 {vr(VT+17)}, L_end-L_pc, {vr(VT+13)}", [VT + 13], VT + 17)
    emit_ts(a)
    first_tiles = [int(x[1]) for x in order if x[0] == "Q" and STAG[int(x[1])] == 0]
    for t in first_tiles:
        if TS == 2:
            a.V(f"v_mov_b32 {vr(VT)}, {vr(VQ(t,0))}", [VQ(t, 0)], VT); emit_ts(a)
            a.V(f"v_mov_b32 {vr(VT)}, {vr(VQ(t,3))}", [VQ(t, 3)], VT); emit_ts(a)
        scale_tile_pk(a, t, VT)
    emit_ts(a)
    a.raw("s_barrier", "barrier", needs={("K", 0)})
    emit_ts(a)
    sops = []
    for t in range(NT + 1):
        if STAG[t] > 0:
            D = P.pos[("QK", t, 0, 0, STAG[t])] - 3
            sops += scale_ops(t, max(0, D - opt("qswin", 25)), D)
    reg1 = {(o.step, o.name) for o in free1 if o.name.startswith("dma")}
    free1 = [o for o in free1 if not o.name.startswith("dma")]
    after = [-1] * len(allloads)
    for sg in range(RF):
        for k, n0, blk in (("V", 0, sg + 3), ("K", 5, sg + 3)):
            so, base = (S_KOFF, S_M0K) if k == "K" else (S_VOFF, S_M0V)
            pre = [I(f"s_mov_b32 s{so}, {(blk % 16)*16384}", "salu"), I(f"s_add_u32 m0, s{base}, {(blk % 4)*16384}", "salu_m0")]
            assert (sg, f"dma{n0 + 1}") in reg1, "first dma of a group deferred: not supported"
            for j in range(4):
                if (sg, f"dma{n0 + 1 + j}") in reg1:
                    d = dma(k, j, tag=(k, blk))
                    allloads.append(pre + [d] if j == 0 else d); after.append(sg)
    adv_in_r1 = (RF - 1, "dma10") in reg1
    RES = P.reserve(list(bars))
    gaps1, pend = schedule(free1 + sops, -1, END1, flush=True, reserve=RES)
    assert not pend
    def emit_region(x, gaps, g0, g1):
        for g in range(g0, g1):
            if g >= 0 and g < len(P.spine):
                if TS and g in P.base.values() and g > 0: emit_ts(x)
                elif TS == 4 and g >= P.base[16] and RES.get(g - 1, 0) == 4: emit_ts(x)
                emit_mfma(x, P.spine[g])
            if g in bars:
                x.raw("s_barrier", "barrier", needs=bars[g], needlds=(g in ldsbars), barstep=barstep.get(g, -1))
            for o in gaps.get(g, []): emit_op(x, o)
    ldsbars = set()
    barstep = {P.barpos(sg): sg for sg in range(S)}
    emit_region(a, gaps1, -1, END1)
    a.raw("s_nop 0", "nop", forceall=True)
    if adv_in_r1: a.L += [o for o in allops[RF - 1] if o.name == "dma10"][0].mk((RF - 1) % 4)
    niter = (16 - RF + 3) // 4
    a.salu(f"s_mov_b32 s{S_CNT}, {niter}")
    emit_ts(a)
    a.raw("s_waitcnt lgkmcnt(0)", "wait")
    if RF % 4: a.salu(f"s_branch L_blk{RF % 4}")
    L2 = []; n = nissued[0]; started = False; passed = -1; maxneed = -1; cnt = 0
    lastq = max(k for k, x in enumerate(allloads) if core(x).kind != "dma")
    cores = {id(core(x)) for x in allloads}
    def put(tgt):
        nonlocal n
        while n < min(tgt, len(allloads)) and after[n] <= passed:
            x = allloads[n]; L2.extend(x if isinstance(x, list) else [x]); n += 1
    for i in a.L:
        need = -1
        if i is core(allloads[0]): started = True
        if started and id(i) not in cores:
            for k, x in enumerate(allloads):
                c = core(x)
                if c.kind == "dma":
                    nd = getattr(i, "needs", None)
                    if nd is not None and c.tag in nd: need = k
                elif c.wr & (i.rd | i.wr): need = k
            maxneed = max(maxneed, need)
            if getattr(i, "forceall", False):
                print("loads flushed at end of region 1:", len(allloads) - n); put(len(allloads)); continue
            if need >= 0: put(need + WIN + 1)
        L2.append(i)
        passed = max(passed, getattr(i, "barstep", -1))
        if i.kind == "mfma" and maxneed >= lastq - opt("qslack", 0):
            cnt += 1
            if cnt % opt("lrate", 4) == 0: put(n + 1)
    assert n == len(allloads)
    r1, _ = insert_lgkm_waits(L2)
    r1, vq1 = insert_vm_waits(r1)
    if TS == 3:
        x = Asm(); seen = False; inb = False; names = []
        for k, i in enumerate(r1):
            special = seen and (i.kind in ("dma", "vmem", "barrier", "salu_m0") or (i.kind == "wait" and "vmcnt" in i.text) or (i.kind == "salu" and i.text.startswith("s_mov_b32 s2")))
            nxt = r1[k + 1] if k + 1 < len(r1) else None
            if special and not inb:
                grp = []
                for j in r1[k:]:
                    if j.kind in ("dma", "vmem", "barrier", "salu_m0") or (j.kind == "wait" and "vmcnt" in j.text) or (j.kind == "salu" and j.text.startswith("s_mov_b32 s2")): grp.append(j)
                    else: break
                stampit = any(j.kind in ("barrier", "wait") for j in grp)
                if stampit: emit_ts(x); names.append("/".join(("B" if j.kind == "barrier" else "W" if j.kind == "wait" else "L") for j in grp if j.kind in ("barrier", "wait", "dma", "vmem")))
                inb = True
            if inb and not special:
                if stampit: emit_ts(x)
                inb = False
            x.L.append(i)
            if i.kind == "mfma": seen = True
            if i.kind == "smem" and "memtime" in i.text: names.append("ts")
        print("stamps:", names)
        r1 = x.L
    r1 = fix_hazards(r1)

    PF = Program(0, 2, lambda t, sg: True)
    PROTO = {o.name: o for o in PF.ops(1) + PF.dma_ops(1)}
    blocks = []
    for st in range(4):
        b = Asm()
        for g, tag in enumerate(BM):
            k, t, x, y, _ = tag
            b.L.append(mk_mfma(k, t, x, y))
            if g == BAR_POS:
                b.raw("s_waitcnt vmcnt(8)", "wait")
                b.raw("s_barrier", "barrier", loopbar=True)
                if st == opt("cpf2blk", 1) and opt("cpf2", 1):
                    b.raw(f"global_load_dword {vr(VT+16)}, {vr(VT+17)}, s[62:63]", "vmem", RV(VT + 17), RV(VT + 16), extra=True)
            for d, name in TEMPLATE[g]:
                r = PROTO[name].mk((st + d) % 4)
                for i in (r if isinstance(r, list) else [r]):
                    if i.kind == "dma": i.rel = (PROTO[name].blk[0], PROTO[name].blk[1] - 1 + d)
                    if i.kind == "salu_m0":
                        if i.pre == "V" and (12 + st + d) + 3 == S:
                            b.salu(f"s_cmp_eq_u32 s{S_CNT}, 1")
                            for sr in (S_V + 2, S_K + 2): b.salu(f"s_cselect_b32 s{sr}, 0, s{sr}")
                            assert st + d >= 0
                    b.L.append(i)
        blocks.append(b.L)
    flat = [i for bl in blocks for i in bl]
    marks = {id(bl[0]): k for k, bl in enumerate(blocks)}
    _, q1 = insert_lgkm_waits(flat, [])
    body, q2 = insert_lgkm_waits(flat, q1)
    assert [i.text for i in q1] == [i.text for i in q2]
    body2 = []
    for i in body:
        if id(i) in marks and marks[id(i)] > 0:
            lab = I(f"L_blk{marks[id(i)]}:", "label")
            if body2[-1].kind == "wait" and "lgkm" in body2[-1].text: body2.insert(len(body2) - 1, lab)
            else: body2.append(lab)
        body2.append(i)
    body = body2
    abl = opt("abl", "").split(",")
    tailctl = [I(f"s_sub_u32 s{S_CNT}, s{S_CNT}, 1", "salu"), I(f"s_cmp_lg_u32 s{S_CNT}, 0", "salu"), I("s_cbranch_scc1 L_loop", "salu")]
    if TS:
        x = Asm(); emit_ts(x); tailctl = x.L + tailctl
    chk = fix_hazards(body + tailctl + body, report="loop")
    assert len(chk) == len(body) * 2 + len(tailctl), "hazards in loop"
    q = list(vq1)
    for sg in range(RF, 16):
        for i in blocks[sg % 4]:
            if i.kind == "dma": q.append(I("", "dma", tag=(i.rel[0], sg + i.rel[1])))
            if getattr(i, "extra", False): q.append(I("", "vmem"))
            if getattr(i, "loopbar", False):
                q = q[-8:]
                badtags = {o.tag for o in q if o.kind == "dma"} & {("K", sg + 1), ("V", sg + 1)}
                assert not badtags, f"vmcnt(12) insufficient at step {sg}: {badtags}"
                assert not any(getattr(o, "isload", False) for o in q)
    vq2 = q

    start2 = P.base[16]; end2 = len(P.spine)
    opbyname = {(o.step, o.name): o for sg in allops for o in allops[sg]}
    eops = []
    rate = opt("eprate", 2.0)
    lastgap = end2 - 1
    for t in range(NT):
        sl = STAG[t] + 15
        E0 = max(start2, P.pos[("PV", t, 0, 7, sl)] + 1)
        c = Chain(sl, E0, rate)
        tmp = SP(0, t)
        if t in LM:
            lreg = VLM(t); lr = None
            c.E = max(c.E, min(lastgap, P.pos[("LS", t, 1, 0, sl)] + 4))
        else:
            lreg = VL(t)
            adds = [opbyname[(sl, f"add{t}{j}{k}")] for j in range(4) for k in range(4)]
            lr = lreduce_ops(c, VL(t), tmp, adds)
        rc = c.add(I(f"v_rcp_f32 {vr(tmp+2)}, {vr(lreg)}", "trans", R("v", lreg), R("v", tmp + 2)), [lr])
        c.add(range_check(lreg), [lr])
        done = {}
        for m in range(4):
            buf = VQ(t, 0) + 8 * (m % 2)
            Em = P.pos[("PV", t, 1, 2 * m + 1, sl)]
            exposed = Em + 4 >= lastgap
            c.E = max(c.E, min(Em + 4, lastgap)); c.k = 0
            rd = [c.add(I(f"v_accvgpr_read_b32 {vr(buf+r)}, {ar(AO(t,2*m)+r)}", "valu", R("a", AO(t, 2 * m) + r), R("v", buf + r)),
                        done.get(m - 2, [])) for r in range(8)]
            done[m] = finish_chunk(c, buf, tmp + 2, rc, rd, S_ROW(t), 64 * m, pk_ok=exposed)
        eops += c.ops
    slx = STAG[NT] + 15
    xq = VQ(NT, 0)
    E0 = max(start2, P.pos[("PV", NT, 0, 7, slx)] + 4)
    xbar_step = slx + 1
    extra_bar = False
    assert xbar_step + 1 <= S - 1 and S - 4 <= slx
    xbar = P.barpos(xbar_step)
    c = Chain(slx, min(E0, lastgap), max(rate, 60.0 / max(1, xbar - E0 - 6)))
    adds = [opbyname[(slx, f"add{NT}0{k}")] for k in range(4)]
    lr = lreduce_ops(c, VL(NT), SX, adds)
    LXO = (S % 4) * 16384
    wl = c.add(I(f"ds_write_b32 {vr(VT+15)}, {vr(VL(NT))} offset:{LXO}", "ldsw", RV(VT + 15, VL(NT)), needs={("K", S)}), [lr])
    for dt in range(8):
        c.add(I(f"ds_write_b128 {vr(VXW)}, {ar(AO(NT,dt),4)} offset:{1024*dt}", "ldsw", R("v", VXW) | R("a", AO(NT, dt), 4)))
    for o in c.ops: o.hardD = xbar - 1 if not extra_bar else 10 ** 9
    xops1 = c.ops
    def xcombine(c):
        lp = [c.add(I(f"ds_read_b32 {vr(SX+w)}, {vr(VT+14)} offset:{LXO + 4096*w}", "lds", RV(VT + 14), RV(SX + w))) for w in range(4)]
        r0 = [c.add(I(f"ds_read_b128 {vr(xq+4*w,4)}, {vr(VXR)} offset:{8192*w}", "lds", RV(VXR), R("v", xq + 4 * w, 4))) for w in range(4)]
        c.E += 6; c.k = 0
        s1 = c.add(Vi(f"v_add_f32 {vr(SX)}, {vr(SX)}, {vr(SX+1)}", [SX, SX + 1], SX), lp)
        s2 = c.add(Vi(f"v_add_f32 {vr(SX+2)}, {vr(SX+2)}, {vr(SX+3)}", [SX + 2, SX + 3], SX + 2), lp)
        s3 = c.add(Vi(f"v_add_f32 {vr(VL(NT))}, {vr(SX)}, {vr(SX+2)}", [SX, SX + 2], VL(NT)), [s1, s2])
        rc = c.add(I(f"v_rcp_f32 {vr(PX)}, {vr(VL(NT))}", "trans", RV(VL(NT)), RV(PX)), [s3])
        c.add(range_check(VL(NT)), [s3])
        def sum4(b0, b1, b2, b3, pr):
            res = []
            for r in range(4):
                x = c.add(Vi(f"v_add_f32 {vr(b0+r)}, {vr(b0+r)}, {vr(b1+r)}", [b0 + r, b1 + r], b0 + r), pr)
                y = c.add(Vi(f"v_add_f32 {vr(b2+r)}, {vr(b2+r)}, {vr(b3+r)}", [b2 + r, b3 + r], b2 + r), pr)
                res.append(c.add(Vi(f"v_add_f32 {vr(b0+r)}, {vr(b0+r)}, {vr(b2+r)}", [b0 + r, b2 + r], b0 + r), [x, y]))
            return res
        h0 = sum4(xq, xq + 4, xq + 8, xq + 12, r0)
        bufs = [xq + 4, xq + 8, xq + 12, SX]
        r1_ = [c.add(I(f"ds_read_b128 {vr(bufs[w],4)}, {vr(VXR)} offset:{8192*w + 1024}", "lds", RV(VXR), R("v", bufs[w], 4)), h0 + [s3]) for w in range(4)]
        c.E += int(c.k / c.rate) + 6; c.k = 0
        h1 = sum4(bufs[0], bufs[1], bufs[2], bufs[3], r1_)
        so = c.add([I(f"s_lshl_b32 s{S_T}, s{S_W}, 6", "salu"), I(f"s_add_u32 s{S_T}, s{S_T}, 81920", "salu")], cls="free")
        rc.extra = so
        finish_chunk(c, xq, PX, rc, h0 + h1, S_T, 0)
        return so
    e = Asm()
    if not extra_bar:
        c2 = Chain(slx, xbar + 1, rate); xcombine(c2); xops2 = c2.ops
        ldsbars.add(xbar); ldsbars.add(P.barpos(xbar_step + 1))
        for o in xops2:
            x = o.mk(0)
            if not isinstance(x, list) and x.kind == "lds": o.hardD = P.barpos(xbar_step + 1) - 1
    else:
        xops2 = []
    gaps2, pend = schedule(free2 + eops + xops1 + xops2, start2, end2 + 1, flush=True, reserve=RES)
    assert not pend
    emit_region(e, gaps2, start2, end2 + 1)
    if extra_bar:
        e.raw("s_barrier", "barrier", needlds=True)
        c2 = Chain(slx, 0, rate); xcombine(c2)
        g3, pend = schedule(c2.ops, 0, 1, flush=True)
        for o in g3[0]: emit_op(e, o)
    e.valu(f"v_cmp_u_f32 vcc, {vr(VCHK)}, {vr(VCHK+1)}", R("v", VCHK, 2), R("s", 106))
    e.salu(f"s_or_b64 s[{S_BAD}:{S_BAD+1}], s[{S_BAD}:{S_BAD+1}], vcc")
    e.salu(f"s_cmp_lg_u64 s[{S_BAD}:{S_BAD+1}], 0")
    if opt("forceslow", 0) == 1: e.salu("s_cmp_eq_u32 s2, s2")
    if opt("forceslow", 0) == 2: e.salu(f"s_cmp_eq_u32 s{S_W}, 2")
    e.salu("s_cbranch_scc1 L_slow")
    emit_ts_store(e)
    if opt("pad", 0):
        e.raw("s_waitcnt vmcnt(0)", "wait")
        if opt("gpad", 0):
            e.raw("global_load_dword v254, v255, s[48:49] sc0 sc1", "vmem", RV(255), RV(254))
            e.raw("s_waitcnt vmcnt(0)", "wait")
            e.raw("v_readfirstlane_b32 s50, v254", "valu", RV(254), R("s", 50))
            e.nop(2)
            e.salu("s_not_b32 s46, s50")
        e.label("L_pad")
        e.raw("s_memrealtime s[50:51]", "smem")
        e.raw("s_waitcnt lgkmcnt(0)", "wait")
        e.salu("s_sub_u32 s50, s50, s46")
        e.salu(f"s_cmp_lt_u32 s50, {opt('pad', 0) * 100}")
        e.salu("s_cbranch_scc1 L_pad")
    e.label("L_end")
    e.raw("s_endpgm", "other")
    r2, _ = insert_lgkm_waits(e.L, q2)
    r2, _ = insert_vm_waits(r2, vq2)
    r2 = fix_hazards(r2, ctx=body[-30:] + tailctl)
    return P, r1, body, tailctl, r2, extra_bar

def build_slow(extra_bar):
    s = Asm()
    Vs = s.V
    def VM(t): return 164 + t
    SS = 96; MX = 160; AL = 161; TM = 162
    def PP(t): return 112 + 8 * t
    s.label("L_slow")
    s.raw("s_waitcnt vmcnt(0) lgkmcnt(0)", "wait")
    s.salu(f"s_mov_b32 s{S_K+2}, 262144")
    s.salu(f"s_mov_b32 s{S_V+2}, 262144")
    for t in range(NT + 1):
        for k in range(4): s.L.append(q_load(t, k))
    for r in range(192): s.valu(f"v_accvgpr_write_b32 {ar(r)}, 0", (), R("a", r))
    for t in range(NT + 1):
        Vs(f"v_mov_b32 {vr(VL(t))}, 0", [], VL(t))
        Vs(f"v_mov_b32 {vr(VM(t))}, 0xff800000", [], VM(t))
    s.salu(f"s_lshl_b32 s{S_M0K}, s{S_W}, 14")
    s.salu(f"s_sub_u32 s32, s{S_M0K}, {LDS_V}")
    for j in range(4):
        Vs(f"v_subrev_u32 {vr(VDK(j))}, s{S_PIECE}, {vr(VDK(j))}", [VDK(j)], VDK(j))
        Vs(f"v_subrev_u32 {vr(VDV(j))}, s{S_PIECE}, {vr(VDV(j))}", [VDV(j)], VDV(j))
        for p in range(2): Vs(f"v_add_u32 {vr(VKA(j,p))}, s{S_M0K}, {vr(VKA(j,p))}", [VKA(j, p)], VKA(j, p))
        for c in range(4): Vs(f"v_add_u32 {vr(VVA(j,c))}, s32, {vr(VVA(j,c))}", [VVA(j, c)], VVA(j, c))
    s.raw("s_waitcnt vmcnt(0)", "wait")
    for t in range(NT + 1): scale_tile_pk(s, t, VT)
    s.salu("s_mov_b32 s33, 0")
    s.salu(f"s_mov_b32 s{S_CNT}, 16")
    s.label("L_slow_loop")
    def fill(which):
        so = S_KOFF if which == "K" else S_VOFF
        for pc in range(4):
            s.salu(f"s_add_u32 s{so}, s33, {(pc & 1) * 8192 + (pc >> 1) * 128}")
            s.raw(f"s_add_u32 m0, s{S_M0K}, {4096*pc}", "salu_m0")
            s.nop(1)
            for j in range(4): s.L.append(dma(which, j))
        s.raw("s_waitcnt vmcnt(0)", "wait")
    fill("K")
    def KF(j, k): return 192 + 16 * j + 4 * k
    for j in range(4):
        for k in range(4):
            s.raw(f"ds_read_b128 {ar(KF(j,k),4)}, {vr(VKA(j, k % 2))} offset:{(k//2)*8192}", "lds", R("v", VKA(j, k % 2)), R("a", KF(j, k), 4))
        s.raw("s_waitcnt lgkmcnt(0)", "wait")
    fill("V")
    for t in range(NT + 1):
        for j in range(4):
            for k in range(4):
                d = SS + 4 * j
                c = "0" if k == 0 else vr(d, 4)
                s.raw(f"v_mfma_f32_16x16x32_bf16 {vr(d,4)}, {ar(KF(j,k),4)}, {vr(VQ(t,k),4)}, {c}", "mfma",
                      R("a", KF(j, k), 4) | R("v", VQ(t, k), 4) | (R("v", d, 4) if k else set()), R("v", d, 4),
                      cacc=R("v", d, 4) if k else set())
        s.nop(10)
        Vs(f"v_max3_f32 {vr(MX)}, {vr(SS)}, {vr(SS+1)}, {vr(SS+2)}", [SS, SS + 1, SS + 2], MX)
        for r in range(3, 15, 2):
            Vs(f"v_max3_f32 {vr(MX)}, {vr(MX)}, {vr(SS+r)}, {vr(SS+r+1)}", [MX, SS + r, SS + r + 1], MX)
        Vs(f"v_max_f32 {vr(MX)}, {vr(MX)}, {vr(SS+15)}", [MX, SS + 15], MX)
        for sw in ("v_permlane32_swap_b32", "v_permlane16_swap_b32"):
            Vs(f"v_mov_b32 {vr(TM)}, {vr(MX)}", [MX], TM)
            s.nop(2)
            s.valu(f"{sw} {vr(MX)}, {vr(TM)}", RV(MX, TM), RV(MX, TM))
            s.nop(2)
            Vs(f"v_max_f32 {vr(MX)}, {vr(MX)}, {vr(TM)}", [MX, TM], MX)
        Vs(f"v_max_f32 {vr(MX)}, {vr(MX)}, {vr(VM(t))}", [MX, VM(t)], MX)
        Vs(f"v_sub_f32 {vr(AL)}, {vr(VM(t))}, {vr(MX)}", [MX, VM(t)], AL)
        Vs(f"v_exp_f32 {vr(AL)}, {vr(AL)}", [AL], AL, "trans")
        Vs(f"v_mov_b32 {vr(VM(t))}, {vr(MX)}", [MX], VM(t))
        for r in range(16): Vs(f"v_sub_f32 {vr(SS+r)}, {vr(SS+r)}, {vr(MX)}", [SS + r, MX], SS + r)
        for r in range(16): Vs(f"v_exp_f32 {vr(SS+r)}, {vr(SS+r)}", [SS + r], SS + r, "trans")
        Vs(f"v_mul_f32 {vr(VL(t))}, {vr(VL(t))}, {vr(AL)}", [VL(t), AL], VL(t))
        for r in range(16): Vs(f"v_add_f32 {vr(VL(t))}, {vr(VL(t))}, {vr(SS+r)}", [VL(t), SS + r], VL(t))
        for r in range(8): Vs(f"v_cvt_pk_bf16_f32 {vr(PP(t)+r)}, {vr(SS+2*r)}, {vr(SS+2*r+1)}", [SS + 2 * r, SS + 2 * r + 1], PP(t) + r)
        for r in range(32):
            tm = VT + (r % 8)
            s.valu(f"v_accvgpr_read_b32 {vr(tm)}, {ar(AO(t,0)+r)}", R("a", AO(t, 0) + r), R("v", tm))
            Vs(f"v_mul_f32 {vr(tm)}, {vr(tm)}, {vr(AL)}", [tm, AL], tm)
            s.valu(f"v_accvgpr_write_b32 {ar(AO(t,0)+r)}, {vr(tm)}", R("v", tm), R("a", AO(t, 0) + r))
    s.nop(10)
    def VF(p, dt): return 192 + 32 * p + 4 * dt
    for p in range(2):
        for dt in range(8):
            for h in range(2):
                j = 2 * p + h
                s.raw(f"ds_read_b64_tr_b16 {ar(VF(p,dt)+2*h,2)}, {vr(VVA(j, dt % 4))} offset:{(dt//4)*8192}", "lds",
                      R("v", VVA(j, dt % 4)), R("a", VF(p, dt) + 2 * h, 2))
            if dt % 4 == 3: s.raw("s_waitcnt lgkmcnt(0)", "wait")
    for t in range(NT + 1):
        for p in range(2):
            for dt in range(8):
                d = AO(t, dt)
                s.raw(f"v_mfma_f32_16x16x32_bf16 {ar(d,4)}, {ar(VF(p,dt),4)}, {vr(PP(t)+4*p,4)}, {ar(d,4)}", "mfma",
                      R("a", VF(p, dt), 4) | R("v", PP(t) + 4 * p, 4) | R("a", d, 4), R("a", d, 4), cacc=R("a", d, 4))
    s.nop(10)
    s.salu("s_add_u32 s33, s33, 16384")
    s.salu(f"s_sub_u32 s{S_CNT}, s{S_CNT}, 1")
    s.salu(f"s_cmp_lg_u32 s{S_CNT}, 0")
    s.salu("s_cbranch_scc1 L_slow_loop")
    for t in range(NT + 1):
        c = Chain(0, 0, 1.0)
        lr = lreduce_ops(c, VL(t), TM, [])
        rc = c.add(I(f"v_rcp_f32 {vr(MX)}, {vr(VL(t))}", "trans", RV(VL(t)), RV(MX)), [lr])
        if t < NT:
            for m in range(4):
                buf = 8 * m
                rd = [c.add(I(f"v_accvgpr_read_b32 {vr(buf+r)}, {ar(AO(t,2*m)+r)}", "valu", R("a", AO(t, 2 * m) + r), R("v", buf + r))) for r in range(8)]
                finish_chunk(c, buf, MX, rc, rd, S_ROW(t), 64 * m)
            for o in c.ops: emit_op(s, o)
            s.raw("s_waitcnt vmcnt(0)", "wait")
        else:
            for o in c.ops: emit_op(s, o)
            for r in range(32):
                s.valu(f"v_accvgpr_read_b32 {vr(r)}, {ar(AO(NT,0)+r)}", R("a", AO(NT, 0) + r), R("v", r))
            Vs(f"v_lshlrev_b32 {vr(TM)}, 4, {vr(VLANE)}", [VLANE], TM)
            Vs(f"v_add_u32 {vr(TM)}, s{S_M0K}, {vr(TM)}", [TM], TM)
            for dt in range(8):
                s.raw(f"ds_write_b128 {vr(TM)}, {vr(4*dt,4)} offset:{1024*dt}", "ldsw", RV(TM) | R("v", 4 * dt, 4))
            s.salu(f"s_lshl_b32 s33, s{S_W}, 11")
            Vs(f"v_add_u32 {vr(AL)}, s33, {vr(TM)}", [TM], AL)
            s.raw("s_waitcnt lgkmcnt(0)", "wait")
            for h in range(2):
                s.raw(f"ds_read_b128 {vr(32+4*h,4)}, {vr(AL)} offset:{1024*h}", "lds", RV(AL), R("v", 32 + 4 * h, 4))
            s.raw("s_waitcnt lgkmcnt(0)", "wait")
            s.salu(f"s_lshl_b32 s{S_T}, s{S_W}, 6")
            s.salu(f"s_add_u32 s{S_T}, s{S_T}, 81920")
            c = Chain(0, 0, 1.0)
            finish_chunk(c, 32, MX, None, [None] * 8, S_T, 0)
            for o in c.ops: emit_op(s, o)
    s.raw("s_waitcnt vmcnt(0)", "wait")
    s.raw("s_endpgm", "other")
    return fix_hazards(s.L)

def main():
    P, r1, body, tailctl, r2, extra_bar = build()
    slow = build_slow(extra_bar)
    lines = []
    ref = open("standalone__gqa_softmax__near_ridge.s.ref").read().splitlines()
    for l in ref:
        if l.startswith("; @launch"): break
        lines.append(l)
    lines.append("; @launch grid=(256,1,1) block=(256,1,1) lds=163840")
    lines.append('.amdgcn_target "amdgcn-amd-amdhsa--gfx950"')
    lines.append(".text")
    lines.append(f".globl {KNAME}")
    lines.append(".p2align 8")
    lines.append(f".type {KNAME},@function")
    lines.append(f"{KNAME}:")
    def dump(L):
        for i in L: lines.append(i.text if i.kind == "label" else "    " + i.text)
    dump(r1)
    lines.append(".p2align 6")
    lines.append("L_loop:")
    if "nostore" in opt("abl", ""): r2 = [i for i in r2 if not i.text.startswith("buffer_store_dwordx4")]
    if "noswap" in opt("abl", ""): r2 = [i for i in r2 if not i.text.startswith("v_permlane16")]
    if "noacc" in opt("abl", ""): r2 = [i for i in r2 if not i.text.startswith("v_accvgpr")]
    if opt("abl", ""): r2 = [i for i in r2 if "L_slow" not in i.text]
    dump(body); dump(tailctl); lines.append("L_r2:"); dump(r2); dump(slow)
    lines.append('.section .rodata,"a"')
    lines.append(".p2align 6")
    lines.append(f".amdhsa_kernel {KNAME}")
    lines.append("  .amdhsa_next_free_vgpr 512")
    lines.append("  .amdhsa_next_free_sgpr 64")
    lines.append("  .amdhsa_accum_offset 256")
    lines.append("  .amdhsa_group_segment_fixed_size 0")
    lines.append("  .amdhsa_kernarg_size 48")
    lines.append("  .amdhsa_user_sgpr_count 2")
    lines.append("  .amdhsa_user_sgpr_kernarg_segment_ptr 1")
    lines.append("  .amdhsa_system_sgpr_workgroup_id_x 1")
    lines.append(".end_amdhsa_kernel")
    open(OUT, "w").write("\n".join(lines) + "\n")
    nn = lambda L: sum(1 for i in L if i.kind == "nop")
    print("written", OUT, "r1", len(r1), f"(nops {nn(r1)})", "body", len(body), "waits", sum(1 for i in body if i.kind == "wait"),
          "r2", len(r2), f"(nops {nn(r2)})", "slow", len(slow))

if __name__ == "__main__":
    if "stats" in OPTS:
        PF = Program(0, 2, lambda t, sg: True)
        PR = {o.name: o for o in PF.ops(1) + PF.dma_ops(1)}
        RS = PF.reserve([PF.barpos(1)])
        hist = {}
        for g, l in enumerate(TEMPLATE):
            c = sum(opcost(PR[n]) for _, n in l) + RS.get(PF.base[1] + g, 0)
            hist[c] = hist.get(c, 0) + 1
            print(g, BM[g][:4], c, l)
        print(hist)
    else:
        main()
```

```python
import struct, sys, math

KNAME = "standalone__gqa_softmax__near_ridge_kernel"
OUT = sys.argv[1] if len(sys.argv) > 1 else "standalone__gqa_softmax__near_ridge.s"
OPTS = dict(a.split("=") for a in sys.argv[2:])
def opt(name, default):
    return type(default)(OPTS.get(name, default))

STF = {"none": "", "sc1": " sc1", "nt": " nt", "sc01": " sc0 sc1", "sc1nt": " sc1 nt"}[opt("stf", "sc1")]
QF = " nt" if opt("qnt", 1) else ""
KVF = " nt" if opt("kvnt", 1) else ""
def f32(x): return "0x%08x" % struct.unpack("<I", struct.pack("<f", x))[0]
SCALE = math.log2(math.e) / math.sqrt(128.0)

NT = 5
def VQ(t, s): return 16 * t + 4 * s
def SP(p, t): return 96 + 40 * p + 8 * t
SX = 176
def VL(t): return 180 + t
def VKA(j, p): return 186 + 2 * j + p
def VVA(j, c): return 194 + 4 * j + c
def VDK(j): return 210 + j
def VDV(j): return 214 + (j & 1)
VLANE = 218
def VEX(p): return 220 + p
def VST(c): return (216, 217, 222, 223)[c]
VZ = 224
VCHK = 228
VQOFF = 232
VTMP = 233
VXQ = 234
VT = 236
VTS0, VTS1, VTS2 = 219, 254, 255
def AO(t, dt): return 32 * t + 4 * dt if t < NT else 160 + dt
def APX(p): return 168 + 4 * p
def AK(b, s): return 192 + 16 * b + 4 * s
def AV(b, i): return 224 + 16 * b + 4 * i
S_Q, S_K, S_V, S_O = 4, 8, 12, 16
S_W = 20; S_KOFF = 21; S_VOFF = 21; S_CNT = 23; S_M0K = 24; S_M0V = 25; S_PIECE = 26
S_C = 28
S_BAD = 30
S_T = 32
S_LO, S_HI = 54, 55
def S_ROW(t): return 56 + t
LDS_V = 65536
LDS_X = 131072
LDS_XQ = LDS_X + 12288

LM = [int(c) for c in opt("lm", "34").strip("-")]
VONE = VT + 8
def VLM(t): return VT + 4 * LM.index(t)

def vr(n, k=1): return f"v{n}" if k == 1 else f"v[{n}:{n+k-1}]"
def ar(n, k=1): return f"a{n}" if k == 1 else f"a[{n}:{n+k-1}]"
def R(kind, n, k=1): return {(kind, n + i) for i in range(k)}
def RV(*regs): return set().union(*[R("v", r) for r in regs]) if regs else set()

class I:
    def __init__(s, text, kind, rd=(), wr=(), **kw):
        s.text, s.kind, s.rd, s.wr = text, kind, set(rd), set(wr)
        s.__dict__.update(kw)
    def __repr__(s): return s.text

class Asm:
    def __init__(s): s.L = []
    def raw(s, text, kind="other", rd=(), wr=(), **kw):
        s.L.append(I(text, kind, rd, wr, **kw)); return s.L[-1]
    def label(s, name): s.L.append(I(name + ":", "label"))
    def nop(s, n):
        while n > 0:
            k = min(n, 16); s.raw(f"s_nop {k-1}", "nop"); s.L[-1].ws = k; n -= k
    def salu(s, text): return s.raw(text, "salu")
    def valu(s, text, rd=(), wr=()): return s.raw(text, "valu", rd, wr)
    def V(s, txt, rd, wr, kind="valu"): return s.raw(txt, kind, RV(*rd), RV(wr) if wr is not None else ())

def mfma_qk(t, j, s):
    d = SX if t == NT else SP(j // 2, t) + 4 * (j % 2)
    a = AK(j % 2, s); b = VQ(t, s)
    c = "0" if s == 0 else vr(d, 4)
    rd = R("a", a, 4) | R("v", b, 4) | (R("v", d, 4) if s else set())
    return I(f"v_mfma_f32_16x16x32_bf16 {vr(d,4)}, {ar(a,4)}, {vr(b,4)}, {c}", "mfma", rd, R("v", d, 4),
             cacc=R("v", d, 4) if s else set())
def mfma_pv(t, p, dt, first=False):
    d = AO(t, dt); a = AV(dt // 4, dt % 4)
    bt, br = (ar(APX(p), 4), R("a", APX(p), 4)) if t == NT else (vr(SP(p, t), 4), R("v", SP(p, t), 4))
    c = "0" if first else ar(d, 4)
    return I(f"v_mfma_f32_16x16x32_bf16 {ar(d,4)}, {ar(a,4)}, {bt}, {c}", "mfma",
             R("a", a, 4) | br | (set() if first else R("a", d, 4)), R("a", d, 4),
             cacc=set() if first else R("a", d, 4))
def mfma_ls(t, p, first=False):
    d = VLM(t); b = SP(p, t)
    c = "0" if first else vr(d, 4)
    return I(f"v_mfma_f32_16x16x32_bf16 {vr(d,4)}, {vr(VONE,4)}, {vr(b,4)}, {c}", "mfma",
             R("v", VONE, 4) | R("v", b, 4) | (set() if first else R("v", d, 4)), R("v", d, 4),
             cacc=set() if first else R("v", d, 4))
def mk_mfma(k, t, x, y, first=False):
    if k == "QK": return mfma_qk(t, x, y)
    if k == "LS": return mfma_ls(t, x, first)
    return mfma_pv(t, x, y, first)
def lds_k(j, s, stage):
    d = AK(j % 2, s)
    return I(f"ds_read_b128 {ar(d,4)}, {vr(VKA(j, s % 2))} offset:{stage*16384 + (s//2)*8192}", "lds",
             R("v", VKA(j, s % 2)), R("a", d, 4), grp=("k", j), grp2=(j - 1) % 4, src=("K", stage))
def lds_v(p, dt, h, stage):
    d = AV(dt // 4, dt % 4) + 2 * h
    j = 2 * p + h
    return I(f"ds_read_b64_tr_b16 {ar(d,2)}, {vr(VVA(j, dt % 4))} offset:{stage*16384 + (dt//4)*512}", "lds",
             R("v", VVA(j, dt % 4)), R("a", d, 2), grp=("v", p, dt // 4), grp2=(0 if p else 2) + dt // 4, src=("V", stage))
def x_write(stage):
    o = 8 * (stage % 2)
    return I(f"ds_write2st64_b64 {vr(VEX(0))}, {vr(SX,2)}, {vr(SX,2)} offset0:{o} offset1:{o+2}", "ldsw", RV(VEX(0), SX, SX + 1))
def x_read(p, stage):
    o = 8 * (stage % 2)
    return I(f"ds_read2st64_b64 {ar(APX(p),4)}, {vr(VEX(p))} offset0:{o} offset1:{o+1}", "lds", RV(VEX(p)), R("a", APX(p), 4),
             grp=("x", p), grp2=2)
def v_exp(r): return I(f"v_exp_f32 {vr(r)}, {vr(r)}", "trans", R("v", r), R("v", r))
def v_addl(t, r): return I(f"v_add_f32 {vr(VL(t))}, {vr(VL(t))}, {vr(r)}", "valu", R("v", r) | R("v", VL(t)), R("v", VL(t)))
def v_cvt(d, a, b): return I(f"v_cvt_pk_bf16_f32 {vr(d)}, {vr(a)}, {vr(b)}", "valu", R("v", a) | R("v", b), R("v", d))
def dma(which, j, tag=None):
    if which == "K":
        return I(f"buffer_load_dwordx4 {vr(VDK(j))}, s[{S_K}:{S_K+3}], s{S_KOFF} offen offset:{1024*j}{KVF} lds", "dma", R("v", VDK(j)), tag=tag)
    return I(f"buffer_load_dwordx4 {vr(VDV(j))}, s[{S_V}:{S_V+3}], s{S_VOFF} offen offset:{1024*j}{KVF} lds", "dma", R("v", VDV(j)), tag=tag)
def q_load(t, s):
    return I(f"buffer_load_dwordx4 {vr(VQ(t,s),4)}, {vr(VQOFF)}, s[{S_Q}:{S_Q+3}], s{S_ROW(t)} offen offset:{64*s}{QF}", "vmem",
             R("v", VQOFF), R("v", VQ(t, s), 4), isload=True)
def Vi(txt, rd, wr, kind="valu"): return I(txt, kind, RV(*rd), RV(*wr) if isinstance(wr, (list, tuple)) else RV(wr))

FULL = "01234X"
PLANS = {
 "a": ("Q0,QX,K0,V0,Q1,K1,V1,Q2,K2,V2,Q3,K3,V3,Q4",
       [("0X", 0, "qd", {"Pc": "V0"}), ("1", 0, "", {"Pd": "K1"}), ("01X", 1, "d", {"Q2": "V1"}),
        ("2", 0, "", {}), ("2", 1, "", {"Pc": "K2"}), ("012X", 2, "", {"Q2": "V2", "Pd": "K3"}),
        ("0123X", 3, "", {"Q2": "V3", "Pd": "K4"}), (FULL, 4, "", {"Q2": "V4", "Pd": "K5,V5"})]),
 "o": ("Q0,QX,K0,Q1,V0,K1,Q2,Q3,V1,K2,Q4,V2",
       [("01X", 0, "", {"Q2": "V0", "end": "K1"}), ("0123X", 1, "", {"Q2": "V1", "end": "K2"}),
        (FULL, 2, "", {"Q2": "V2", "Pd": "K3,V3"})]),
 "b": ("Q0,QX,K0,V0,Q1,Q2,K1,V1,Q3,K2,V2,Q4,K3,V3",
       [("0X", 0, "qd", {"Pc": "V0"}), ("1", 0, "d", {}), ("2", 0, "", {"Pd": "K1"}),
        ("012X", 1, "", {"Q2": "V1", "end": "K2"}), ("0123X", 2, "", {"Q2": "V2", "Pd": "K3"}),
        (FULL, 3, "", {"Q2": "V3", "Pd": "K4,V4"})]),
 "c": ("Q0,QX,K0,V0,Q1,K1,V1,Q2,K2,V2,Q3,Q4,K3,V3",
       [("0X", 0, "qd", {"Pc": "V0"}), ("1", 0, "", {"Pd": "K1"}), ("01X", 1, "d", {"Q2": "V1"}),
        ("2", 0, "", {}), ("2", 1, "", {"Pc": "K2"}), ("012X", 2, "", {"Q2": "V2"}),
        ("3", 2, "", {"Pd": "K3"}), (FULL, 3, "", {"Q2": "V3", "Pd": "K4,V4"})]),
}
class Pass:
    def __init__(s, tiles, vb, flags="", bars=None):
        s.tiles = {NT if c == "X" else int(c) for c in tiles}; s.vb = vb; s.flags = flags
        s.bars = {k: {(x[0], int(x[1:])) for x in v.split(",") if x} for k, v in (bars or {}).items()}
def make_passes():
    order, r1 = PLANS[opt("plan", "a")]
    order = opt("order", order)
    ps = [Pass(*x) for x in r1]
    rf = len(ps)
    assert len(ps[-1].tiles) == NT + 1
    done = {t: {p.vb for p in ps if t in p.tiles} for t in range(NT + 1)}
    b0 = ps[-1].vb + 1
    for vb in range(b0, 16): ps.append(Pass(FULL, vb))
    rl = len(ps)
    for b in range(b0):
        tl = "".join(str(t) for t in range(NT) if b not in done[t])
        assert b in done[NT]
        if tl: ps.append(Pass(tl, 16 + b)); assert ps[-2].vb == 15 + b
    S = ps[-1].vb + 1
    for k in range(rf, len(ps) - 1): ps[k].bars = {"Pb": {("K", ps[k].vb + 1), ("V", ps[k].vb + 1)}}
    ps[-1].flags = "d"
    return order.split(","), ps, rf, rl, S
ORDER, PASSES, RF, RL, S = make_passes()

class Op:
    count = 0
    def __init__(s, name, step, mk, cls, E, D, preds=(), seq=None, Emin=None):
        s.name, s.step, s.mk, s.cls, s.E, s.D, s.preds = name, step, mk, cls, E, D, list(preds)
        s.gap = None
        Op.count += 1
        s.seq = Op.count if seq is None else seq
        s.Emin = E if Emin is None else Emin

EXP_LAG = opt("explag", 8)
LDS_LEAD = opt("ldslead", 9)

class Program:
    def __init__(P, passes, ready0=()):
        P.ps = passes
        P.spine = []; P.base = {}; P.phase = {}
        for sg, ps in enumerate(passes):
            P.base[sg] = len(P.spine)
            prev = passes[sg - 1] if sg > 0 and "d" not in passes[sg - 1].flags else None
            def Q(j):
                P.phase[(sg, f"Q{j}")] = len(P.spine)
                for t in range(NT + 1):
                    if t in ps.tiles and (t < NT or j == 0):
                        for s in range(4): P.spine.append(("QK", t, j, s, sg))
            def PV(name, p, half, s2):
                P.phase[(sg, name)] = len(P.spine)
                if s2 is None: return
                tl = passes[s2].tiles
                for dt in range(4 * half, 4 * half + 4):
                    for t in range(NT + 1):
                        if t in tl and (t < NT or dt % 4 == 0): P.spine.append(("PV", t, p, dt, s2))
                if half == 0:
                    for t in LM:
                        if t in tl: P.spine.append(("LS", t, p, 0, s2))
            pv = sg - 1 if prev else None
            if "q" in ps.flags:
                Q(0); PV("Pa", 1, 0, pv); Q(1); PV("Pb", 1, 1, pv); Q(2); Q(3); PV("Pc", 0, 0, sg); PV("Pd", 0, 1, sg)
            else:
                Q(0); PV("Pa", 1, 0, pv); Q(1); PV("Pb", 1, 1, pv); Q(2); PV("Pc", 0, 0, sg); Q(3); PV("Pd", 0, 1, sg)
            if "d" in ps.flags: PV("Pe", 1, 0, sg); PV("Pf", 1, 1, sg)
            P.phase[(sg, "end")] = len(P.spine)
        P.base[len(passes)] = len(P.spine)
        P.pos = {tag: i for i, tag in enumerate(P.spine)}
        P.first = {}; P.last = {}
        for i, (k, t, x, y, sg) in enumerate(P.spine):
            for key in ((k, x, y, sg), (k, x, sg), (k, x, y // 4, "h", sg)):
                P.first.setdefault(key, i); P.last[key] = i
        P.firstpass = {t: min(k for k, p in enumerate(passes) if t in p.tiles) for t in range(NT + 1)}
        P.lastpass = {t: max(k for k, p in enumerate(passes) if t in p.tiles) for t in range(NT + 1)}
        P.bars = {}; P.ready = {tg: -1 for tg in ready0}; P.xbar = {}
        for sg, ps in enumerate(passes):
            for ph, tags in ps.bars.items():
                g = P.phase[(sg, ph)] - 1
                P.bars.setdefault(g, set()).update(tags)
                for tg in tags: P.ready[tg] = g + 1
                if NT in ps.tiles and g < P.phase[(sg, "Pc")]: P.xbar[sg] = max(g, P.xbar.get(sg, -1))
            assert NT not in ps.tiles or sg in P.xbar or sg == len(passes) - 1
    def free_after(P, kind, vb):
        if vb < 4: return -2
        lp = max(k for k, p in enumerate(P.ps) if p.vb == vb - 4)
        lastuse = P.first[("QK", 3, lp)] if kind == "K" else P.first[("PV", 1, 1, "h", lp)]
        return min(g for g in P.bars if g >= lastuse - 1)
    def reserve(P):
        r = {}
        for (sg, ph), g in P.phase.items():
            if ph[0] == "P": r[g - 1] = 4
        for g in P.bars: r[g] = 8
        return r
    def ops(P, sg):
        ps, pos = P.ps[sg], P.pos
        ops = []
        BIG = 10 ** 6
        for t in sorted(ps.tiles):
            for j in range(4 if t < NT else 1):
                p = j // 2
                r0 = SX if t == NT else SP(p, t) + 4 * (j % 2)
                mend = pos[("QK", t, j, 3, sg)]
                cons = pos.get(("PV", t, p, 0, sg), BIG) if t < NT else P.xbar.get(sg, BIG) - opt("xlead", 4)
                dc = cons - 3
                exps = [Op(f"exp{t}{j}{k}", sg, lambda st, r=r0 + k: v_exp(r), "exp", mend + EXP_LAG, dc - 4, Emin=mend) for k in range(4)]
                adds = [Op(f"add{t}{j}{k}", sg, lambda st, r=r0 + k, t=t: v_addl(t, r), "plain", 0, dc - 2, [exps[k]]) for k in range(4)]
                pre = adds
                if t in LM: pre = exps; adds = []
                dst = SX if t == NT else SP(p, t) + 2 * (j % 2)
                c0 = Op(f"cvt{t}{j}0", sg, lambda st, d=dst, r=r0: v_cvt(d, r, r + 1), "plain", 0, dc - 1, pre[0:2])
                c1 = Op(f"cvt{t}{j}1", sg, lambda st, d=dst + 1, r=r0: v_cvt(d, r + 2, r + 3), "plain", 0, dc, pre[2:4] + [c0])
                if j % 2 == 1:
                    prev = [o for o in ops if o.name == f"cvt{t}{j-1}1"][0]
                    c0.preds.append(prev); c1.preds.append(prev)
                grp = exps + adds + [c0, c1]
                if t == NT:
                    xb = P.xbar.get(sg, BIG)
                    w = Op("xw", sg, x_write, "mem", 0, cons, [c1]); grp.append(w)
                    for o in grp: o.hardD = xb
                    fu = P.first[("PV", 0, 0, sg)]
                    lastx = max([k for k in range(sg) if NT in P.ps[k].tiles], default=None)
                    for pp in range(2):
                        E = pos.get(("PV", NT, pp, 4, lastx), -1)
                        o = Op(f"xr{pp}", sg, lambda st, pp=pp: x_read(pp, st), "mem", max(E, xb + 1), fu - LDS_LEAD - 1 + pp, Emin=E)
                        o.bar = xb
                        o.hardD = pos.get(("PV", NT, pp, 0, sg), BIG) - 1; ops.append(o)
                else:
                    for o in grp: o.hardD = cons - 1
                for k, o in enumerate(grp): o.seq = mend * 100 + k
                ops += grp
        kr = P.ready[("K", ps.vb)]; vrdy = P.ready[("V", ps.vb)]
        for j in range(4):
            fu = P.first[("QK", j, sg)]
            aim = fu
            while aim > 0 and P.spine[aim - 1][0] != "QK" and not any(aim == g for (s_, ph), g in P.phase.items() if ph[0] == "P" and g < fu): aim -= 1
            for s in range(4):
                if j >= 2: E = P.last[("QK", j - 2, s, sg)]
                else: E = P.last.get(("QK", j + 2, s, sg - 1), -1)
                o = Op(f"ldk{j}{s}", sg, lambda st, j=j, s=s: lds_k(j, s, st), "mem", max(E, kr), aim - LDS_LEAD - 3 + s - opt("kearly", 4), Emin=E)
                o.bar = kr - 1
                o.hardD = fu - 1; ops.append(o)
        for p in range(2):
            for dt in range(8):
                if ("PV", p, dt, sg) not in P.first: continue
                fu = P.first[("PV", p, dt - dt % 4, sg)]
                if p == 0: E = P.last.get(("PV", 1, dt, sg - 1), -1)
                else: E = P.last[("PV", 0, dt, sg)]
                for h in range(2):
                    o = Op(f"ldv{p}{dt}{h}", sg, lambda st, p=p, dt=dt, h=h: lds_v(p, dt, h, st), "mem", max(E, vrdy),
                           fu - LDS_LEAD - 2 * (3 - dt % 4) - 1 + h, Emin=E)
                    o.bar = vrdy - 1
                    o.hardD = fu - 1; ops.append(o)
        return ops
    def dma_ops(P, sg, sp=None):
        ops = []; prev = None
        E = P.phase[(sg, "Pb")]
        seq = [("m0V",), ("V", 0), ("V", 1), ("V", 2), ("V", 3), ("m0K",), ("K", 0), ("K", 1), ("K", 2), ("K", 3), ("adv",)]
        sp = sp or opt("dmaspread", 5)
        for n, it in enumerate(seq):
            cls = "free"
            if it[0] == "m0V":
                mk = lambda st: I(f"s_add_u32 m0, s{S_M0V}, {((st + 3) % 4) * 16384}", "salu_m0", pre="V")
            elif it[0] == "m0K":
                mk = lambda st: I(f"s_add_u32 m0, s{S_M0K}, {((st + 3) % 4) * 16384}", "salu_m0", pre="K")
            elif it[0] == "adv":
                mk = lambda st: [I(f"s_add_u32 s{S_KOFF}, s{S_KOFF}, 16384", "salu")] + ([I(f"s_bitset0_b32 s{S_KOFF}, 18", "salu")] if st % 4 == 0 else [])
            else:
                mk = lambda st, it=it: dma(it[0], it[1]); cls = "mem"
            o = Op(f"dma{n}", sg, mk, cls, E + sp * n, E + sp * n + 8, [prev] if prev else [])
            o.blk = (it[0][-1], P.ps[sg].vb + 3)
            ops.append(o); prev = o
        return ops

def opcost(o):
    if o.cls == "exp": return 8
    if o.cls == "mem" and o.name.startswith("dma"): return 8
    return getattr(o, "cost", 4)
def schedule(ops, g0, g1, flush=False, reserve={}, capf=lambda g: 8):
    gaps = {}
    LW = opt("ldswin", 40)
    pend = sorted(ops, key=lambda o: (o.D, o.seq))
    carry = 0.0
    for g in range(g0, g1):
        last = flush and g == g1 - 1
        def ready(o): return o.E <= g and all(p.gap is not None and p.gap < g for p in o.preds)
        cand = [o for o in pend if ready(o) and not (o.cls == "mem" and g < o.D - LW)]
        placed = [o for o in cand if o.D <= g]
        cf = capf(g) + carry
        cap0 = max(8, int(cf // 4) * 4); carry = cf - cap0 if cf >= 8 else 0
        cap = cap0 - reserve.get(g, 0)
        maxlds = 1 if cap0 <= 8 else 2
        used = sum(opcost(o) for o in placed)
        rest = [o for o in cand if o.D > g]
        while used < cap:
            rem = cap - used
            nl = sum(o.cls == "mem" for o in placed)
            fit = [o for o in rest if opcost(o) <= rem and not (nl >= maxlds and o.cls == "mem")]
            if not fit: break
            o = fit[0]
            if rem == 8 and opcost(o) == 4:
                second = [x for x in fit[1:] if opcost(x) == 4 and not (x.cls == "mem" and o.cls == "mem" and nl + 1 >= maxlds)]
                big = [x for x in fit if opcost(x) == 8]
                if not second and big and o.D - g > 2: o = big[0]
            placed.append(o); rest.remove(o); used += opcost(o)
        order = {"free": 0, "mem": 1, "exp": 2, "plain": 3, "low": 3}
        placed.sort(key=lambda o: order[o.cls])
        for o in placed:
            o.gap = g; pend.remove(o)
        again = True
        while again:
            again = False
            need = set()
            def mark(o):
                if o.gap is None and id(o) not in need:
                    need.add(id(o))
                    for p in o.preds: mark(p)
            for o in pend:
                if last or getattr(o, "hardD", 10 ** 9) <= g: mark(o)
            for o in sorted(pend, key=lambda o: (o.D, o.seq)):
                if id(o) in need and all(p.gap is not None for p in o.preds):
                    assert (o.Emin <= g and getattr(o, "bar", -9) <= g) or last, f"cannot meet hard deadline {o.name} step {o.step} g {g} Emin {o.Emin}"
                    if getattr(o, "bar", -9) == g: o.post = True
                    o.gap = g; placed.append(o); pend.remove(o); again = True
                    break
        gaps[g] = placed
    return gaps, pend

def regular(n):
    ps = [Pass(FULL, k, "", {"Pb": f"K{k+1},V{k+1}"}) for k in range(n)]
    return Program(ps, ready0=[("K", 0), ("V", 0)])
def build_template():
    P = regular(11)
    NBk = P.base[2] - P.base[1]
    allops = []
    for b in range(0, 10): allops += P.ops(b) + P.dma_ops(b)
    gaps, pend = schedule(allops, -1, P.base[10], reserve=P.reserve())
    def rel(b): return [[(o.step - b, o.name) for o in gaps[P.base[b] + g]] for g in range(NBk)]
    assert rel(5) == rel(6) == rel(7), "schedule not periodic"
    return rel(6), NBk, [tag[:4] + (tag[4] - 1,) for tag in P.spine[P.base[1]:P.base[2]]], P.phase[(1, "Pb")] - 1 - P.base[1]
TEMPLATE, NB, BM, BAR_POS = build_template()
TWHERE = {name: (d, g) for g, l in enumerate(TEMPLATE) for d, name in l}

def insert_lgkm_waits(L, carry_in=None):
    out = []
    q = [(o, -a) for o, a in (carry_in or [])]
    MD = opt("mergedist", 14)
    for n, i in enumerate(L):
        if i.kind == "wait" and "lgkmcnt(0)" in i.text: q = []
        need = -1
        touched = i.rd | i.wr
        ret = getattr(i, "retire", None)
        for k, (o, _) in enumerate(q):
            if o.wr & touched: need = k
            if ret is not None and (o.kind == "ldsw" or getattr(o, "src", None) in ret): need = k
        if need >= 0:
            grs = {getattr(o, "grp", None) for o, _ in q[:need + 1] if (o.wr & touched) or ret is not None} - {None}
            gr2 = {getattr(o, "grp2", None) for o, _ in q[:need + 1] if (o.wr & touched) or ret is not None} - {None}
            for k, (o, at) in enumerate(q):
                if getattr(o, "grp", None) in grs and ret is None: need = max(need, k)
                if getattr(o, "grp2", None) in gr2 and n - at >= MD: need = max(need, k)
            c = min(14, len(q) - 1 - need)
            out.append(I(f"s_waitcnt lgkmcnt({c})", "wait"))
            q = q[len(q) - c:] if c else []
        out.append(i)
        if i.kind in ("lds", "ldsw"): q.append((i, n))
    return out, [(o, len(L) - at) for o, at in q]

def merge_waits(L):
    out = []
    for i in L:
        if i.kind == "wait" and out and out[-1].kind == "wait":
            a, b = out[-1].text.split()[1:], i.text.split()[1:]
            ka = {x.split("(")[0]: int(x.split("(")[1][:-1]) for x in a}
            for x in b:
                k, v = x.split("(")[0], int(x.split("(")[1][:-1]); ka[k] = min(v, ka.get(k, 99))
            out[-1] = I("s_waitcnt " + " ".join(f"{k}({ka[k]})" for k in sorted(ka, reverse=True)), "wait")
        else: out.append(i)
    return out

def insert_vm_waits(L, carry_in=None):
    out = []
    q = list(carry_in or [])
    issued = {}
    for i in L:
        if i.kind == "dma": issued[i.tag] = issued.get(i.tag, 0) + 1
        if carry_in is None and getattr(i, "needs", None) is not None:
            for tg in i.needs: assert issued.get(tg, 0) == 4, f"{tg} not issued before its barrier"
        if i.kind == "wait" and "vmcnt(" in i.text:
            n = int(i.text.split("vmcnt(")[1].split(")")[0]); q = q[len(q) - n:] if n < len(q) else q
            if n == 0: q = []
        need = -1
        touched = i.rd | i.wr
        for k, o in enumerate(q):
            if getattr(o, "isload", False) and (o.wr & touched): need = k
            nd = getattr(i, "needs", None)
            if nd is not None and o.kind == "dma" and (nd == "all" or o.tag in nd): need = k
        if need >= 0:
            n = min(62, len(q) - 1 - need)
            out.append(I(f"s_waitcnt vmcnt({n})", "wait"))
            q = q[len(q) - n:] if n else []
        out.append(i)
        if i.kind in ("dma", "vmem"): q.append(i)
    return out, q

def hazard_need(p, c):
    need = 0
    if p.kind == "mfma":
        if c.kind in ("valu", "trans", "lds", "dma", "vmem", "ldsw") and (p.wr & (c.rd | c.wr)): need = 8
        if c.kind == "mfma":
            cacc = getattr(c, "cacc", set())
            if p.wr & (c.rd - cacc): need = 8
            elif (p.wr & cacc) and p.wr != cacc: need = 6
        if c.kind in ("valu", "trans") and (c.wr & getattr(p, "cacc", set())): need = max(need, 3)
    elif p.kind in ("valu", "trans"):
        if c.kind == "mfma" and (p.wr & c.rd): need = 2
        if p.kind == "trans" and c.kind in ("valu", "vmem", "ldsw") and (p.wr & c.rd): need = 1
        if "permlane" in c.text and (p.wr & (c.rd | c.wr)): need = 2
        if "readfirstlane" in c.text and (p.wr & c.rd): need = 1
        if any(k == "s" for k, _ in (p.wr & c.rd)):
            need = max(need, 5 if c.kind in ("vmem", "dma") else 2 if c.kind in ("valu", "trans") else 0)
    elif p.kind == "salu_m0":
        if c.kind == "dma": need = 1
    elif p.kind in ("vmem", "ldsw") and ("store" in p.text or "write" in p.text):
        if c.kind in ("valu", "trans") and (c.wr & p.rd): need = 2
    return need
def ws(i): return getattr(i, "ws", 1)
def fix_hazards(L, ctx=(), report=None):
    out = list(ctx); n0 = len(out)
    for c in L:
        if c.kind != "label":
            extra = 0; dist = 0
            for p in reversed(out):
                if p.kind == "label": continue
                e = hazard_need(p, c) - dist
                if e > extra: extra = e; who = p
                dist += ws(p)
                if dist >= 10: break
            if extra > 0:
                if report: print(f"HAZARD[{report}]: {who.text} -> {c.text} short by {extra}")
                n = I(f"s_nop {extra-1}", "nop"); n.ws = extra; out.append(n)
        out.append(c)
    return out[n0:]

TS = opt("ts", 0)
DBG = opt("dbg", 0)
def emit_ts(a):
    if not TS: return
    a.raw("s_memtime s[50:51]", "smem")
    a.raw("s_memrealtime s[52:53]", "smem")
    a.raw("s_waitcnt lgkmcnt(0)", "wait")
    a.salu("s_lshl_b64 exec, 1, s48")
    a.raw(f"v_mov_b32 v{VTS0}, s50", "valu", (), R("v", VTS0), noput=True)
    a.raw(f"v_mov_b32 v{VTS1}, s52", "valu", (), R("v", VTS1), noput=True)
    a.salu("s_mov_b64 exec, -1")
    a.salu("s_add_u32 s48, s48, 1")
def emit_ts_store(a):
    if not TS: return
    emit_ts(a)
    a.raw("s_waitcnt vmcnt(0)", "wait")
    emit_ts(a)
    a.salu(f"s_lshl_b32 s49, s2, 2")
    a.salu(f"s_add_u32 s49, s49, s{S_W}")
    if DBG:
        a.salu(f"s_cmp_eq_u32 s49, {opt('dbgwave', 0)}")
        a.salu(f"s_cselect_b32 s49, 0, 16")
    a.salu(f"s_lshl_b32 s49, s49, 9")
    if DBG:
        a.valu(f"v_readfirstlane_b32 s50, v{VTS1}", R("v", VTS1), R("s", 50))
        a.nop(2)
        a.valu(f"v_subrev_u32 v{VTS0}, s50, v{VTS1}", R("v", VTS1), R("v", VTS0))
    a.valu(f"v_lshlrev_b32 v{VTS2}, 2, v{VLANE}", R("v", VLANE), R("v", VTS2))
    a.nop(2)
    a.raw(f"buffer_store_dword v{VTS0}, v{VTS2}, s[44:47], s49 offen", "vmem", R("v", VTS0) | R("v", VTS2))
    a.raw(f"buffer_store_dword v{VTS1}, v{VTS2}, s[44:47], s49 offen offset:256", "vmem", R("v", VTS1) | R("v", VTS2))
    a.raw("s_waitcnt vmcnt(0)", "wait")

def scale_tile_pk(a, t, tmp0, hook=None, n=16):
    for r in range(n):
        q = VQ(t, 0) + r
        tmp = tmp0 + 2 * (r % 4)
        a.V(f"v_lshlrev_b32 {vr(tmp)}, 16, {vr(q)}", [q], tmp)
        a.V(f"v_and_b32 {vr(tmp+1)}, 0xffff0000, {vr(q)}", [q], tmp + 1)
        a.valu(f"v_pk_mul_f32 {vr(tmp,2)}, {vr(tmp,2)}, s[{S_C}:{S_C+1}]", R("v", tmp, 2), R("v", tmp, 2))
        a.V(f"v_cvt_pk_bf16_f32 {vr(q)}, {vr(tmp)}, {vr(tmp+1)}", [tmp, tmp + 1], q)
        if hook: hook(r)

def chk_mfma(pk):
    return I(f"v_mfma_f32_16x16x32_bf16 {vr(VCHK,4)}, {vr(VZ,4)}, {vr(pk,4)}, {vr(VCHK,4)}", "mfma",
             R("v", VZ, 4) | R("v", pk, 4) | R("v", VCHK, 4), R("v", VCHK, 4), cacc=R("v", VCHK, 4))
def range_check(l):
    return [I(f"v_cmp_nle_f32 vcc, s{S_LO}, {vr(l)}", "valu", R("v", l), R("s", 106)),
            I(f"s_or_b64 s[{S_BAD}:{S_BAD+1}], s[{S_BAD}:{S_BAD+1}], vcc", "salu"),
            I(f"v_cmp_nge_f32 vcc, s{S_HI}, {vr(l)}", "valu", R("v", l), R("s", 106)),
            I(f"s_or_b64 s[{S_BAD}:{S_BAD+1}], s[{S_BAD}:{S_BAD+1}], vcc", "salu")]

class Chain:
    def __init__(c, step, E, rate):
        c.step, c.E, c.rate, c.k, c.ops = step, E, rate, 0, []
    def add(c, ins, preds=(), E=None, cls="low"):
        e = max(c.E, E if E is not None else c.E)
        d = max(e, c.E + int(c.k / c.rate)) if c.rate else 10 ** 5 + Op.count
        o = Op(f"ep{len(c.ops)}", c.step, (lambda st, ins=ins: ins), cls, e, d, [p for p in preds if p is not None])
        c.k += 1; c.ops.append(o); return o

def lreduce_ops(c, l, tmp, preds):
    prev = preds
    for sw in ("v_permlane32_swap_b32", "v_permlane16_swap_b32"):
        m = c.add(Vi(f"v_mov_b32 {vr(tmp)}, {vr(l)}", [l], tmp), prev)
        s_ = c.add(I(f"{sw} {vr(l)}, {vr(tmp)}", "valu", RV(l, tmp), RV(l, tmp)), [m])
        prev = [c.add(Vi(f"v_add_f32 {vr(l)}, {vr(l)}, {vr(tmp)}", [l, tmp], l), [s_])]
    return prev[0]

def half_chunk(c, acc, tmp, dst, rinv, rc, preds, pk_ok=False):
    rd = [c.add(I(f"v_accvgpr_read_b32 {vr(tmp+r)}, {ar(acc+r)}", "valu", R("a", acc + r), R("v", tmp + r)), preds) for r in range(4)]
    if pk_ok:
        mul = []
        for r in range(0, 4, 2):
            o = c.add(I(f"v_pk_mul_f32 {vr(tmp+r,2)}, {vr(tmp+r,2)}, {vr(rinv,2)} op_sel_hi:[1,0]", "valu",
                        R("v", tmp + r, 2) | R("v", rinv), R("v", tmp + r, 2)), [rd[r], rd[r + 1], rc])
            mul += [o, o]
    else:
        mul = [c.add(Vi(f"v_mul_f32 {vr(tmp+r)}, {vr(rinv)}, {vr(tmp+r)}", [rinv, tmp + r], tmp + r), [rd[r], rc]) for r in range(4)]
    c0 = c.add(v_cvt(dst, tmp, tmp + 1), mul[0:2])
    return c.add(v_cvt(dst + 1, tmp + 2, tmp + 3), mul[2:4] + [c0])
def store_chunk(c, buf, preds, srow, vst):
    sw = [c.add(I(f"v_permlane16_swap_b32 {vr(buf+k)}, {vr(buf+2+k)}", "valu", RV(buf + k, buf + 2 + k), RV(buf + k, buf + 2 + k)), preds) for k in range(2)]
    st = c.add(I(f"buffer_store_dwordx4 {vr(buf,4)}, {vr(vst)}, s[{S_O}:{S_O+3}], s{srow} offen{STF}", "vmem",
                 R("v", buf, 4) | R("v", vst)), sw)
    ck = c.add(chk_mfma(buf), sw); ck.cost = 8
    return [st, ck]

LO_THR = f32(2.0 ** -24)
HI_THR = f32(2.0 ** 64)

def icost(i):
    return {"label": 0, "mfma": 8, "trans": 8, "dma": 11, "barrier": 30, "nop": 4 * getattr(i, "ws", 1)}.get(i.kind, 4)

def build():
    P = Program(PASSES, ready0=[("K", 0)])
    N = len(PASSES)
    def emit_mfma(a, tag):
        k, t, x, y, sg = tag
        a.L.append(mk_mfma(k, t, x, y, first=(x == 0 and sg == P.firstpass[t])))
    def emit_op(a, o):
        r = o.mk(PASSES[o.step].vb % 4)
        for i in (r if isinstance(r, list) else [r]):
            if i.kind == "dma" and getattr(i, "tag", None) is None: i.tag = o.blk
            a.L.append(i)
    allops = {}
    for sg in range(N):
        allops[sg] = P.ops(sg)
        if sg >= RF and PASSES[sg].vb + 3 < S:
            allops[sg] += P.dma_ops(sg, None if sg < RL else 2)
    free1, free2 = [], []
    for sg in range(N):
        for o in allops[sg]:
            d, g = TWHERE[o.name]
            x = sg - d
            if RF <= x < RL and RF - 1 <= sg <= RL: o.gap = P.base[x] + g
            elif sg < RF or x < RF: free1.append(o)
            else: free2.append(o)
    assert all(TWHERE[f"dma{n}"][0] == 0 for n in range(11))
    END1 = P.base[RF]
    retire = {g: set() for g in P.bars}
    for vb in range(4, S):
        for k in "KV": retire[P.free_after(k, vb)].add((k, vb % 4))
    a = Asm()
    T0, T1, T2, T3, T4, T5 = [VT + 8 + k for k in range(6)]
    a.salu("s_cmp_ge_u32 s2, 256")
    a.salu("s_cbranch_scc1 L_end")
    a.raw("s_load_dwordx8 s[36:43], s[0:1], 0", "smem")
    ns = opt("cpfs", 2)
    a.salu("s_getpc_b64 s[62:63]")
    a.label("L_pc")
    a.salu(f"s_bfe_u32 s32, s2, {(ns << 16) | 3}")
    a.salu(f"s_lshl_b32 s32, s32, 7")
    a.V(f"v_lshrrev_b32 {vr(VT+6)}, {ns - 1}, v0", [0], VT + 6)
    a.V(f"v_lshlrev_b32 {vr(VT+6)}, {7 + ns}, {vr(VT+6)}", [VT + 6], VT + 6)
    a.V(f"v_add_u32 {vr(VT+6)}, s32, {vr(VT+6)}", [VT + 6], VT + 6)
    a.V(f"v_min_u32 {vr(VT+6)}, L_end-L_pc, {vr(VT+6)}", [VT + 6], VT + 6)
    a.raw(f"global_load_dword {vr(VT+16)}, {vr(VT+6)}, s[62:63]", "vmem", RV(VT + 6))
    if TS:
        a.raw(f"s_load_dwordx2 s[44:45], s[0:1], {32 if DBG else 40}", "smem")
        a.salu("s_mov_b32 s48, 0")
        a.valu(f"v_mov_b32 v{VTS0}, 0", (), R("v", VTS0))
        a.valu(f"v_mov_b32 v{VTS1}, 0", (), R("v", VTS1))
        emit_ts(a)
        a.salu("s_and_b32 s45, s45, 0xffff")
        a.salu(f"s_mov_b32 s46, {256 if DBG else 0x80000}")
        a.salu("s_mov_b32 s47, 0x00020000")
    V = a.V
    V(f"v_and_b32 {vr(VLANE)}, 63, v0", [0], VLANE)
    V(f"v_lshrrev_b32 {vr(T0)}, 6, v0", [0], T0)
    V(f"v_and_b32 {vr(T1)}, 15, v0", [0], T1)
    a.valu(f"v_readfirstlane_b32 s{S_W}, {vr(T0)}", R("v", T0), R("s", S_W))
    V(f"v_lshrrev_b32 {vr(T2)}, 4, {vr(VLANE)}", [VLANE], T2)
    V(f"v_lshrrev_b32 {vr(T3)}, 3, {vr(VLANE)}", [VLANE], T3)
    V(f"v_and_b32 {vr(T4)}, 7, {vr(VLANE)}", [VLANE], T4)
    a.salu("s_and_b32 s32, s2, 7")
    a.salu("s_lshr_b32 s33, s2, 4")
    a.salu("s_lshl_b32 s33, s33, 3")
    a.salu("s_add_u32 s32, s32, s33")
    a.salu("s_lshr_b32 s33, s2, 3")
    a.salu("s_and_b32 s33, s33, 1")
    a.salu("s_lshl_b32 s34, s32, 1")
    a.salu("s_add_u32 s34, s34, s33")
    a.salu("s_mul_i32 s35, s34, 86016")
    a.salu("s_lshl_b32 s33, s32, 18")
    a.salu(f"s_mul_i32 s{S_ROW(0)}, s{S_W}, 20480")
    for t in range(1, NT): a.salu(f"s_add_u32 s{S_ROW(t)}, s{S_ROW(0)}, {t*4096}")
    a.salu(f"s_lshl_b32 s{S_ROW(NT)}, s{S_W}, 6")
    a.salu(f"s_add_u32 s{S_ROW(NT)}, s{S_ROW(NT)}, 81920")
    a.salu(f"s_and_b32 s{S_PIECE}, s{S_W}, 1")
    a.salu(f"s_lshl_b32 s{S_PIECE}, s{S_PIECE}, 13")
    a.salu(f"s_lshr_b32 s34, s{S_W}, 1")
    a.salu("s_lshl_b32 s34, s34, 7")
    a.salu(f"s_add_u32 s{S_PIECE}, s{S_PIECE}, s34")
    a.salu(f"s_lshl_b32 s{S_M0K}, s{S_W}, 12")
    a.salu(f"s_add_u32 s{S_M0V}, s{S_M0K}, {LDS_V}")
    for d, size in ((S_Q, 86016), (S_K, 262144), (S_V, 262144), (S_O, 86016)):
        a.salu(f"s_mov_b32 s{d+2}, {size}")
        a.salu(f"s_mov_b32 s{d+3}, 0x00020000")
    V(f"v_lshlrev_b32 {vr(VTMP)}, 8, {vr(T1)}", [T1], VTMP)
    V(f"v_lshl_add_u32 {vr(VQOFF)}, {vr(T2)}, 4, {vr(VTMP)}", [T2, VTMP], VQOFF)
    V(f"v_lshrrev_b32 {vr(T5)}, 1, {vr(T2)}", [T2], T5)
    V(f"v_xor_b32 {vr(T0)}, {vr(T2)}, {vr(T5)}", [T2, T5], T0)
    for par in range(2):
        if par == 1: V(f"v_xor_b32 {vr(T0)}, 5, {vr(T0)}", [T0], T0)
        V(f"v_xor_b32 {vr(VDK(par))}, {vr(T4)}, {vr(T0)}", [T4, T0], VDK(par))
        V(f"v_lshlrev_b32 {vr(VDK(par))}, 4, {vr(VDK(par))}", [VDK(par)], VDK(par))
        V(f"v_lshl_add_u32 {vr(VDK(par))}, {vr(T3)}, 8, {vr(VDK(par))}", [T3, VDK(par)], VDK(par))
        V(f"v_add_u32 {vr(VDK(par))}, s{S_PIECE}, {vr(VDK(par))}", [VDK(par)], VDK(par))
    V(f"v_add_u32 {vr(VDK(2))}, 2048, {vr(VDK(0))}", [VDK(0)], VDK(2))
    V(f"v_add_u32 {vr(VDK(3))}, 3072, {vr(VDK(1))}", [VDK(1)], VDK(3))
    V(f"v_add_u32 {vr(VDK(1))}, 1024, {vr(VDK(1))}", [VDK(1)], VDK(1))
    a.raw("s_waitcnt lgkmcnt(0)", "wait")
    def srd(d, lo, off):
        a.salu(f"s_add_u32 s{d}, s{lo}, s{off}")
        a.salu(f"s_addc_u32 s{d+1}, s{lo+1}, 0")
        a.salu(f"s_and_b32 s{d+1}, s{d+1}, 0xffff")
    srd(S_Q, 36, 35)
    srd(S_K, 38, 33)
    lastvb = PASSES[RF - 1].vb + 3
    order = list(ORDER)
    for vb in range(lastvb + 1):
        for k in "KV":
            if f"{k}{vb}" not in order: order.append(f"{k}{vb}")
    assert len(set(order)) == len(order) == 6 + 2 * (lastvb + 1)
    allloads = []; after = []; svc = []
    for item in order:
        k = item[0]
        if item == "QX": allloads.append(q_load(NT, 0)); after.append(-2); svc.append(opt("svcq", 0.135)); continue
        n = int(item[1:])
        if k == "Q":
            for s in range(4): allloads.append(q_load(n, s)); after.append(-2); svc.append(opt("svcq", 0.135))
            continue
        base = S_M0K if k == "K" else S_M0V
        for j in range(4):
            d = dma(k, j, tag=(k, n))
            allloads.append([I(f"s_mov_b32 s{S_KOFF}, {(n % 16)*16384}", "salu"), I(f"s_add_u32 m0, s{base}, {(n % 4)*16384}", "salu_m0"), d] if j == 0 else d)
            after.append(P.free_after(k, n)); svc.append(opt("svckv", 0.1))
    def core(x): return x[-1] if isinstance(x, list) else x
    a.raw("s_nop 0", "nop", startloads=True)
    srd(S_V, 40, 33)
    srd(S_O, 42, 35)
    V(f"v_bfe_u32 {vr(T0)}, {vr(VLANE)}, 1, 2", [VLANE], T0)
    V(f"v_and_b32 {vr(T5)}, 1, {vr(T2)}", [T2], T5)
    V(f"v_xor_b32 {vr(T0)}, {vr(T0)}, {vr(T5)}", [T0, T5], T0)
    V(f"v_lshlrev_b32 {vr(T0)}, 6, {vr(T0)}", [T0], T0)
    V(f"v_lshrrev_b32 {vr(T5)}, 5, {vr(VLANE)}", [VLANE], T5)
    V(f"v_lshl_add_u32 {vr(T0)}, {vr(T5)}, 5, {vr(T0)}", [T5, T0], T0)
    V(f"v_and_b32 {vr(T5)}, 1, {vr(VLANE)}", [VLANE], T5)
    V(f"v_lshl_add_u32 {vr(T0)}, {vr(T5)}, 4, {vr(T0)}", [T5, T0], T0)
    V(f"v_and_b32 {vr(T5)}, 3, {vr(T3)}", [T3], T5)
    V(f"v_lshl_add_u32 {vr(T0)}, {vr(T5)}, 8, {vr(T0)}", [T5, T0], T0)
    V(f"v_add_u32 {vr(VDV(0))}, s{S_M0K}, {vr(T0)}", [T0], VDV(0))
    V(f"v_xor_b32 {vr(VDV(1))}, 128, {vr(VDV(0))}", [VDV(0)], VDV(1))
    a.raw("s_nop 0", "nop", vok=True)
    a.salu(f"s_mov_b32 s{S_C}, {f32(SCALE)}")
    a.salu(f"s_mov_b32 s{S_C+1}, {f32(SCALE)}")
    a.salu(f"s_mov_b64 s[{S_BAD}:{S_BAD+1}], 0")
    a.salu(f"s_mov_b32 s{S_LO}, {LO_THR}")
    a.salu(f"s_mov_b32 s{S_HI}, {HI_THR}")
    V(f"v_lshrrev_b32 {vr(T0)}, 1, {vr(T2)}", [T2], T0)
    V(f"v_lshl_add_u32 {vr(VTMP)}, {vr(T0)}, 4, {vr(VTMP)}", [T0, VTMP], VTMP)
    V(f"v_and_b32 {vr(T0)}, 1, {vr(T2)}", [T2], T0)
    V(f"v_lshl_add_u32 {vr(VTMP)}, {vr(T0)}, 5, {vr(VTMP)}", [T0, VTMP], VTMP)
    a.salu(f"s_lshl_b32 s32, s{S_W}, 6")
    V(f"v_add_u32 {vr(VST(0))}, s32, {vr(VTMP)}", [VTMP], VST(0))
    for c in range(1, 4): V(f"v_xor_b32 {vr(VST(c))}, {64*c}, {vr(VST(0))}", [VST(0)], VST(c))
    V(f"v_lshrrev_b32 {vr(T0)}, 1, {vr(T1)}", [T1], T0)
    V(f"v_lshrrev_b32 {vr(T5)}, 1, {vr(T0)}", [T0], T5)
    V(f"v_lshrrev_b32 {vr(T3)}, 2, {vr(T0)}", [T0], T3)
    V(f"v_xor_b32 {vr(T5)}, {vr(T5)}, {vr(T3)}", [T5, T3], T5)
    V(f"v_and_b32 {vr(T5)}, 1, {vr(T5)}", [T5], T5)
    V(f"v_xor_b32 {vr(T0)}, {vr(T0)}, {vr(T5)}", [T0, T5], T0)
    V(f"v_xor_b32 {vr(T0)}, {vr(T0)}, {vr(T2)}", [T0, T2], T0)
    for j in range(4):
        a.salu(f"s_xor_b32 s{32+j}, s{S_W}, {j}")
        a.salu(f"s_lshl_b32 s{32+j}, s{32+j}, 11")
    for p in range(2):
        if p == 1: V(f"v_xor_b32 {vr(T0)}, 4, {vr(T0)}", [T0], T0)
        V(f"v_lshlrev_b32 {vr(T5)}, 4, {vr(T0)}", [T0], T5)
        V(f"v_lshl_add_u32 {vr(T5)}, {vr(T1)}, 7, {vr(T5)}", [T1, T5], T5)
        for j in range(4): V(f"v_add_u32 {vr(VKA(j,p))}, s{32+j}, {vr(T5)}", [T5], VKA(j, p))
    for j in range(4): a.salu(f"s_lshl_b32 s{32+j}, s{32+j}, 1")
    V(f"v_lshrrev_b32 {vr(T0)}, 2, {vr(T1)}", [T1], T0)
    V(f"v_lshl_add_u32 {vr(T0)}, {vr(T2)}, 3, {vr(T0)}", [T2, T0], T0)
    V(f"v_lshlrev_b32 {vr(T0)}, 7, {vr(T0)}", [T0], T0)
    V(f"v_and_b32 {vr(T5)}, 3, {vr(T1)}", [T1], T5)
    V(f"v_lshl_add_u32 {vr(T0)}, {vr(T5)}, 3, {vr(T0)}", [T5, T0], T0)
    V(f"v_add_u32 {vr(T0)}, {LDS_V}, {vr(T0)}", [T0], T0)
    V(f"v_lshrrev_b32 {vr(T5)}, 3, {vr(T1)}", [T1], T5)
    V(f"v_lshl_add_u32 {vr(T5)}, {vr(T2)}, 1, {vr(T5)}", [T2, T5], T5)
    V(f"v_xor_b32 {vr(T5)}, s{S_W}, {vr(T5)}", [T5], T5)
    V(f"v_and_b32 {vr(T5)}, 3, {vr(T5)}", [T5], T5)
    for c in range(4):
        V(f"v_xor_b32 {vr(T3)}, {c}, {vr(T5)}", [T5], T3)
        V(f"v_lshl_add_u32 {vr(T3)}, {vr(T3)}, 5, {vr(T0)}", [T3, T0], T3)
        for j in range(4): V(f"v_add_u32 {vr(VVA(j,c))}, s{32+j}, {vr(T3)}", [T3], VVA(j, c))
    a.salu(f"s_lshr_b32 s32, s{S_W}, 1")
    a.salu("s_lshl_b32 s32, s32, 11")
    a.salu(f"s_and_b32 s33, s{S_W}, 1")
    a.salu("s_lshl_b32 s33, s33, 9")
    a.salu("s_add_u32 s32, s32, s33")
    a.salu(f"s_add_u32 s32, s32, {LDS_X}")
    a.salu("s_xor_b32 s33, s32, 2048")
    V(f"v_lshlrev_b32 {vr(T0)}, 3, {vr(VLANE)}", [VLANE], T0)
    V(f"v_add_u32 {vr(VEX(0))}, s32, {vr(T0)}", [T0], VEX(0))
    V(f"v_add_u32 {vr(VEX(1))}, s33, {vr(T0)}", [T0], VEX(1))
    V(f"v_lshlrev_b32 {vr(VXQ)}, 4, {vr(VLANE)}", [VLANE], VXQ)
    V(f"v_add_u32 {vr(VXQ)}, {LDS_XQ}, {vr(VXQ)}", [VXQ], VXQ)
    a.salu(f"s_lshl_b32 s32, s{S_W}, 10")
    V(f"v_add_u32 {vr(VXQ+1)}, s32, {vr(VXQ)}", [VXQ], VXQ + 1)
    for r in list(range(VZ, VZ + 4)) + list(range(VCHK, VCHK + 4)) + [VL(t) for t in range(NT + 1)]:
        V(f"v_mov_b32 {vr(r)}, 0", [], r)
    if opt("cpf2", 1):
        a.salu(f"s_lshl_b32 s32, s{S_W}, 12")
        a.salu(f"s_add_u32 s32, s32, L_r2-L_pc")
        V(f"v_lshlrev_b32 {vr(VT+13)}, 7, {vr(VLANE)}", [VLANE], VT + 13)
        V(f"v_add_u32 {vr(VT+13)}, s32, {vr(VT+13)}", [VT + 13], VT + 13)
        V(f"v_min_u32 {vr(VT+17)}, L_end-L_pc, {vr(VT+13)}", [VT + 13], VT + 17)
    for r in range(4): V(f"v_mov_b32 {vr(VONE+r)}, 0x3f803f80", [], VONE + r)
    emit_ts(a)
    for item in order:
        if item == "QX":
            scale_tile_pk(a, NT, SP(1, 0), n=4)
            a.raw(f"ds_write_b128 {vr(VXQ+1)}, {vr(VQ(NT,0),4)}", "ldsw", RV(VXQ + 1) | R("v", VQ(NT, 0), 4))
            a.salu(f"s_mov_b32 s{S_ROW(NT)}, 81920")
        elif item[0] == "Q" and int(item[1]) in PASSES[0].tiles:
            scale_tile_pk(a, int(item[1]), SP(0, int(item[1])))
    emit_ts(a)
    a.raw("s_barrier", "barrier", needs={("K", 0)}, retire=set(), bargap=-2)
    emit_ts(a)
    xq = [Op(f"xq{s}", 0, lambda st, s=s: I(f"ds_read_b128 {vr(VQ(NT,s),4)}, {vr(VXQ)} offset:{1024*s}", "lds", RV(VXQ), R("v", VQ(NT, s), 4), grp=("xq",)),
             "mem", -1, -1 + s // 2) for s in range(4)]
    RES = P.reserve()
    def passcap(ops, g0, g1, extra=0.0):
        caps = {}
        for sg in range(N):
            lo, hi = P.base[sg], P.base[sg + 1]
            n = len(PASSES[sg].tiles) - (0.75 if NT in PASSES[sg].tiles else 0)
            nl = len([t for t in PASSES[sg].tiles if t in LM])
            work = n * 224 - nl * 64 + 51 * 4 + 24 + extra
            for g in range(lo, hi): caps[g] = max(8.0, work / (hi - lo) * opt("capscale", 1.0))
        return lambda g: caps.get(g, 8.0)
    gaps1, pend = schedule(free1 + xq, -1, END1, flush=True, reserve=RES, capf=passcap(free1, -1, END1))
    assert not pend
    starts = set(P.base.values())
    def emit_region(x, gaps, g0, g1):
        for g in range(g0, g1):
            if g >= 0 and g < len(P.spine):
                k, t, j, s_, sg = P.spine[g]
                if TS and g in starts and g > 0: emit_ts(x)
                if k == "QK" and j == 0 and s_ == 0 and sg == P.firstpass[t] and sg > 0:
                    scale_tile_pk(x, t, SP(0, t))
                    if TS == 2: emit_ts(x)
                emit_mfma(x, P.spine[g])
            for o in gaps.get(g, []):
                if not getattr(o, "post", False): emit_op(x, o)
            if g in P.bars:
                if TS == 2: emit_ts(x)
                x.raw("s_barrier", "barrier", needs={tg for tg in P.bars[g] if tg[1] < S}, retire=retire[g], bargap=g)
                if TS == 2: emit_ts(x)
            for o in gaps.get(g, []):
                if getattr(o, "post", False): emit_op(x, o)
    emit_region(a, gaps1, -1, END1)
    a.raw("s_nop 0", "nop", forceall=True)
    b0 = PASSES[RF].vb
    a.salu(f"s_mov_b32 s{S_KOFF}, {((b0 + 3) % 16) * 16384}")
    niter = (16 - b0 + 3) // 4
    a.salu(f"s_mov_b32 s{S_CNT}, {niter}")
    emit_ts(a)
    a.raw("s_waitcnt lgkmcnt(0)", "wait")
    if b0 % 4: a.salu(f"s_branch L_blk{b0 % 4}")
    WIN = opt("win", 8); LAT = opt("lat", 0.6); CLK = opt("clk", 2150.0)
    L2 = []; n = 0; started = False; passed = -2; vok = False
    t = 0.45; pipe = 0.0; arr = []; log = []
    def put(lim, timed):
        nonlocal n, t
        while n < min(lim, len(allloads)) and after[n] <= passed and (vok or order_ok(n)):
            room = arr[n - WIN] if n >= WIN else 0.0
            if timed and room > t: break
            t = max(t, room)
            x = allloads[n]; L2.extend(x if isinstance(x, list) else [x])
            arr.append(max(t + LAT, (arr[-1] if arr else 0.0) + svc[n])); n += 1
            t += 12 / CLK
            if timed: break
    def order_ok(k): return not (core(allloads[k]).kind == "dma" and core(allloads[k]).tag[0] == "V")
    for i in a.L:
        if getattr(i, "startloads", False): started = True; put(WIN, False); continue
        if getattr(i, "vok", False): vok = True; continue
        if getattr(i, "forceall", False):
            log.append(f"flush{len(allloads) - n}@{t:.2f}"); put(len(allloads), False); log.append(f"{t:.2f}"); continue
        if started:
            need = -1
            for k, x in enumerate(allloads):
                c = core(x)
                if c.kind == "dma":
                    nd = getattr(i, "needs", None)
                    if nd is not None and c.tag in nd: need = k
                elif c.wr & (i.rd | i.wr): need = k
            if need >= 0:
                put(need + 1, False)
                assert n > need, f"load {need} cannot be issued before {i.text}"
                if arr[need] > t:
                    put(need + WIN + 1, False)
                    if arr[need] > t + 0.02: log.append(f"w{need}:{t:.2f}>{arr[need]:.2f}")
                    t = max(t, arr[need])
            if i.kind == "mfma":
                t = max(t, pipe); pipe = t + 16 / CLK
            t += icost(i) / CLK
        L2.append(i)
        passed = max(passed, getattr(i, "bargap", -2))
        if started and i.kind in ("mfma", "valu") and not getattr(i, "noput", False): put(len(allloads), True)
    assert n == len(allloads)
    print("time model:", " ".join(log))
    r1, _ = insert_lgkm_waits(L2)
    r1, vq1 = insert_vm_waits(r1)
    r1 = fix_hazards(merge_waits(r1))

    PF = regular(3)
    PROTO = {o.name: o for o in PF.ops(1) + PF.dma_ops(1)}
    blocks = []
    for st in range(4):
        b = Asm()
        for g, tag in enumerate(BM):
            k, t_, x, y, _ = tag
            b.L.append(mk_mfma(k, t_, x, y))
            for d, name in TEMPLATE[g]:
                r = PROTO[name].mk((st + d) % 4)
                for i in (r if isinstance(r, list) else [r]):
                    if i.kind == "dma": i.rel = (PROTO[name].blk[0], 3)
                    if i.kind == "salu_m0":
                        if i.pre == "V" and (12 + st) + 3 == S:
                            b.salu(f"s_cmp_eq_u32 s{S_CNT}, 1")
                            for sr in (S_V + 2, S_K + 2): b.salu(f"s_cselect_b32 s{sr}, 0, s{sr}")
                    b.L.append(i)
            if g == BAR_POS:
                b.raw("s_waitcnt vmcnt(8)", "wait")
                b.raw("s_barrier", "barrier", loopbar=True, retire={("K", (st - 1) % 4), ("V", (st - 1) % 4)})
                if st == opt("cpf2blk", 1) and opt("cpf2", 1):
                    b.raw(f"global_load_dword {vr(VT+16)}, {vr(VT+17)}, s[62:63]", "vmem", RV(VT + 17), RV(VT + 16), extra=True)
        blocks.append(b.L)
    assert S >= 16
    flat = [i for bl in blocks for i in bl]
    marks = {id(bl[0]): k for k, bl in enumerate(blocks)}
    _, q1 = insert_lgkm_waits(flat, [])
    body, q2 = insert_lgkm_waits(flat, q1)
    assert [(i.text, a_) for i, a_ in q1] == [(i.text, a_) for i, a_ in q2]
    body = merge_waits(body)
    body2 = []
    for i in body:
        if id(i) in marks and marks[id(i)] > 0:
            lab = I(f"L_blk{marks[id(i)]}:", "label")
            if body2[-1].kind == "wait" and "lgkm" in body2[-1].text: body2.insert(len(body2) - 1, lab)
            else: body2.append(lab)
        body2.append(i)
    body = body2
    tailctl = [I(f"s_sub_u32 s{S_CNT}, s{S_CNT}, 1", "salu"), I(f"s_cmp_lg_u32 s{S_CNT}, 0", "salu"), I("s_cbranch_scc1 L_loop", "salu")]
    if TS:
        x = Asm(); emit_ts(x); tailctl = x.L + tailctl
    chk = fix_hazards(body + tailctl + body, report="loop")
    assert len(chk) == len(body) * 2 + len(tailctl), "hazards in loop"
    q = list(vq1)
    for vb in range(b0, 16):
        for i in blocks[vb % 4]:
            if i.kind == "dma": q.append(I("", "dma", tag=(i.rel[0], vb + i.rel[1])))
            if getattr(i, "extra", False): q.append(I("", "vmem"))
            if getattr(i, "loopbar", False):
                q = q[-8:]
                badtags = {o.tag for o in q if o.kind == "dma"} & {("K", vb + 1), ("V", vb + 1)}
                assert not badtags, f"vmcnt insufficient at block {vb}: {badtags}"
                assert not any(getattr(o, "isload", False) for o in q)
    vq2 = q

    assert RL < N, "needs at least one wrap-around pass"
    start2 = P.base[RL]; end2 = len(P.spine)
    opbyname = {(o.step, o.name): o for sg in allops for o in allops[sg]}
    eops = []
    lastgap = end2 - 1
    xbar = P.phase[(RL, "Pb")] - 1
    assert xbar in P.bars and P.lastpass[NT] == RL - 1
    c = Chain(RL - 1, start2, 2.0)
    adds = [opbyname[(RL - 1, f"add{NT}0{k}")] for k in range(4)]
    lr = lreduce_ops(c, VL(NT), SX, adds)
    c.add(I(f"ds_write2st64_b32 {vr(VEX(0))}, {vr(VL(NT))}, {vr(VL(NT))} offset0:32 offset1:36", "ldsw", RV(VEX(0), VL(NT))), [lr])
    for o in c.ops: o.hardD = xbar
    eops += c.ops
    c = Chain(RL - 1, xbar + 1, 0)
    lp = [c.add(I(f"ds_read2st64_b32 {vr(SX+2*p,2)}, {vr(VEX(p))} offset0:32 offset1:34", "lds", RV(VEX(p)), R("v", SX + 2 * p, 2), grp=("lx",))) for p in range(2)]
    for o in lp: o.D = xbar + 1
    c.E += 8
    s1 = c.add(Vi(f"v_add_f32 {vr(SX)}, {vr(SX)}, {vr(SX+1)}", [SX, SX + 1], SX), lp)
    s2 = c.add(Vi(f"v_add_f32 {vr(SX+2)}, {vr(SX+2)}, {vr(SX+3)}", [SX + 2, SX + 3], SX + 2), lp)
    s3 = c.add(Vi(f"v_add_f32 {vr(VL(NT))}, {vr(SX)}, {vr(SX+2)}", [SX, SX + 2], VL(NT)), [s1, s2])
    rc = c.add(I(f"v_rcp_f32 {vr(SX)}, {vr(VL(NT))}", "trans", RV(VL(NT)), RV(SX)), [s3]); rc.cost = 8
    c.add(range_check(VL(NT)), [s3]).cost = 16
    c.E = max(c.E, P.pos[("PV", NT, 1, 4, RL - 1)] + 4)
    xq_ = VQ(NT, 0)
    h0 = half_chunk(c, AO(NT, 0), xq_, xq_, SX, rc, [])
    h1 = half_chunk(c, AO(NT, 4), xq_ + 4, xq_ + 2, SX, rc, [h0])
    store_chunk(c, xq_, [h0, h1], S_ROW(NT), VST(0))
    eops += c.ops
    for t in sorted(range(NT), key=lambda t: P.lastpass[t]):
        sl = P.lastpass[t]
        E0 = max(start2, P.pos[("PV", t, 0, 7, sl)] + 1)
        c = Chain(sl, E0, 0)
        tmp = SP(0, t)
        if t in LM:
            lreg = VLM(t); lr = None
            c.E = max(c.E, min(lastgap, P.pos[("LS", t, 1, 0, sl)] + 4))
        else:
            lreg = VL(t)
            adds = [opbyname[(sl, f"add{t}{j}{k}")] for j in range(4) for k in range(4)]
            lr = lreduce_ops(c, VL(t), tmp, adds)
        rc = c.add(I(f"v_rcp_f32 {vr(tmp+2)}, {vr(lreg)}", "trans", R("v", lreg), R("v", tmp + 2)), [lr]); rc.cost = 8
        c.add(range_check(lreg), [lr]).cost = 16
        hs = {}
        for dt in range(8):
            buf = VQ(t, dt % 4)
            Em = P.pos[("PV", t, 1, dt, sl)]
            c.E = max(c.E, min(Em + 4, lastgap))
            exposed = sl == N - 1 and c.E + opt("pkmargin", 4) >= lastgap
            if dt < 4: hs[dt] = half_chunk(c, AO(t, dt), buf, buf, tmp + 2, rc, [], exposed)
            else:
                hs[dt] = half_chunk(c, AO(t, dt), SP(dt % 2, t) + 4, buf + 2, tmp + 2, rc, [hs[dt - 4], hs.get(dt - 2)], exposed)
                store_chunk(c, buf, [hs[dt]], S_ROW(t), VST(dt % 4))
        eops += c.ops
    e = Asm()
    work = sum(opcost(o) for o in free2 + eops if o.E < lastgap - 8) + sum(v for g, v in RES.items() if g >= start2)
    cap2 = max(8.0, work / (end2 - start2) * opt("cap2scale", 1.1))
    print(f"region 2: {end2 - start2} mfma, cap {cap2:.1f}")
    gaps2, pend = schedule(free2 + eops, start2, end2 + 1, flush=True, reserve=RES, capf=lambda g: cap2)
    assert not pend
    emit_region(e, gaps2, start2, end2 + 1)
    e.valu(f"v_cmp_u_f32 vcc, {vr(VCHK)}, {vr(VCHK+1)}", R("v", VCHK, 2), R("s", 106))
    e.salu(f"s_or_b64 s[{S_BAD}:{S_BAD+1}], s[{S_BAD}:{S_BAD+1}], vcc")
    e.salu(f"s_cmp_lg_u64 s[{S_BAD}:{S_BAD+1}], 0")
    if opt("forceslow", 0) == 1: e.salu("s_cmp_eq_u32 s2, s2")
    if opt("forceslow", 0) == 2: e.salu(f"s_cmp_eq_u32 s{S_W}, 2")
    e.salu("s_cbranch_scc1 L_slow")
    emit_ts_store(e)
    e.label("L_end")
    e.raw("s_endpgm", "other")
    r2, _ = insert_lgkm_waits(e.L, q2)
    r2, _ = insert_vm_waits(r2, vq2)
    r2 = fix_hazards(merge_waits(r2), ctx=body[-30:] + tailctl)
    return P, r1, body, tailctl, r2

def build_slow():
    def emit_op(a, o):
        r = o.mk(0)
        a.L += r if isinstance(r, list) else [r]
    def AOs(t, dt): return 32 * t + 4 * dt
    s = Asm()
    Vs = s.V
    def VM(t): return 164 + t
    SS = 96; MX = 160; AL = 161; TM = 162
    def PP(t): return 112 + 8 * t
    s.label("L_slow")
    s.raw("s_waitcnt vmcnt(0) lgkmcnt(0)", "wait")
    s.raw("s_barrier", "barrier")
    s.salu(f"s_mov_b32 s{S_K+2}, 262144")
    s.salu(f"s_mov_b32 s{S_V+2}, 262144")
    for t in range(NT + 1):
        for k in range(4): s.L.append(q_load(t, k))
    for r in range(192): s.valu(f"v_accvgpr_write_b32 {ar(r)}, 0", (), R("a", r))
    for t in range(NT + 1):
        Vs(f"v_mov_b32 {vr(VL(t))}, 0", [], VL(t))
        Vs(f"v_mov_b32 {vr(VM(t))}, 0xff800000", [], VM(t))
    s.salu(f"s_lshl_b32 s33, s{S_W}, 12")
    s.salu(f"s_lshl_b32 s{S_M0K}, s{S_W}, 14")
    s.salu(f"s_sub_u32 s32, s{S_M0K}, {LDS_V}")
    for j in range(4):
        Vs(f"v_subrev_u32 {vr(VDK(j))}, s{S_PIECE}, {vr(VDK(j))}", [VDK(j)], VDK(j))
        if j < 2: Vs(f"v_subrev_u32 {vr(VDV(j))}, s33, {vr(VDV(j))}", [VDV(j)], VDV(j))
        for p in range(2): Vs(f"v_add_u32 {vr(VKA(j,p))}, s{S_M0K}, {vr(VKA(j,p))}", [VKA(j, p)], VKA(j, p))
        for c in range(4): Vs(f"v_add_u32 {vr(VVA(j,c))}, s32, {vr(VVA(j,c))}", [VVA(j, c)], VVA(j, c))
    s.raw("s_waitcnt vmcnt(0)", "wait")
    for t in range(NT + 1): scale_tile_pk(s, t, VT)
    s.salu("s_mov_b32 s33, 0")
    s.salu(f"s_mov_b32 s{S_CNT}, 16")
    s.label("L_slow_loop")
    def fill(which):
        so = S_KOFF if which == "K" else S_VOFF
        for pc in range(4):
            s.salu(f"s_add_u32 s{so}, s33, {(pc & 1) * 8192 + (pc >> 1) * 128 if which == 'K' else 4096 * pc}")
            s.raw(f"s_add_u32 m0, s{S_M0K}, {4096*pc}", "salu_m0")
            s.nop(1)
            for j in range(4): s.L.append(dma(which, j))
        s.raw("s_waitcnt vmcnt(0)", "wait")
    fill("K")
    def KF(j, k): return 192 + 16 * j + 4 * k
    for j in range(4):
        for k in range(4):
            s.raw(f"ds_read_b128 {ar(KF(j,k),4)}, {vr(VKA(j, k % 2))} offset:{(k//2)*8192}", "lds", R("v", VKA(j, k % 2)), R("a", KF(j, k), 4))
        s.raw("s_waitcnt lgkmcnt(0)", "wait")
    fill("V")
    for t in range(NT + 1):
        for j in range(4):
            for k in range(4):
                d = SS + 4 * j
                c = "0" if k == 0 else vr(d, 4)
                s.raw(f"v_mfma_f32_16x16x32_bf16 {vr(d,4)}, {ar(KF(j,k),4)}, {vr(VQ(t,k),4)}, {c}", "mfma",
                      R("a", KF(j, k), 4) | R("v", VQ(t, k), 4) | (R("v", d, 4) if k else set()), R("v", d, 4),
                      cacc=R("v", d, 4) if k else set())
        s.nop(10)
        Vs(f"v_max3_f32 {vr(MX)}, {vr(SS)}, {vr(SS+1)}, {vr(SS+2)}", [SS, SS + 1, SS + 2], MX)
        for r in range(3, 15, 2):
            Vs(f"v_max3_f32 {vr(MX)}, {vr(MX)}, {vr(SS+r)}, {vr(SS+r+1)}", [MX, SS + r, SS + r + 1], MX)
        Vs(f"v_max_f32 {vr(MX)}, {vr(MX)}, {vr(SS+15)}", [MX, SS + 15], MX)
        for sw in ("v_permlane32_swap_b32", "v_permlane16_swap_b32"):
            Vs(f"v_mov_b32 {vr(TM)}, {vr(MX)}", [MX], TM)
            s.nop(2)
            s.valu(f"{sw} {vr(MX)}, {vr(TM)}", RV(MX, TM), RV(MX, TM))
            s.nop(2)
            Vs(f"v_max_f32 {vr(MX)}, {vr(MX)}, {vr(TM)}", [MX, TM], MX)
        Vs(f"v_max_f32 {vr(MX)}, {vr(MX)}, {vr(VM(t))}", [MX, VM(t)], MX)
        Vs(f"v_sub_f32 {vr(AL)}, {vr(VM(t))}, {vr(MX)}", [MX, VM(t)], AL)
        Vs(f"v_exp_f32 {vr(AL)}, {vr(AL)}", [AL], AL, "trans")
        Vs(f"v_mov_b32 {vr(VM(t))}, {vr(MX)}", [MX], VM(t))
        for r in range(16): Vs(f"v_sub_f32 {vr(SS+r)}, {vr(SS+r)}, {vr(MX)}", [SS + r, MX], SS + r)
        for r in range(16): Vs(f"v_exp_f32 {vr(SS+r)}, {vr(SS+r)}", [SS + r], SS + r, "trans")
        Vs(f"v_mul_f32 {vr(VL(t))}, {vr(VL(t))}, {vr(AL)}", [VL(t), AL], VL(t))
        for r in range(16): Vs(f"v_add_f32 {vr(VL(t))}, {vr(VL(t))}, {vr(SS+r)}", [VL(t), SS + r], VL(t))
        for r in range(8): Vs(f"v_cvt_pk_bf16_f32 {vr(PP(t)+r)}, {vr(SS+2*r)}, {vr(SS+2*r+1)}", [SS + 2 * r, SS + 2 * r + 1], PP(t) + r)
        for r in range(32):
            tm = VT + (r % 8)
            s.valu(f"v_accvgpr_read_b32 {vr(tm)}, {ar(AOs(t,0)+r)}", R("a", AOs(t, 0) + r), R("v", tm))
            Vs(f"v_mul_f32 {vr(tm)}, {vr(tm)}, {vr(AL)}", [tm, AL], tm)
            s.valu(f"v_accvgpr_write_b32 {ar(AOs(t,0)+r)}, {vr(tm)}", R("v", tm), R("a", AOs(t, 0) + r))
    s.nop(10)
    def VF(p, dt): return 192 + 32 * p + 4 * dt
    for p in range(2):
        for dt in range(8):
            for h in range(2):
                j = 2 * p + h
                s.raw(f"ds_read_b64_tr_b16 {ar(VF(p,dt)+2*h,2)}, {vr(VVA(j, dt % 4))} offset:{(dt//4)*512}", "lds",
                      R("v", VVA(j, dt % 4)), R("a", VF(p, dt) + 2 * h, 2))
            if dt % 4 == 3: s.raw("s_waitcnt lgkmcnt(0)", "wait")
    for t in range(NT + 1):
        for p in range(2):
            for dt in range(8):
                d = AOs(t, dt)
                s.raw(f"v_mfma_f32_16x16x32_bf16 {ar(d,4)}, {ar(VF(p,dt),4)}, {vr(PP(t)+4*p,4)}, {ar(d,4)}", "mfma",
                      R("a", VF(p, dt), 4) | R("v", PP(t) + 4 * p, 4) | R("a", d, 4), R("a", d, 4), cacc=R("a", d, 4))
    s.nop(10)
    s.salu("s_add_u32 s33, s33, 16384")
    s.salu(f"s_sub_u32 s{S_CNT}, s{S_CNT}, 1")
    s.salu(f"s_cmp_lg_u32 s{S_CNT}, 0")
    s.salu("s_cbranch_scc1 L_slow_loop")
    for t in range(NT + 1):
        c = Chain(0, 0, 1.0)
        lr = lreduce_ops(c, VL(t), TM, [])
        rc = c.add(I(f"v_rcp_f32 {vr(MX)}, {vr(VL(t))}", "trans", RV(VL(t)), RV(MX)), [lr])
        for m in range(4 if t < NT else 1):
            buf = 8 * m
            h0 = half_chunk(c, AOs(t, m), buf, buf, MX, rc, [])
            h1 = half_chunk(c, AOs(t, m + 4), buf + 4, buf + 2, MX, rc, [h0])
            store_chunk(c, buf, [h1], S_ROW(t), VST(m))
        for o in c.ops: emit_op(s, o)
        s.raw("s_waitcnt vmcnt(0)", "wait")
    s.raw("s_waitcnt vmcnt(0)", "wait")
    s.raw("s_endpgm", "other")
    return fix_hazards(s.L)

def main():
    P, r1, body, tailctl, r2 = build()
    slow = build_slow()
    lines = []
    ref = open("standalone__gqa_softmax__near_ridge.s.ref").read().splitlines()
    for l in ref:
        if l.startswith("; @launch"): break
        lines.append(l)
    lines.append("; @launch grid=(256,1,1) block=(256,1,1) lds=163840")
    lines.append('.amdgcn_target "amdgcn-amd-amdhsa--gfx950"')
    lines.append(".text")
    lines.append(f".globl {KNAME}")
    lines.append(".p2align 8")
    lines.append(f".type {KNAME},@function")
    lines.append(f"{KNAME}:")
    def dump(L):
        for i in L: lines.append(i.text if i.kind == "label" else "    " + i.text)
    dump(r1)
    lines.append(".p2align 6")
    lines.append("L_loop:")
    if "nostore" in opt("abl", ""): r2 = [i for i in r2 if not i.text.startswith("buffer_store_dwordx4")]
    if "noswap" in opt("abl", ""): r2 = [i for i in r2 if not i.text.startswith("v_permlane16")]
    if "noacc" in opt("abl", ""): r2 = [i for i in r2 if not i.text.startswith("v_accvgpr")]
    if opt("abl", ""): r2 = [i for i in r2 if "L_slow" not in i.text]
    dump(body); dump(tailctl); lines.append("L_r2:"); dump(r2); dump(slow)
    lines.append('.section .rodata,"a"')
    lines.append(".p2align 6")
    lines.append(f".amdhsa_kernel {KNAME}")
    lines.append("  .amdhsa_next_free_vgpr 512")
    lines.append("  .amdhsa_next_free_sgpr 64")
    lines.append("  .amdhsa_accum_offset 256")
    lines.append("  .amdhsa_group_segment_fixed_size 0")
    lines.append("  .amdhsa_kernarg_size 48")
    lines.append("  .amdhsa_user_sgpr_count 2")
    lines.append("  .amdhsa_user_sgpr_kernarg_segment_ptr 1")
    lines.append("  .amdhsa_system_sgpr_workgroup_id_x 1")
    lines.append(".end_amdhsa_kernel")
    open(OUT, "w").write("\n".join(lines) + "\n")
    nn = lambda L: sum(1 for i in L if i.kind == "nop")
    print("written", OUT, "r1", len(r1), f"(nops {nn(r1)})", "body", len(body), "waits", sum(1 for i in body if i.kind == "wait"),
          "r2", len(r2), f"(nops {nn(r2)})", "slow", len(slow))

if __name__ == "__main__":
    if "stats" in OPTS:
        PF = regular(3)
        PR = {o.name: o for o in PF.ops(1) + PF.dma_ops(1)}
        RS = PF.reserve()
        hist = {}
        for g, l in enumerate(TEMPLATE):
            c = sum(opcost(PR[n]) for _, n in l) + RS.get(PF.base[1] + g, 0)
            hist[c] = hist.get(c, 0) + 1
            print(g, BM[g][:4], c, l)
        print(hist)
    else:
        main()
```

```python
import struct, sys, math

KNAME = "standalone__gqa_softmax__near_ridge_kernel"
OUT = sys.argv[1] if len(sys.argv) > 1 else "standalone__gqa_softmax__near_ridge.s"
OPTS = dict(a.split("=") for a in sys.argv[2:])
def opt(name, default):
    return type(default)(OPTS.get(name, default))

STFS = {"none": "", "sc1": " sc1", "nt": " nt", "sc01": " sc0 sc1", "sc1nt": " sc1 nt"}
STF = STFS[opt("stf", "sc1")]
QF = " nt" if opt("qnt", 1) else ""
KVF = " nt" if opt("kvnt", 1) else ""
def f32(x): return "0x%08x" % struct.unpack("<I", struct.pack("<f", x))[0]
SCALE = math.log2(math.e) / math.sqrt(128.0)

NT = 5
def VQ(t, s): return 16 * t + 4 * s
def SP(p, t): return 96 + 40 * p + 8 * t
SX = 176
def VL(t): return 180 + t
def VKA(j, p): return 186 + 2 * j + p
def VVA(j, c): return 194 + 4 * j + c
def VDK(j): return 210 + j
def VDV(j): return 214 + (j & 1)
VLANE = 218
def VEX(p): return 220 + p
def VST(c): return (216, 217, 222, 223)[c]
VZ = 224
VCHK = 228
VQOFF = 232
VTMP = 233
VXQ = 234
VT = 236
VSR, VSO, VSTX = 236, 237, 238
def VSD(c): return (238, 241, 242, 243)[c]
VTS0, VTS1, VTS2 = 219, 254, 255
def AO(t, dt): return 32 * t + 4 * dt if t < NT else 160 + dt
def APX(p): return 168 + 4 * p
def AK(b, s): return 192 + 16 * b + 4 * s
def AV(b, i): return 224 + 16 * b + 4 * i
S_Q, S_K, S_V, S_O = 4, 8, 12, 16
S_W = 20; S_KOFF = 21; S_VOFF = 21; S_CNT = 23; S_M0K = 24; S_M0V = 25; S_PIECE = 26
S_C = 28
S_BAD = 30
S_T = 32
S_LO, S_HI = 54, 55
def S_ROW(t): return 56 + t
LDS_V = 65536
LDS_X = 131072
LDS_XQ = LDS_X + 12288
LDS_ST = LDS_X + 12288

LM = [int(c) for c in opt("lm", "34").strip("-")]
VONE = VT + 8
def ALM(t): return 176 + 4 * LM.index(t)
assert len(LM) <= 4

def vr(n, k=1): return f"v{n}" if k == 1 else f"v[{n}:{n+k-1}]"
def ar(n, k=1): return f"a{n}" if k == 1 else f"a[{n}:{n+k-1}]"
def R(kind, n, k=1): return {(kind, n + i) for i in range(k)}
def RV(*regs): return set().union(*[R("v", r) for r in regs]) if regs else set()

class I:
    def __init__(s, text, kind, rd=(), wr=(), **kw):
        s.text, s.kind, s.rd, s.wr = text, kind, set(rd), set(wr)
        s.__dict__.update(kw)
    def __repr__(s): return s.text

class Asm:
    def __init__(s): s.L = []
    def raw(s, text, kind="other", rd=(), wr=(), **kw):
        s.L.append(I(text, kind, rd, wr, **kw)); return s.L[-1]
    def label(s, name): s.L.append(I(name + ":", "label"))
    def nop(s, n):
        while n > 0:
            k = min(n, 16); s.raw(f"s_nop {k-1}", "nop"); s.L[-1].ws = k; n -= k
    def salu(s, text): return s.raw(text, "salu")
    def valu(s, text, rd=(), wr=()): return s.raw(text, "valu", rd, wr)
    def V(s, txt, rd, wr, kind="valu"): return s.raw(txt, kind, RV(*rd), RV(wr) if wr is not None else ())

def mfma_qk(t, j, s):
    d = SX if t == NT else SP(j // 2, t) + 4 * (j % 2)
    a = AK(j % 2, s); b = VQ(t, s)
    c = "0" if s == 0 else vr(d, 4)
    rd = R("a", a, 4) | R("v", b, 4) | (R("v", d, 4) if s else set())
    return I(f"v_mfma_f32_16x16x32_bf16 {vr(d,4)}, {ar(a,4)}, {vr(b,4)}, {c}", "mfma", rd, R("v", d, 4),
             cacc=R("v", d, 4) if s else set())
def mfma_pv(t, p, dt, first=False):
    d = AO(t, dt); a = AV(dt // 4, dt % 4)
    bt, br = (ar(APX(p), 4), R("a", APX(p), 4)) if t == NT else (vr(SP(p, t), 4), R("v", SP(p, t), 4))
    c = "0" if first else ar(d, 4)
    return I(f"v_mfma_f32_16x16x32_bf16 {ar(d,4)}, {ar(a,4)}, {bt}, {c}", "mfma",
             R("a", a, 4) | br | (set() if first else R("a", d, 4)), R("a", d, 4),
             cacc=set() if first else R("a", d, 4))
def mfma_ls(t, p, first=False):
    d = ALM(t); b = SP(p, t)
    c = "0" if first else ar(d, 4)
    return I(f"v_mfma_f32_16x16x32_bf16 {ar(d,4)}, {vr(VONE,4)}, {vr(b,4)}, {c}", "mfma",
             R("v", VONE, 4) | R("v", b, 4) | (set() if first else R("a", d, 4)), R("a", d, 4),
             cacc=set() if first else R("a", d, 4))
def mk_mfma(k, t, x, y, first=False):
    if k == "QK": return mfma_qk(t, x, y)
    if k == "LS": return mfma_ls(t, x, first)
    return mfma_pv(t, x, y, first)
def lds_k(j, s, stage):
    d = AK(j % 2, s)
    return I(f"ds_read_b128 {ar(d,4)}, {vr(VKA(j, s % 2))} offset:{stage*16384 + (s//2)*8192}", "lds",
             R("v", VKA(j, s % 2)), R("a", d, 4), grp=("k", j), grp2=(j - 1) % 4, src=("K", stage))
def lds_v(p, dt, h, stage):
    d = AV(dt // 4, dt % 4) + 2 * h
    j = 2 * p + h
    return I(f"ds_read_b64_tr_b16 {ar(d,2)}, {vr(VVA(j, dt % 4))} offset:{stage*16384 + (dt//4)*512}", "lds",
             R("v", VVA(j, dt % 4)), R("a", d, 2), grp=("v", p, dt // 4), grp2=(0 if p else 2) + dt // 4, src=("V", stage))
def x_write(stage):
    o = 8 * (stage % 2)
    return I(f"ds_write2st64_b64 {vr(VEX(0))}, {vr(SX,2)}, {vr(SX,2)} offset0:{o} offset1:{o+2}", "ldsw", RV(VEX(0), SX, SX + 1))
def x_read(p, stage):
    o = 8 * (stage % 2)
    return I(f"ds_read2st64_b64 {ar(APX(p),4)}, {vr(VEX(p))} offset0:{o} offset1:{o+1}", "lds", RV(VEX(p)), R("a", APX(p), 4),
             grp=("x", p), grp2=2)
def v_exp(r): return I(f"v_exp_f32 {vr(r)}, {vr(r)}", "trans", R("v", r), R("v", r))
def v_addl(t, r): return I(f"v_add_f32 {vr(VL(t))}, {vr(VL(t))}, {vr(r)}", "valu", R("v", r) | R("v", VL(t)), R("v", VL(t)))
def v_cvt(d, a, b): return I(f"v_cvt_pk_bf16_f32 {vr(d)}, {vr(a)}, {vr(b)}", "valu", R("v", a) | R("v", b), R("v", d))
def dma(which, j, tag=None):
    if which == "K":
        return I(f"buffer_load_dwordx4 {vr(VDK(j))}, s[{S_K}:{S_K+3}], s{S_KOFF} offen offset:{1024*j}{KVF} lds", "dma", R("v", VDK(j)), tag=tag)
    return I(f"buffer_load_dwordx4 {vr(VDV(j))}, s[{S_V}:{S_V+3}], s{S_VOFF} offen offset:{1024*j}{KVF} lds", "dma", R("v", VDV(j)), tag=tag)
def q_load(t, s):
    return I(f"buffer_load_dwordx4 {vr(VQ(t,s),4)}, {vr(VQOFF)}, s[{S_Q}:{S_Q+3}], s{S_ROW(t)} offen offset:{64*s}{QF}", "vmem",
             R("v", VQOFF), R("v", VQ(t, s), 4), isload=True)
def Vi(txt, rd, wr, kind="valu"): return I(txt, kind, RV(*rd), RV(*wr) if isinstance(wr, (list, tuple)) else RV(wr))

FULL = "01234X"
PLANS = {
 "a": ("Q0,QX,K0,V0,Q1,K1,V1,Q2,K2,V2,Q3,K3,V3,Q4",
       [("0X", 0, "qd", {"Pc": "V0"}), ("1", 0, "", {"Pd": "K1"}), ("01X", 1, "d", {"Q2": "V1"}),
        ("2", 0, "", {}), ("2", 1, "", {"Pc": "K2"}), ("012X", 2, "", {"Q2": "V2", "Pd": "K3"}),
        ("0123X", 3, "", {"Q2": "V3", "Pd": "K4"}), (FULL, 4, "", {"Q2": "V4", "Pd": "K5,V5"})]),
 "o": ("Q0,QX,K0,Q1,V0,K1,Q2,Q3,V1,K2,Q4,V2",
       [("01X", 0, "", {"Q2": "V0", "end": "K1"}), ("0123X", 1, "", {"Q2": "V1", "end": "K2"}),
        (FULL, 2, "", {"Q2": "V2", "Pd": "K3,V3"})]),
 "b": ("Q0,QX,K0,V0,Q1,Q2,K1,V1,Q3,K2,V2,Q4,K3,V3",
       [("0X", 0, "qd", {"Pc": "V0"}), ("1", 0, "d", {}), ("2", 0, "", {"Pd": "K1"}),
        ("012X", 1, "", {"Q2": "V1", "end": "K2"}), ("0123X", 2, "", {"Q2": "V2", "Pd": "K3"}),
        (FULL, 3, "", {"Q2": "V3", "Pd": "K4,V4"})]),
 "e": ("Q0,QX,K0,V0,Q1,Q2,K1,V1,Q3,Q4,K2,V2",
       [("0X", 0, "qd", {"Pc": "V0"}), ("1", 0, "d", {}), ("2", 0, "", {"Pd": "K1"}),
        ("012X", 1, "", {"Q2": "V1", "end": "K2"}), (FULL, 2, "", {"Q2": "V2", "Pd": "K3,V3"})]),
 "f": ("Q0,QX,Q1,K0,V0,Q2,K1,V1,Q3,Q4,K2,V2",
       [("01X", 0, "qd", {"Pc": "V0"}), ("2", 0, "", {"Pd": "K1"}),
        ("012X", 1, "", {"Q2": "V1", "end": "K2"}), (FULL, 2, "", {"Q2": "V2", "Pd": "K3,V3"})]),
 "g": ("Q0,QX,Q1,K0,V0,K1,Q2,V1,Q3,Q4,K2,V2",
       [("01X", 0, "q", {"Pc": "V0", "end": "K1"}),
        ("012X", 1, "", {"Q2": "V1"}), ("3", 1, "", {"Pd": "K2"}), (FULL, 2, "", {"Q2": "V2", "Pd": "K3,V3"})]),
 "h": ("Q0,QX,K0,V0,Q1,K1,V1,Q2,Q3,Q4,K2,V2",
       [("0X", 0, "qd", {"Pc": "V0"}), ("1", 0, "", {"Pd": "K1"}), ("01X", 1, "", {"Q2": "V1"}),
        ("2", 1, "", {}), ("3", 1, "", {"Pd": "K2"}), (FULL, 2, "", {"Q2": "V2", "Pd": "K3,V3"})]),
 "i": ("Q0,QX,K0,V0,Q1,Q2,K1,V1,Q3,Q4,K2,V2",
       [("0X", 0, "qd", {"Pc": "V0"}), ("1", 0, "d", {}), ("2", 0, "", {"Pd": "K1"}),
        ("012X", 1, "", {"Q2": "V1"}), ("3", 1, "", {"Pd": "K2"}), (FULL, 2, "", {"Q2": "V2", "Pd": "K3,V3"})]),
 "j": ("Q0,QX,K0,V0,Q1,Q2,K1,V1,Q3,K2,V2,Q4,K3,V3",
       [("0X", 0, "qd", {"Pc": "V0"}), ("1", 0, "d", {}), ("2", 0, "", {"Pd": "K1"}),
        ("012X", 1, "", {"Q2": "V1", "end": "K2"}), ("0123X", 2, "", {"Q2": "V2"}), ("4", 2, "", {"Pb": "K3"}),
        (FULL, 3, "", {"Pb": "V3", "Pd": "K4,V4"})]),
 "c": ("Q0,QX,K0,V0,Q1,K1,V1,Q2,K2,V2,Q3,Q4,K3,V3",
       [("0X", 0, "qd", {"Pc": "V0"}), ("1", 0, "", {"Pd": "K1"}), ("01X", 1, "d", {"Q2": "V1"}),
        ("2", 0, "", {}), ("2", 1, "", {"Pc": "K2"}), ("012X", 2, "", {"Q2": "V2"}),
        ("3", 2, "", {"Pd": "K3"}), (FULL, 3, "", {"Q2": "V3", "Pd": "K4,V4"})]),
}
class Pass:
    def __init__(s, tiles, vb, flags="", bars=None):
        s.tiles = {NT if c == "X" else int(c) for c in tiles}; s.vb = vb; s.flags = flags
        s.bars = {k: {(x[0], int(x[1:])) for x in v.split(",") if x} for k, v in (bars or {}).items()}
def make_passes():
    order, r1 = PLANS[opt("plan", "i")]
    order = opt("order", order)
    ps = [Pass(*x) for x in r1]
    rf = len(ps)
    assert len(ps[-1].tiles) == NT + 1
    b0 = ps[-1].vb + 1
    r2 = opt("r2", "")
    le = min(int(x.split(":")[1]) for x in r2.split(",")) - 1 if r2 else 15
    for vb in range(b0, le + 1): ps.append(Pass(FULL, vb, "", {"Pb": f"K{vb+1},V{vb+1}"}))
    rl = len(ps)
    if r2:
        for x in r2.split(","): ps.append(Pass(x.split(":")[0], int(x.split(":")[1])))
    else:
        done = {t: {p.vb for p in ps if t in p.tiles} for t in range(NT + 1)}
        for b in range(b0):
            tl = "".join(str(t) for t in range(NT) if b not in done[t])
            if tl: ps.append(Pass(tl, 16 + b))
    for t in range(NT + 1):
        assert sorted(p.vb % 16 for p in ps if t in p.tiles) == list(range(16)), f"tile {t} coverage"
    xs = [p.vb for p in ps if NT in p.tiles]; assert xs == list(range(16))
    S = max(p.vb for p in ps) + 1
    assert ps[rl].vb == le + 1 and S <= le + 5
    seen = set(range(le + 2))
    for k in range(rl, len(ps)):
        if NT in ps[k].tiles or NT in ps[k - 1].tiles or (k == rl and S == le + 5): ps[k].bars.setdefault("Pb", set())
        if ps[k].vb not in seen:
            seen.add(ps[k].vb); ps[k - 1].bars.setdefault("Pb", set()).update({("K", ps[k].vb), ("V", ps[k].vb)})
    ps[-1].flags = "d"
    return order.split(","), ps, rf, rl, S, le
ORDER, PASSES, RF, RL, S, LE = make_passes()

class Op:
    count = 0
    def __init__(s, name, step, mk, cls, E, D, preds=(), seq=None, Emin=None):
        s.name, s.step, s.mk, s.cls, s.E, s.D, s.preds = name, step, mk, cls, E, D, list(preds)
        s.gap = None
        Op.count += 1
        s.seq = Op.count if seq is None else seq
        s.Emin = E if Emin is None else Emin

EXP_LAG = opt("explag", 8)
LDS_LEAD = opt("ldslead", 9)

class Program:
    def __init__(P, passes, ready0=()):
        P.ps = passes
        P.spine = []; P.base = {}; P.phase = {}
        for sg, ps in enumerate(passes):
            P.base[sg] = len(P.spine)
            prev = passes[sg - 1] if sg > 0 and "d" not in passes[sg - 1].flags else None
            def Q(j):
                P.phase[(sg, f"Q{j}")] = len(P.spine)
                for t in range(NT + 1):
                    if t in ps.tiles and (t < NT or j == 0):
                        for s in range(4): P.spine.append(("QK", t, j, s, sg))
            def PV(name, p, half, s2):
                P.phase[(sg, name)] = len(P.spine)
                if s2 is None: return
                tl = passes[s2].tiles
                for dt in range(4 * half, 4 * half + 4):
                    for t in range(NT + 1):
                        if t in tl and (t < NT or dt % 4 == 0): P.spine.append(("PV", t, p, dt, s2))
                if half == 0:
                    for t in LM:
                        if t in tl: P.spine.append(("LS", t, p, 0, s2))
            pv = sg - 1 if prev else None
            if "q" in ps.flags:
                Q(0); PV("Pa", 1, 0, pv); Q(1); PV("Pb", 1, 1, pv); Q(2); Q(3); PV("Pc", 0, 0, sg); PV("Pd", 0, 1, sg)
            else:
                Q(0); PV("Pa", 1, 0, pv); Q(1); PV("Pb", 1, 1, pv); Q(2); PV("Pc", 0, 0, sg); Q(3); PV("Pd", 0, 1, sg)
            if "d" in ps.flags: PV("Pe", 1, 0, sg); PV("Pf", 1, 1, sg)
            P.phase[(sg, "end")] = len(P.spine)
        P.base[len(passes)] = len(P.spine)
        P.pos = {tag: i for i, tag in enumerate(P.spine)}
        P.first = {}; P.last = {}
        for i, (k, t, x, y, sg) in enumerate(P.spine):
            for key in ((k, x, y, sg), (k, x, sg), (k, x, y // 4, "h", sg)):
                P.first.setdefault(key, i); P.last[key] = i
        P.firstpass = {t: min(k for k, p in enumerate(passes) if t in p.tiles) for t in range(NT + 1)}
        P.lastpass = {t: max(k for k, p in enumerate(passes) if t in p.tiles) for t in range(NT + 1)}
        P.bars = {}; P.ready = {tg: -1 for tg in ready0}; P.xbar = {}
        for sg, ps in enumerate(passes):
            for ph, tags in ps.bars.items():
                g = P.phase[(sg, ph)] - 1
                P.bars.setdefault(g, set()).update(tags)
                for tg in tags: P.ready[tg] = g + 1
                if NT in ps.tiles and g < P.phase[(sg, "Pc")]: P.xbar[sg] = max(g, P.xbar.get(sg, -1))
            assert NT not in ps.tiles or sg in P.xbar or sg == len(passes) - 1
    def free_after(P, kind, vb):
        if vb < 4: return -2
        lp = max(k for k, p in enumerate(P.ps) if p.vb == vb - 4)
        lastuse = P.first[("QK", 3, lp)] if kind == "K" else P.first[("PV", 1, 1, "h", lp)]
        return min(g for g in P.bars if g >= lastuse - 1)
    def reserve(P):
        r = {}
        for (sg, ph), g in P.phase.items():
            if ph[0] == "P": r[g - 1] = 0 if FREESLOT else 4
        for g in P.bars: r[g] = 8
        return r
    def ops(P, sg):
        ps, pos = P.ps[sg], P.pos
        ops = []
        BIG = 10 ** 6
        for t in sorted(ps.tiles):
            for j in range(4 if t < NT else 1):
                p = j // 2
                r0 = SX if t == NT else SP(p, t) + 4 * (j % 2)
                mend = pos[("QK", t, j, 3, sg)]
                cons = pos.get(("PV", t, p, 0, sg), BIG) if t < NT else P.xbar.get(sg, BIG) - opt("xlead", 4)
                if "q" in ps.flags and t < NT: cons = min(cons, P.phase[(sg, "Pc")])
                dc = cons - 3
                exps = [Op(f"exp{t}{j}{k}", sg, lambda st, r=r0 + k: v_exp(r), "exp", mend + EXP_LAG, dc - 4, Emin=mend) for k in range(4)]
                adds = [Op(f"add{t}{j}{k}", sg, lambda st, r=r0 + k, t=t: v_addl(t, r), "plain", 0, dc - 2, [exps[k]]) for k in range(4)]
                pre = adds
                if t in LM: pre = exps; adds = []
                dst = SX if t == NT else SP(p, t) + 2 * (j % 2)
                c0 = Op(f"cvt{t}{j}0", sg, lambda st, d=dst, r=r0: v_cvt(d, r, r + 1), "plain", 0, dc - 1, pre[0:2])
                c1 = Op(f"cvt{t}{j}1", sg, lambda st, d=dst + 1, r=r0: v_cvt(d, r + 2, r + 3), "plain", 0, dc, pre[2:4] + [c0])
                if j % 2 == 1:
                    prev = [o for o in ops if o.name == f"cvt{t}{j-1}1"][0]
                    c0.preds.append(prev); c1.preds.append(prev)
                grp = exps + adds + [c0, c1]
                if t == NT:
                    xb = P.xbar.get(sg, BIG)
                    w = Op("xw", sg, x_write, "mem", 0, cons, [c1]); grp.append(w)
                    for o in grp: o.hardD = xb
                    fu = P.first[("PV", 0, 0, sg)]
                    lastx = max([k for k in range(sg) if NT in P.ps[k].tiles], default=None)
                    for pp in range(2):
                        E = pos.get(("PV", NT, pp, 4, lastx), -1)
                        o = Op(f"xr{pp}", sg, lambda st, pp=pp: x_read(pp, st), "mem", max(E, xb + 1), fu - LDS_LEAD - 1 + pp, Emin=E)
                        o.bar = xb
                        o.hardD = pos.get(("PV", NT, pp, 0, sg), BIG) - 1; ops.append(o)
                else:
                    for o in grp: o.hardD = cons - 1
                for k, o in enumerate(grp): o.seq = mend * 100 + k
                ops += grp
        kr = P.ready[("K", ps.vb)]; vrdy = P.ready[("V", ps.vb)]
        for j in range(4):
            fu = P.first[("QK", j, sg)]
            aim = fu
            while aim > 0 and P.spine[aim - 1][0] != "QK" and not any(aim == g for (s_, ph), g in P.phase.items() if ph[0] == "P" and g < fu): aim -= 1
            for s in range(4):
                if j >= 2: E = P.last[("QK", j - 2, s, sg)]
                else: E = P.last.get(("QK", j + 2, s, sg - 1), -1)
                o = Op(f"ldk{j}{s}", sg, lambda st, j=j, s=s: lds_k(j, s, st), "mem", max(E, kr), aim - LDS_LEAD - 3 + s - opt("kearly", 4), Emin=E)
                o.bar = kr - 1
                o.hardD = fu - 1; ops.append(o)
        for p in range(2):
            for dt in range(8):
                if ("PV", p, dt, sg) not in P.first: continue
                fu = P.first[("PV", p, dt - dt % 4, sg)]
                if p == 0: E = P.last.get(("PV", 1, dt, sg - 1), -1)
                else: E = P.last[("PV", 0, dt, sg)]
                for h in range(2):
                    o = Op(f"ldv{p}{dt}{h}", sg, lambda st, p=p, dt=dt, h=h: lds_v(p, dt, h, st), "mem", max(E, vrdy),
                           fu - LDS_LEAD - 2 * (3 - dt % 4) - 1 + h, Emin=E)
                    o.bar = vrdy - 1
                    o.hardD = fu - 1; ops.append(o)
        return ops
    def dma_ops(P, sg, sp=None):
        ops = []; prev = None
        E = P.phase[(sg, "Pb")]
        seq = [("m0V",), ("V", 0), ("V", 1), ("V", 2), ("V", 3), ("m0K",), ("K", 0), ("K", 1), ("K", 2), ("K", 3), ("adv",)]
        sp = sp or opt("dmaspread", 5)
        for n, it in enumerate(seq):
            cls = "free"
            if it[0] == "m0V":
                mk = lambda st: I(f"s_add_u32 m0, s{S_M0V}, {((st + 3) % 4) * 16384}", "salu_m0", pre="V")
            elif it[0] == "m0K":
                mk = lambda st: I(f"s_add_u32 m0, s{S_M0K}, {((st + 3) % 4) * 16384}", "salu_m0", pre="K")
            elif it[0] == "adv":
                mk = lambda st: [I(f"s_add_u32 s{S_KOFF}, s{S_KOFF}, 16384", "salu")] + ([I(f"s_bitset0_b32 s{S_KOFF}, 18", "salu")] if st % 4 == 0 else [])
            else:
                mk = lambda st, it=it: dma(it[0], it[1]); cls = "mem"
            o = Op(f"dma{n}", sg, mk, cls, E + sp * n, E + sp * n + 8, [prev] if prev else [])
            o.blk = (it[0][-1], P.ps[sg].vb + 3)
            ops.append(o); prev = o
        return ops

FREESLOT = opt("freeslot", 1)
def spread(lo, hi, avg):
    avg = max(8.0, avg) / 4
    return {g: 4 * (int((g - lo + 1) * avg + 1e-9) - int((g - lo) * avg + 1e-9)) for g in range(lo, hi)}
def opcost(o):
    if o.cls == "exp": return 8
    if o.cls == "mem" and o.name.startswith("dma"): return 8
    return getattr(o, "cost", 4)
def schedule(ops, g0, g1, flush=False, reserve={}, capf=lambda g: 8):
    gaps = {}
    LW = opt("ldswin", 40)
    pend = sorted(ops, key=lambda o: (o.D, o.seq))
    for g in range(g0, g1):
        last = flush and g == g1 - 1
        def ready(o): return o.E <= g and all(p.gap is not None and p.gap + getattr(o, "lag", 0) < g for p in o.preds)
        cand = [o for o in pend if ready(o) and not (o.cls == "mem" and g < o.D - LW)]
        placed = [o for o in cand if o.D <= g]
        cap0 = capf(g)
        cap = cap0 - reserve.get(g, 0)
        maxlds = 1 if cap0 <= 8 else 2
        rest = [o for o in cand if o.D > g]
        isdma = lambda o: o.cls == "mem" and o.name.startswith("dma")
        if FREESLOT and g not in reserve and not any(o.cls == "free" or isdma(o) for o in placed):
            fr = [o for o in rest if o.cls == "free"]
            if fr: placed.append(fr[0]); rest.remove(fr[0])
        used = sum(opcost(o) for o in placed)
        if FREESLOT:
            if any(o.cls == "free" for o in placed) and g not in reserve: used -= 4
            if any(o.cls == "free" for o in placed) or g in reserve: rest = [o for o in rest if not isdma(o)]
            rest = [o for o in rest if o.cls != "free"]
        while used < cap:
            rem = cap - used
            nl = sum(o.cls == "mem" for o in placed)
            fit = [o for o in rest if opcost(o) <= rem and not (nl >= maxlds and o.cls == "mem")]
            if not fit: break
            o = fit[0]
            if rem == 8 and opcost(o) == 4:
                second = [x for x in fit[1:] if opcost(x) == 4 and not (x.cls == "mem" and o.cls == "mem" and nl + 1 >= maxlds)]
                big = [x for x in fit if opcost(x) == 8]
                if not second and big and o.D - g > 2: o = big[0]
            placed.append(o); rest.remove(o); used += opcost(o)
        order = {"free": 0, "mem": 1, "exp": 2, "plain": 3, "low": 3}
        placed.sort(key=lambda o: order[o.cls])
        for o in placed:
            o.gap = g; pend.remove(o)
        again = True
        while again:
            again = False
            need = set()
            def mark(o):
                if o.gap is None and id(o) not in need:
                    need.add(id(o))
                    for p in o.preds: mark(p)
            for o in pend:
                if last or getattr(o, "hardD", 10 ** 9) <= g: mark(o)
            for o in sorted(pend, key=lambda o: (o.D, o.seq)):
                if id(o) in need and all(p.gap is not None for p in o.preds):
                    assert (o.Emin <= g and getattr(o, "bar", -9) <= g) or last, f"cannot meet hard deadline {o.name} step {o.step} g {g} Emin {o.Emin}"
                    if getattr(o, "bar", -9) == g: o.post = True
                    o.gap = g; placed.append(o); pend.remove(o); again = True
                    break
        gaps[g] = placed
    return gaps, pend

def regular(n):
    ps = [Pass(FULL, k, "", {"Pb": f"K{k+1},V{k+1}"}) for k in range(n)]
    return Program(ps, ready0=[("K", 0), ("V", 0)])
def build_template():
    NP = 16
    P = regular(NP + 1)
    NBk = P.base[2] - P.base[1]
    allops = []
    for b in range(0, NP): allops += P.ops(b) + P.dma_ops(b)
    one = P.ops(5) + P.dma_ops(5)
    work = sum(opcost(o) for o in one if not (FREESLOT and o.cls == "free")) + sum(v for g, v in P.reserve().items() if P.base[5] <= g < P.base[6])
    caps = {}
    for b in range(NP + 1): caps.update(spread(P.base[b], P.base[b + 1], (work + opt("tslack", 12)) / NBk))
    gaps, pend = schedule(allops, -1, P.base[NP], reserve=P.reserve(), capf=lambda g: caps.get(g, 8))
    def rel(b): return [[(o.step - b, o.name) for o in gaps[P.base[b] + g]] for g in range(NBk)]
    assert rel(NP - 5) == rel(NP - 4) == rel(NP - 3), "schedule not periodic"
    return rel(NP - 4), NBk, [tag[:4] + (tag[4] - 1,) for tag in P.spine[P.base[1]:P.base[2]]], P.phase[(1, "Pb")] - 1 - P.base[1]
TEMPLATE, NB, BM, BAR_POS = build_template()
TWHERE = {name: (d, g) for g, l in enumerate(TEMPLATE) for d, name in l}

def insert_lgkm_waits(L, carry_in=None):
    out = []
    q = [(o, -a) for o, a in (carry_in or [])]
    MD = opt("mergedist", 14)
    for n, i in enumerate(L):
        if i.kind == "wait" and "lgkmcnt(0)" in i.text: q = []
        need = -1
        touched = i.rd | i.wr
        ret = getattr(i, "retire", None)
        for k, (o, _) in enumerate(q):
            if o.wr & touched: need = k
            if ret is not None and ((o.kind == "ldsw" and not getattr(o, "private", False)) or getattr(o, "src", None) in ret): need = k
        if need >= 0:
            grs = {getattr(o, "grp", None) for o, _ in q[:need + 1] if (o.wr & touched) or ret is not None} - {None}
            gr2 = {getattr(o, "grp2", None) for o, _ in q[:need + 1] if (o.wr & touched) or ret is not None} - {None}
            for k, (o, at) in enumerate(q):
                if getattr(o, "grp", None) in grs and ret is None: need = max(need, k)
                if getattr(o, "grp2", None) in gr2 and n - at >= MD: need = max(need, k)
            c = min(14, len(q) - 1 - need)
            out.append(I(f"s_waitcnt lgkmcnt({c})", "wait"))
            q = q[len(q) - c:] if c else []
        out.append(i)
        if i.kind in ("lds", "ldsw"): q.append((i, n))
    return out, [(o, len(L) - at) for o, at in q]

def hoist_waits(L):
    if not FREESLOT: return L
    out = []
    for k, i in enumerate(L):
        if i.kind == "wait" and k + 1 < len(L) and L[k + 1].kind in ("mfma", "barrier") and not getattr(i, "fixed", False):
            cnt = {x.split("(")[0]: int(x.split("(")[1][:-1]) for x in i.text.split()[1:]}
            j = len(out); ok = True
            while j > 0 and out[j - 1].kind != "mfma":
                p = out[j - 1]
                if p.kind in ("label", "barrier", "wait", "smem", "dma", "salu_m0") or len(out) - j > 6: ok = False; break
                if p.kind in ("lds", "ldsw") and "lgkmcnt" in cnt: cnt["lgkmcnt"] -= 1
                if p.kind == "vmem" and "vmcnt" in cnt: cnt["vmcnt"] -= 1
                j -= 1
            if ok and j > 0 and min(cnt.values()) >= 0 and not (getattr(i, "sat", False)):
                out.insert(j, I("s_waitcnt " + " ".join(f"{a}({cnt[a]})" for a in sorted(cnt, reverse=True)), "wait")); continue
        out.append(i)
    return out

def merge_waits(L):
    out = []
    for i in L:
        if i.kind == "wait" and out and out[-1].kind == "wait":
            a, b = out[-1].text.split()[1:], i.text.split()[1:]
            ka = {x.split("(")[0]: int(x.split("(")[1][:-1]) for x in a}
            for x in b:
                k, v = x.split("(")[0], int(x.split("(")[1][:-1]); ka[k] = min(v, ka.get(k, 99))
            out[-1] = I("s_waitcnt " + " ".join(f"{k}({ka[k]})" for k in sorted(ka, reverse=True)), "wait")
        else: out.append(i)
    return out

def insert_vm_waits(L, carry_in=None):
    out = []
    q = list(carry_in or [])
    issued = {}
    for i in L:
        if i.kind == "dma": issued[i.tag] = issued.get(i.tag, 0) + 1
        if carry_in is None and getattr(i, "needs", None) is not None:
            for tg in i.needs: assert issued.get(tg, 0) == 4, f"{tg} not issued before its barrier"
        if i.kind == "wait" and "vmcnt(" in i.text:
            n = int(i.text.split("vmcnt(")[1].split(")")[0]); q = q[len(q) - n:] if n < len(q) else q
            if n == 0: q = []
        need = -1
        touched = i.rd | i.wr
        for k, o in enumerate(q):
            if getattr(o, "isload", False) and (o.wr & touched): need = k
            nd = getattr(i, "needs", None)
            if nd is not None and o.kind == "dma" and (nd == "all" or o.tag in nd): need = k
        if need >= 0:
            n = min(62, len(q) - 1 - need)
            out.append(I(f"s_waitcnt vmcnt({n})", "wait"))
            q = q[len(q) - n:] if n else []
        out.append(i)
        if i.kind in ("dma", "vmem"): q.append(i)
    return out, q

def hazard_need(p, c):
    need = 0
    if p.kind == "mfma":
        if c.kind in ("valu", "trans", "lds", "dma", "vmem", "ldsw") and (p.wr & (c.rd | c.wr)): need = 8
        if c.kind == "mfma":
            cacc = getattr(c, "cacc", set())
            if p.wr & (c.rd - cacc): need = 8
            elif (p.wr & cacc) and p.wr != cacc: need = 6
        if c.kind in ("valu", "trans") and (c.wr & getattr(p, "cacc", set())): need = max(need, 3)
    elif p.kind in ("valu", "trans"):
        if c.kind == "mfma" and (p.wr & c.rd): need = 2
        if p.kind == "trans" and c.kind in ("valu", "vmem", "ldsw") and (p.wr & c.rd): need = 1
        if "permlane" in c.text and (p.wr & (c.rd | c.wr)): need = 2
        if "readfirstlane" in c.text and (p.wr & c.rd): need = 1
        if any(k == "s" for k, _ in (p.wr & c.rd)):
            need = max(need, 5 if c.kind in ("vmem", "dma") else 2 if c.kind in ("valu", "trans") else 0)
    elif p.kind == "salu_m0":
        if c.kind == "dma": need = 1
    elif p.kind in ("vmem", "ldsw") and ("store" in p.text or "write" in p.text):
        if c.kind in ("valu", "trans") and (c.wr & p.rd): need = 2
    return need
def ws(i): return getattr(i, "ws", 1)
def fix_hazards(L, ctx=(), report=None):
    out = list(ctx); n0 = len(out)
    for c in L:
        if c.kind != "label":
            extra = 0; dist = 0
            for p in reversed(out):
                if p.kind == "label": continue
                e = hazard_need(p, c) - dist
                if e > extra: extra = e; who = p
                dist += ws(p)
                if dist >= 10: break
            if extra > 0:
                if report: print(f"HAZARD[{report}]: {who.text} -> {c.text} short by {extra}")
                n = I(f"s_nop {extra-1}", "nop"); n.ws = extra; out.append(n)
        out.append(c)
    return out[n0:]

TS = opt("ts", 0)
DBG = opt("dbg", 0)
def emit_ts(a):
    if not TS: return
    a.raw("s_memtime s[50:51]", "smem")
    a.raw("s_memrealtime s[52:53]", "smem")
    a.raw("s_waitcnt lgkmcnt(0)", "wait")
    a.salu("s_lshl_b64 exec, 1, s48")
    a.raw(f"v_mov_b32 v{VTS0}, s50", "valu", (), R("v", VTS0), noput=True)
    a.raw(f"v_mov_b32 v{VTS1}, s52", "valu", (), R("v", VTS1), noput=True)
    a.salu("s_mov_b64 exec, -1")
    a.salu("s_add_u32 s48, s48, 1")
def emit_ts_store(a):
    if not TS: return
    emit_ts(a)
    a.raw("s_waitcnt vmcnt(0)", "wait")
    emit_ts(a)
    a.salu(f"s_lshl_b32 s49, s2, 2")
    a.salu(f"s_add_u32 s49, s49, s{S_W}")
    if DBG:
        a.salu(f"s_cmp_eq_u32 s49, {opt('dbgwave', 0)}")
        a.salu(f"s_cselect_b32 s49, 0, 16")
    a.salu(f"s_lshl_b32 s49, s49, 9")
    if DBG:
        a.valu(f"v_readfirstlane_b32 s50, v{VTS1}", R("v", VTS1), R("s", 50))
        a.nop(2)
        a.valu(f"v_subrev_u32 v{VTS0}, s50, v{VTS1}", R("v", VTS1), R("v", VTS0))
    a.valu(f"v_lshlrev_b32 v{VTS2}, 2, v{VLANE}", R("v", VLANE), R("v", VTS2))
    a.nop(2)
    a.raw(f"buffer_store_dword v{VTS0}, v{VTS2}, s[44:47], s49 offen", "vmem", R("v", VTS0) | R("v", VTS2))
    a.raw(f"buffer_store_dword v{VTS1}, v{VTS2}, s[44:47], s49 offen offset:256", "vmem", R("v", VTS1) | R("v", VTS2))
    a.raw("s_waitcnt vmcnt(0)", "wait")

def scale_tile_pk(a, t, tmp0, hook=None, n=16):
    for r in range(n):
        q = VQ(t, 0) + r
        tmp = tmp0 + 2 * (r % 4)
        a.V(f"v_lshlrev_b32 {vr(tmp)}, 16, {vr(q)}", [q], tmp)
        a.V(f"v_and_b32 {vr(tmp+1)}, 0xffff0000, {vr(q)}", [q], tmp + 1)
        a.valu(f"v_pk_mul_f32 {vr(tmp,2)}, {vr(tmp,2)}, s[{S_C}:{S_C+1}]", R("v", tmp, 2), R("v", tmp, 2))
        a.V(f"v_cvt_pk_bf16_f32 {vr(q)}, {vr(tmp)}, {vr(tmp+1)}", [tmp, tmp + 1], q)
        if hook: hook(r)

def chk_mfma(pk):
    return I(f"v_mfma_f32_16x16x32_bf16 {vr(VCHK,4)}, {vr(VZ,4)}, {vr(pk,4)}, {vr(VCHK,4)}", "mfma",
             R("v", VZ, 4) | R("v", pk, 4) | R("v", VCHK, 4), R("v", VCHK, 4), cacc=R("v", VCHK, 4))
VMN, VMX = 239, 240
def range_check(l):
    return [Vi(f"v_min_f32 {vr(VMN)}, {vr(VMN)}, {vr(l)}", [VMN, l], VMN), Vi(f"v_max_f32 {vr(VMX)}, {vr(VMX)}, {vr(l)}", [VMX, l], VMX)]

class Chain:
    def __init__(c, step, E, rate):
        c.step, c.E, c.rate, c.k, c.ops = step, E, rate, 0, []
    def add(c, ins, preds=(), E=None, cls="low"):
        e = max(c.E, E if E is not None else c.E)
        d = max(e, c.E + int(c.k / c.rate)) if c.rate else 10 ** 5 + Op.count
        o = Op(f"ep{len(c.ops)}", c.step, (lambda st, ins=ins: ins), cls, e, d, [p for p in preds if p is not None])
        c.k += 1; c.ops.append(o); return o

def lreduce_ops(c, l, tmp, preds):
    prev = preds
    for sw in ("v_permlane32_swap_b32", "v_permlane16_swap_b32"):
        m = c.add(Vi(f"v_mov_b32 {vr(tmp)}, {vr(l)}", [l], tmp), prev)
        s_ = c.add(I(f"{sw} {vr(l)}, {vr(tmp)}", "valu", RV(l, tmp), RV(l, tmp)), [m])
        prev = [c.add(Vi(f"v_add_f32 {vr(l)}, {vr(l)}, {vr(tmp)}", [l, tmp], l), [s_])]
    return prev[0]

def half_chunk(c, acc, tmp, dst, rinv, rc, preds, pk_ok=False):
    rd = [c.add(I(f"v_accvgpr_read_b32 {vr(tmp+r)}, {ar(acc+r)}", "valu", R("a", acc + r), R("v", tmp + r)), preds) for r in range(4)]
    if pk_ok:
        mul = []
        for r in range(0, 4, 2):
            o = c.add(I(f"v_pk_mul_f32 {vr(tmp+r,2)}, {vr(tmp+r,2)}, {vr(rinv,2)} op_sel_hi:[1,0]", "valu",
                        R("v", tmp + r, 2) | R("v", rinv), R("v", tmp + r, 2)), [rd[r], rd[r + 1], rc])
            mul += [o, o]
    else:
        mul = [c.add(Vi(f"v_mul_f32 {vr(tmp+r)}, {vr(rinv)}, {vr(tmp+r)}", [rinv, tmp + r], tmp + r), [rd[r], rc]) for r in range(4)]
    c0 = c.add(v_cvt(dst, tmp, tmp + 1), mul[0:2])
    return c.add(v_cvt(dst + 1, tmp + 2, tmp + 3), mul[2:4] + [c0])
def stage_write(c, t, dt, src, preds):
    return c.add(I(f"ds_write_b64 {vr(VST(dt % 4))}, {vr(src,2)} offset:{32*(dt//4)}", "ldsw", RV(VST(dt % 4), src, src + 1), private=True), preds)
def stf(t): return STFS[opt("stfl", "sc1")] if str(t) in opt("stflt", "4") else STF
def stage_out(c, t, base, preds, lag, wait=False):
    rds = [c.add(I(f"ds_read_b128 {vr(base+4*i,4)}, {vr(VSR)} offset:{1088*i}", "lds", RV(VSR), R("v", base + 4 * i, 4), grp=("st", i // 2)), preds) for i in range(4)]
    if wait: c.add(I("s_waitcnt lgkmcnt(0)", "wait"), rds)
    for i in range(4):
        st = c.add(I(f"buffer_store_dwordx4 {vr(base+4*i,4)}, {vr(VSO)}, s[{S_O}:{S_O+3}], s{S_ROW(t)} offen offset:{1024*i}{stf(t)}", "vmem",
                     R("v", base + 4 * i, 4) | R("v", VSO)), rds)
        ck = c.add(chk_mfma(base + 4 * i), rds); ck.cost = 8
        st.lag = ck.lag = lag
    return rds
def store_chunk(c, buf, preds, srow, vst):
    sw = [c.add(I(f"v_permlane16_swap_b32 {vr(buf+k)}, {vr(buf+2+k)}", "valu", RV(buf + k, buf + 2 + k), RV(buf + k, buf + 2 + k)), preds) for k in range(2)]
    st = c.add(I(f"buffer_store_dwordx4 {vr(buf,4)}, {vr(vst)}, s[{S_O}:{S_O+3}], s{srow} offen{stf(srow - S_ROW(0))}", "vmem",
                 R("v", buf, 4) | R("v", vst)), sw)
    ck = c.add(chk_mfma(buf), sw); ck.cost = 8
    return [st, ck]

LO_THR = f32(2.0 ** -24)
HI_THR = f32(2.0 ** 64)

def icost(i):
    return {"label": 0, "mfma": 8, "trans": 8, "dma": 11, "barrier": 30, "nop": 4 * getattr(i, "ws", 1)}.get(i.kind, 4)

def isize(i):
    if i.kind == "label": return 0
    op = i.text.split()[0]
    if op in ("v_exp_f32", "v_add_f32", "v_mul_f32", "v_mov_b32", "v_rcp_f32", "v_lshlrev_b32", "v_and_b32", "v_min_f32", "v_max_f32") or op.startswith(("v_permlane", "v_cmp")):
        return 8 if "0x" in i.text else 4
    if op.startswith("s_"):
        if op.startswith(("s_load", "s_mem")): return 8
        last = i.text.split()[-1]
        return 8 if op in ("s_mov_b32", "s_add_u32") and last.isdigit() and int(last) > 64 else 4
    return 8
WALK = opt("walk", "")
def add_pads(regions):
    hop = opt("hop", 128)
    spots = []
    for L in regions:
        acc = hop
        for k, i in enumerate(L):
            acc += isize(i)
            nxt = L[k + 1] if k + 1 < len(L) else None
            good = i.kind == "mfma" and nxt is not None and nxt.kind in ("valu", "trans", "lds", "mfma")
            okay = i.kind in ("valu", "mfma", "lds") and not getattr(i, "noput", False) and "vcc" not in i.text
            if (acc >= hop - 24 and good) or (acc >= hop and okay):
                spots.append(id(i)); acc = 4
    n = len(spots); q = (n + 3) // 4
    idx = {x: k for k, x in enumerate(spots)}
    out = []
    for L in regions:
        M = []
        for i in L:
            M.append(i)
            if id(i) in idx:
                k = idx[id(i)]
                M.append(I(f"L_w{k}:", "label"))
                M.append(I(f"s_cbranch_execz {'L_back' if (k % q == q - 1 or k == n - 1) else 'L_w%d' % (k + 1)}", "salu"))
        out.append(M)
    return out, q
def build():
    P = Program(PASSES, ready0=[("K", 0)])
    N = len(PASSES)
    def emit_mfma(a, tag):
        k, t, x, y, sg = tag
        a.L.append(mk_mfma(k, t, x, y, first=(x == 0 and sg == P.firstpass[t])))
    def emit_op(a, o):
        r = o.mk(PASSES[o.step].vb % 4)
        for i in (r if isinstance(r, list) else [r]):
            if i.kind == "dma" and getattr(i, "tag", None) is None: i.tag = o.blk
            a.L.append(i)
    allops = {}
    for sg in range(N):
        allops[sg] = P.ops(sg)
        if RF <= sg <= RL and PASSES[sg].vb + 3 < S:
            allops[sg] += P.dma_ops(sg, None if sg < RL else opt("dmasp2", 3))
    free1, free2 = [], []
    for sg in range(N):
        for o in allops[sg]:
            d, g = TWHERE[o.name]
            x = sg - d
            if RF <= x < RL and RF - 1 <= sg <= RL: o.gap = P.base[x] + g
            elif sg < RF or x < RF: free1.append(o)
            else: free2.append(o)
    assert all(TWHERE[f"dma{n}"][0] == 0 for n in range(11))
    END1 = P.base[RF]
    retire = {g: set() for g in P.bars}
    for vb in range(4, S):
        for k in "KV": retire[P.free_after(k, vb)].add((k, vb % 4))
    a = Asm()
    T0, T1, T2, T3, T4, T5 = [VT + 8 + k for k in range(6)]
    a.salu("s_cmp_ge_u32 s2, 256")
    a.salu("s_cbranch_scc1 L_end")
    a.raw("s_load_dwordx8 s[36:43], s[0:1], 0", "smem")
    ns = opt("cpfs", 2)
    a.salu("s_getpc_b64 s[62:63]")
    a.label("L_pc")
    a.salu(f"s_bfe_u32 s32, s2, {(ns << 16) | 3}")
    a.salu(f"s_lshl_b32 s32, s32, 7")
    a.V(f"v_lshrrev_b32 {vr(VT+15)}, {ns - 1}, v0", [0], VT + 15)
    a.V(f"v_lshlrev_b32 {vr(VT+15)}, {7 + ns}, {vr(VT+15)}", [VT + 15], VT + 15)
    a.V(f"v_add_u32 {vr(VT+15)}, s32, {vr(VT+15)}", [VT + 15], VT + 15)
    a.V(f"v_min_u32 {vr(VT+15)}, L_end-L_pc, {vr(VT+15)}", [VT + 15], VT + 15)
    a.raw(f"global_load_dword {vr(VT+16)}, {vr(VT+15)}, s[62:63]", "vmem", RV(VT + 15))
    if TS:
        a.raw(f"s_load_dwordx2 s[44:45], s[0:1], {32 if DBG else 40}", "smem")
        a.salu("s_mov_b32 s48, 0")
        a.valu(f"v_mov_b32 v{VTS0}, 0", (), R("v", VTS0))
        a.valu(f"v_mov_b32 v{VTS1}, 0", (), R("v", VTS1))
        emit_ts(a)
        a.salu("s_and_b32 s45, s45, 0xffff")
        a.salu(f"s_mov_b32 s46, {256 if DBG else 0x80000}")
        a.salu("s_mov_b32 s47, 0x00020000")
    V = a.V
    V(f"v_and_b32 {vr(VLANE)}, 63, v0", [0], VLANE)
    V(f"v_lshrrev_b32 {vr(T0)}, 6, v0", [0], T0)
    V(f"v_and_b32 {vr(T1)}, 15, v0", [0], T1)
    a.valu(f"v_readfirstlane_b32 s{S_W}, {vr(T0)}", R("v", T0), R("s", S_W))
    V(f"v_lshrrev_b32 {vr(T2)}, 4, {vr(VLANE)}", [VLANE], T2)
    V(f"v_lshrrev_b32 {vr(T3)}, 3, {vr(VLANE)}", [VLANE], T3)
    V(f"v_and_b32 {vr(T4)}, 7, {vr(VLANE)}", [VLANE], T4)
    a.salu("s_and_b32 s32, s2, 7")
    a.salu("s_lshr_b32 s33, s2, 4")
    a.salu("s_lshl_b32 s33, s33, 3")
    a.salu("s_add_u32 s32, s32, s33")
    a.salu("s_lshr_b32 s33, s2, 3")
    a.salu("s_and_b32 s33, s33, 1")
    a.salu("s_lshl_b32 s34, s32, 1")
    a.salu("s_add_u32 s34, s34, s33")
    a.salu("s_mul_i32 s35, s34, 86016")
    a.salu("s_lshl_b32 s33, s32, 18")
    a.salu(f"s_mul_i32 s{S_ROW(0)}, s{S_W}, 20480")
    for t in range(1, NT): a.salu(f"s_add_u32 s{S_ROW(t)}, s{S_ROW(0)}, {t*4096}")
    a.salu(f"s_lshl_b32 s{S_ROW(NT)}, s{S_W}, 6")
    a.salu(f"s_add_u32 s{S_ROW(NT)}, s{S_ROW(NT)}, 81920")
    a.salu(f"s_and_b32 s{S_PIECE}, s{S_W}, 1")
    a.salu(f"s_lshl_b32 s{S_PIECE}, s{S_PIECE}, 13")
    a.salu(f"s_lshr_b32 s34, s{S_W}, 1")
    a.salu("s_lshl_b32 s34, s34, 7")
    a.salu(f"s_add_u32 s{S_PIECE}, s{S_PIECE}, s34")
    a.salu(f"s_lshl_b32 s{S_M0K}, s{S_W}, 12")
    a.salu(f"s_add_u32 s{S_M0V}, s{S_M0K}, {LDS_V}")
    for d, size in ((S_Q, 86016), (S_K, 262144), (S_V, 262144), (S_O, 86016)):
        a.salu(f"s_mov_b32 s{d+2}, {size}")
        a.salu(f"s_mov_b32 s{d+3}, 0x00020000")
    V(f"v_lshlrev_b32 {vr(VTMP)}, 8, {vr(T1)}", [T1], VTMP)
    V(f"v_lshl_add_u32 {vr(VQOFF)}, {vr(T2)}, 4, {vr(VTMP)}", [T2, VTMP], VQOFF)
    V(f"v_lshrrev_b32 {vr(T5)}, 1, {vr(T2)}", [T2], T5)
    V(f"v_xor_b32 {vr(T0)}, {vr(T2)}, {vr(T5)}", [T2, T5], T0)
    for par in range(2):
        if par == 1: V(f"v_xor_b32 {vr(T0)}, 5, {vr(T0)}", [T0], T0)
        V(f"v_xor_b32 {vr(VDK(par))}, {vr(T4)}, {vr(T0)}", [T4, T0], VDK(par))
        V(f"v_lshlrev_b32 {vr(VDK(par))}, 4, {vr(VDK(par))}", [VDK(par)], VDK(par))
        V(f"v_lshl_add_u32 {vr(VDK(par))}, {vr(T3)}, 8, {vr(VDK(par))}", [T3, VDK(par)], VDK(par))
        V(f"v_add_u32 {vr(VDK(par))}, s{S_PIECE}, {vr(VDK(par))}", [VDK(par)], VDK(par))
    V(f"v_add_u32 {vr(VDK(2))}, 2048, {vr(VDK(0))}", [VDK(0)], VDK(2))
    V(f"v_add_u32 {vr(VDK(3))}, 3072, {vr(VDK(1))}", [VDK(1)], VDK(3))
    V(f"v_add_u32 {vr(VDK(1))}, 1024, {vr(VDK(1))}", [VDK(1)], VDK(1))
    a.raw("s_waitcnt lgkmcnt(0)", "wait")
    def srd(d, lo, off):
        a.salu(f"s_add_u32 s{d}, s{lo}, s{off}")
        a.salu(f"s_addc_u32 s{d+1}, s{lo+1}, 0")
        a.salu(f"s_and_b32 s{d+1}, s{d+1}, 0xffff")
    srd(S_Q, 36, 35)
    srd(S_K, 38, 33)
    lastvb = PASSES[RF - 1].vb + 3
    order = list(ORDER)
    for vb in range(lastvb + 1):
        for k in "KV":
            if f"{k}{vb}" not in order: order.append(f"{k}{vb}")
    assert len(set(order)) == len(order) == 6 + 2 * (lastvb + 1)
    allloads = []; after = []; svc = []
    for item in order:
        k = item[0]
        if item == "QX": allloads.append(q_load(NT, 0)); after.append(-2); svc.append(opt("svcq", 0.155)); continue
        n = int(item[1:])
        if k == "Q":
            for s in range(4): allloads.append(q_load(n, s)); after.append(-2); svc.append(opt("svcq", 0.155))
            continue
        base = S_M0K if k == "K" else S_M0V
        for j in range(4):
            d = dma(k, j, tag=(k, n))
            allloads.append([I(f"s_mov_b32 s{S_KOFF}, {(n % 16)*16384}", "salu"), I(f"s_add_u32 m0, s{base}, {(n % 4)*16384}", "salu_m0"), d] if j == 0 else d)
            after.append(P.free_after(k, n)); svc.append(opt("svckv", 0.085))
    def core(x): return x[-1] if isinstance(x, list) else x
    a.raw("s_nop 0", "nop", startloads=True)
    srd(S_V, 40, 33)
    srd(S_O, 42, 35)
    V(f"v_bfe_u32 {vr(T0)}, {vr(VLANE)}, 1, 2", [VLANE], T0)
    V(f"v_and_b32 {vr(T5)}, 1, {vr(T2)}", [T2], T5)
    V(f"v_xor_b32 {vr(T0)}, {vr(T0)}, {vr(T5)}", [T0, T5], T0)
    V(f"v_lshlrev_b32 {vr(T0)}, 6, {vr(T0)}", [T0], T0)
    V(f"v_lshrrev_b32 {vr(T5)}, 5, {vr(VLANE)}", [VLANE], T5)
    V(f"v_lshl_add_u32 {vr(T0)}, {vr(T5)}, 5, {vr(T0)}", [T5, T0], T0)
    V(f"v_and_b32 {vr(T5)}, 1, {vr(VLANE)}", [VLANE], T5)
    V(f"v_lshl_add_u32 {vr(T0)}, {vr(T5)}, 4, {vr(T0)}", [T5, T0], T0)
    V(f"v_and_b32 {vr(T5)}, 3, {vr(T3)}", [T3], T5)
    V(f"v_lshl_add_u32 {vr(T0)}, {vr(T5)}, 8, {vr(T0)}", [T5, T0], T0)
    V(f"v_add_u32 {vr(VDV(0))}, s{S_M0K}, {vr(T0)}", [T0], VDV(0))
    V(f"v_xor_b32 {vr(VDV(1))}, 128, {vr(VDV(0))}", [VDV(0)], VDV(1))
    a.raw("s_nop 0", "nop", vok=True)
    a.salu(f"s_mov_b32 s{S_C}, {f32(SCALE)}")
    a.salu(f"s_mov_b32 s{S_C+1}, {f32(SCALE)}")
    a.salu(f"s_mov_b32 s{S_LO}, {LO_THR}")
    a.salu(f"s_mov_b32 s{S_HI}, {HI_THR}")
    V(f"v_lshrrev_b32 {vr(T0)}, 1, {vr(T2)}", [T2], T0)
    V(f"v_lshl_add_u32 {vr(VTMP)}, {vr(T0)}, 4, {vr(VTMP)}", [T0, VTMP], VTMP)
    V(f"v_and_b32 {vr(T0)}, 1, {vr(T2)}", [T2], T0)
    V(f"v_lshl_add_u32 {vr(VTMP)}, {vr(T0)}, 5, {vr(VTMP)}", [T0, VTMP], VTMP)
    a.salu(f"s_lshl_b32 s32, s{S_W}, 6")
    V(f"v_add_u32 {vr(VSTX)}, s32, {vr(VTMP)}", [VTMP], VSTX)
    for c in range(1, 4): V(f"v_xor_b32 {vr(VSD(c))}, {64*c}, {vr(VSTX)}", [VSTX], VSD(c))
    a.salu(f"s_mul_i32 s33, s{S_W}, 4352")
    a.salu(f"s_add_u32 s33, s33, {LDS_ST}")
    V(f"v_mul_u32_u24 {vr(T0)}, 272, {vr(T1)}", [T1], T0)
    V(f"v_lshl_add_u32 {vr(T0)}, {vr(T2)}, 3, {vr(T0)}", [T2, T0], T0)
    for c in range(4):
        a.salu(f"s_xor_b32 s34, s32, {64*c}")
        a.salu("s_add_u32 s34, s34, s33")
        V(f"v_add_u32 {vr(VST(c))}, s34, {vr(T0)}", [T0], VST(c))
    V(f"v_mul_u32_u24 {vr(T0)}, 272, {vr(T2)}", [T2], T0)
    V(f"v_lshl_add_u32 {vr(T0)}, {vr(T1)}, 4, {vr(T0)}", [T1, T0], T0)
    V(f"v_add_u32 {vr(VSR)}, s33, {vr(T0)}", [T0], VSR)
    V(f"v_lshlrev_b32 {vr(VSO)}, 4, {vr(VLANE)}", [VLANE], VSO)
    V(f"v_lshrrev_b32 {vr(T0)}, 1, {vr(T1)}", [T1], T0)
    V(f"v_lshrrev_b32 {vr(T5)}, 1, {vr(T0)}", [T0], T5)
    V(f"v_lshrrev_b32 {vr(T3)}, 2, {vr(T0)}", [T0], T3)
    V(f"v_xor_b32 {vr(T5)}, {vr(T5)}, {vr(T3)}", [T5, T3], T5)
    V(f"v_and_b32 {vr(T5)}, 1, {vr(T5)}", [T5], T5)
    V(f"v_xor_b32 {vr(T0)}, {vr(T0)}, {vr(T5)}", [T0, T5], T0)
    V(f"v_xor_b32 {vr(T0)}, {vr(T0)}, {vr(T2)}", [T0, T2], T0)
    for j in range(4):
        a.salu(f"s_xor_b32 s{32+j}, s{S_W}, {j}")
        a.salu(f"s_lshl_b32 s{32+j}, s{32+j}, 11")
    for p in range(2):
        if p == 1: V(f"v_xor_b32 {vr(T0)}, 4, {vr(T0)}", [T0], T0)
        V(f"v_lshlrev_b32 {vr(T5)}, 4, {vr(T0)}", [T0], T5)
        V(f"v_lshl_add_u32 {vr(T5)}, {vr(T1)}, 7, {vr(T5)}", [T1, T5], T5)
        for j in range(4): V(f"v_add_u32 {vr(VKA(j,p))}, s{32+j}, {vr(T5)}", [T5], VKA(j, p))
    for j in range(4): a.salu(f"s_lshl_b32 s{32+j}, s{32+j}, 1")
    V(f"v_lshrrev_b32 {vr(T0)}, 2, {vr(T1)}", [T1], T0)
    V(f"v_lshl_add_u32 {vr(T0)}, {vr(T2)}, 3, {vr(T0)}", [T2, T0], T0)
    V(f"v_lshlrev_b32 {vr(T0)}, 7, {vr(T0)}", [T0], T0)
    V(f"v_and_b32 {vr(T5)}, 3, {vr(T1)}", [T1], T5)
    V(f"v_lshl_add_u32 {vr(T0)}, {vr(T5)}, 3, {vr(T0)}", [T5, T0], T0)
    V(f"v_add_u32 {vr(T0)}, {LDS_V}, {vr(T0)}", [T0], T0)
    V(f"v_lshrrev_b32 {vr(T5)}, 3, {vr(T1)}", [T1], T5)
    V(f"v_lshl_add_u32 {vr(T5)}, {vr(T2)}, 1, {vr(T5)}", [T2, T5], T5)
    V(f"v_xor_b32 {vr(T5)}, s{S_W}, {vr(T5)}", [T5], T5)
    V(f"v_and_b32 {vr(T5)}, 3, {vr(T5)}", [T5], T5)
    for c in range(4):
        V(f"v_xor_b32 {vr(T3)}, {c}, {vr(T5)}", [T5], T3)
        V(f"v_lshl_add_u32 {vr(T3)}, {vr(T3)}, 5, {vr(T0)}", [T3, T0], T3)
        for j in range(4): V(f"v_add_u32 {vr(VVA(j,c))}, s{32+j}, {vr(T3)}", [T3], VVA(j, c))
    a.salu(f"s_lshr_b32 s32, s{S_W}, 1")
    a.salu("s_lshl_b32 s32, s32, 11")
    a.salu(f"s_and_b32 s33, s{S_W}, 1")
    a.salu("s_lshl_b32 s33, s33, 9")
    a.salu("s_add_u32 s32, s32, s33")
    a.salu(f"s_add_u32 s32, s32, {LDS_X}")
    a.salu("s_xor_b32 s33, s32, 2048")
    V(f"v_lshlrev_b32 {vr(T0)}, 3, {vr(VLANE)}", [VLANE], T0)
    V(f"v_add_u32 {vr(VEX(0))}, s32, {vr(T0)}", [T0], VEX(0))
    V(f"v_add_u32 {vr(VEX(1))}, s33, {vr(T0)}", [T0], VEX(1))
    V(f"v_lshlrev_b32 {vr(VXQ)}, 4, {vr(VLANE)}", [VLANE], VXQ)
    V(f"v_add_u32 {vr(VXQ)}, {LDS_XQ}, {vr(VXQ)}", [VXQ], VXQ)
    a.salu(f"s_lshl_b32 s32, s{S_W}, 10")
    V(f"v_add_u32 {vr(VXQ+1)}, s32, {vr(VXQ)}", [VXQ], VXQ + 1)
    for r in list(range(VZ, VZ + 4)) + list(range(VCHK, VCHK + 4)) + [VL(t) for t in range(NT + 1)]:
        V(f"v_mov_b32 {vr(r)}, 0", [], r)
    if opt("cpf2", 1):
        a.salu(f"s_lshl_b32 s32, s{S_W}, 12")
        a.salu(f"s_add_u32 s32, s32, L_r2-L_pc")
        V(f"v_lshlrev_b32 {vr(VT+13)}, 7, {vr(VLANE)}", [VLANE], VT + 13)
        V(f"v_add_u32 {vr(VT+13)}, s32, {vr(VT+13)}", [VT + 13], VT + 13)
        V(f"v_min_u32 {vr(VT+17)}, L_end-L_pc, {vr(VT+13)}", [VT + 13], VT + 17)
    for r in range(4): V(f"v_mov_b32 {vr(VONE+r)}, 0x3f803f80", [], VONE + r)
    V(f"v_mov_b32 {vr(VMN)}, 1.0", [], VMN)
    V(f"v_mov_b32 {vr(VMX)}, 1.0", [], VMX)
    a.raw("s_nop 0", "nop", setupdone=True)
    if WALK and opt("walkpos", "k0") == "pre": a.raw("WALK", "label")
    emit_ts(a)
    for item in order:
        if item == "QX":
            scale_tile_pk(a, NT, SP(1, 0), n=4)
            a.raw(f"ds_write_b128 {vr(VXQ+1)}, {vr(VQ(NT,0),4)}", "ldsw", RV(VXQ + 1) | R("v", VQ(NT, 0), 4))
            a.salu(f"s_mov_b32 s{S_ROW(NT)}, 81920")
        elif item[0] == "Q" and int(item[1]) in PASSES[0].tiles:
            scale_tile_pk(a, int(item[1]), SP(0, int(item[1])))
    if WALK and opt("walkpos", "k0") == "k0": a.raw("WALK", "label")
    emit_ts(a)
    a.raw("s_barrier", "barrier", needs={("K", 0)}, retire=set(), bargap=-2, firstbar=True)
    emit_ts(a)
    xq = [Op(f"xq{s}", 0, lambda st, s=s: I(f"ds_read_b128 {vr(VQ(NT,s),4)}, {vr(VXQ)} offset:{1024*s}", "lds", RV(VXQ), R("v", VQ(NT, s), 4), grp=("xq",)),
             "mem", -1, -1 + s // 2) for s in range(4)]
    RES = P.reserve()
    def passcap(ops, g0, g1, extra=0.0):
        caps = {}
        for sg in range(N):
            lo, hi = P.base[sg], P.base[sg + 1]
            n = len(PASSES[sg].tiles) - (0.75 if NT in PASSES[sg].tiles else 0)
            nl = len([t for t in PASSES[sg].tiles if t in LM])
            work = n * 224 - nl * 64 + 51 * 4 + 24 + extra
            caps.update(spread(lo, hi, work / (hi - lo) * opt("capscale", 1.0)))
        return lambda g: caps.get(g, 8)
    gaps1, pend = schedule(free1 + xq, -1, END1, flush=True, reserve=RES, capf=passcap(free1, -1, END1))
    assert not pend
    starts = set(P.base.values())
    def emit_region(x, gaps, g0, g1):
        for g in range(g0, g1):
            if g >= 0 and g < len(P.spine):
                k, t, j, s_, sg = P.spine[g]
                if TS and g in starts and g > 0: emit_ts(x)
                if k == "QK" and j == 0 and s_ == 0 and sg == P.firstpass[t] and sg > 0:
                    scale_tile_pk(x, t, SP(0, t))
                    if TS == 2: emit_ts(x)
                emit_mfma(x, P.spine[g])
            for o in gaps.get(g, []):
                if not getattr(o, "post", False): emit_op(x, o)
            if g in P.bars:
                if TS == 2: emit_ts(x)
                x.raw("s_barrier", "barrier", needs={tg for tg in P.bars[g] if tg[1] < S}, retire=retire[g], bargap=g)
                if TS == 2: emit_ts(x)
            for o in gaps.get(g, []):
                if getattr(o, "post", False): emit_op(x, o)
    emit_region(a, gaps1, -1, END1)
    a.raw("s_nop 0", "nop", forceall=True)
    b0 = PASSES[RF].vb
    a.salu(f"s_mov_b32 s{S_KOFF}, {((b0 + 3) % 16) * 16384}")
    niter = (LE + 1 - b0 + 3) // 4
    a.salu(f"s_mov_b32 s{S_CNT}, {niter}")
    if WALK and opt("walkpos", "k0") == "loop": a.raw("WALK", "label")
    emit_ts(a)
    a.raw("s_waitcnt lgkmcnt(0)", "wait")
    if (b0 - LE - 1) % 4: a.salu(f"s_branch L_blk{b0 % 4}")
    WIN = opt("win", 8); LAT = opt("lat", 0.5); CLK = opt("clk", 1750.0)
    L2 = []; n = 0; started = False; passed = -2; vok = False
    t = 0.3; pipe = 0.0; arr = []; log = []
    def put(lim, timed):
        nonlocal n, t
        while n < min(lim, len(allloads)) and after[n] <= passed and (vok or order_ok(n)):
            room = arr[n - WIN] if n >= WIN else 0.0
            if timed and room > t: break
            t = max(t, room)
            x = allloads[n]; L2.extend(x if isinstance(x, list) else [x])
            arr.append(max(t + LAT, (arr[-1] if arr else 0.0) + svc[n])); n += 1
            t += 12 / CLK
            if timed: break
    def order_ok(k): return not (core(allloads[k]).kind == "dma" and core(allloads[k]).tag[0] == "V")
    for i in a.L:
        if getattr(i, "startloads", False): started = True; WIN += 9; put(opt("npre0", 9), False); WIN -= 9; continue
        if getattr(i, "setupdone", False): WIN += 9; put(opt("npre1", 13), False); WIN -= 9; continue
        if getattr(i, "vok", False): vok = True; continue
        if getattr(i, "forceall", False):
            log.append(f"flush{len(allloads) - n}@{t:.2f}"); put(len(allloads), False); log.append(f"{t:.2f}"); continue
        if started:
            need = -1
            for k, x in enumerate(allloads):
                c = core(x)
                if c.kind == "dma":
                    nd = getattr(i, "needs", None)
                    if nd is not None and c.tag in nd: need = k
                elif c.wr & (i.rd | i.wr): need = k
            if need >= 0:
                put(need + 1, False)
                assert n > need, f"load {need} cannot be issued before {i.text}"
                if arr[need] > t:
                    if arr[need] > t + 0.02: log.append(f"w{need}:{t:.2f}>{arr[need]:.2f}")
                    put(need + opt("wpre", 5) + 1, False)
                    t = max(t, arr[need])
            if i.kind == "mfma":
                t = max(t, pipe); pipe = t + 16 / CLK
            t += icost(i) / CLK
        L2.append(i)
        passed = max(passed, getattr(i, "bargap", -2))
        if started and i.kind in ("mfma", "valu") and not getattr(i, "noput", False): put(len(allloads), True)
    assert n == len(allloads)
    print("time model:", " ".join(log))
    r1, _ = insert_lgkm_waits(L2)
    r1, vq1 = insert_vm_waits(r1)
    r1 = fix_hazards(hoist_waits(merge_waits(r1)))

    PF = regular(3)
    PROTO = {o.name: o for o in PF.ops(1) + PF.dma_ops(1)}
    blocks = []
    for st in range(4):
        b = Asm()
        for g, tag in enumerate(BM):
            k, t_, x, y, _ = tag
            b.L.append(mk_mfma(k, t_, x, y))
            for d, name in TEMPLATE[g]:
                r = PROTO[name].mk((st + d) % 4)
                for i in (r if isinstance(r, list) else [r]):
                    if i.kind == "dma": i.rel = (PROTO[name].blk[0], 3)
                    if i.kind == "salu_m0":
                        if i.pre == "V" and LE - (LE - st) % 4 + 3 == S:
                            b.salu(f"s_cmp_eq_u32 s{S_CNT}, 1")
                            for sr in (S_V + 2, S_K + 2): b.salu(f"s_cselect_b32 s{sr}, 0, s{sr}")
                    b.L.append(i)
            if g == BAR_POS:
                b.raw("s_waitcnt vmcnt(8)", "wait")
                b.raw("s_barrier", "barrier", loopbar=True, retire={("K", (st - 1) % 4), ("V", (st - 1) % 4)})
                if st == (LE + 1 + opt("cpf2blk", 1)) % 4 and opt("cpf2", 1):
                    b.raw(f"global_load_dword {vr(VT+16)}, {vr(VT+17)}, s[62:63]", "vmem", RV(VT + 17), RV(VT + 16), extra=True)
        blocks.append(b.L)
    assert S >= 16
    flat = [i for k in range(4) for i in blocks[(LE + 1 + k) % 4]]
    marks = {id(bl[0]): k for k, bl in enumerate(blocks)}
    _, q1 = insert_lgkm_waits(flat, [])
    body, q2 = insert_lgkm_waits(flat, q1)
    assert [(i.text, a_) for i, a_ in q1] == [(i.text, a_) for i, a_ in q2]
    body = hoist_waits(merge_waits(body))
    body2 = []
    for i in body:
        if id(i) in marks and marks[id(i)] != (LE + 1) % 4:
            lab = I(f"L_blk{marks[id(i)]}:", "label")
            if body2[-1].kind == "wait" and "lgkm" in body2[-1].text: body2.insert(len(body2) - 1, lab)
            else: body2.append(lab)
        body2.append(i)
    body = body2
    tailctl = [I(f"s_sub_u32 s{S_CNT}, s{S_CNT}, 1", "salu"), I(f"s_cmp_lg_u32 s{S_CNT}, 0", "salu"), I("s_cbranch_scc1 L_loop", "salu")]
    if TS:
        x = Asm(); emit_ts(x); tailctl = x.L + tailctl
    chk = fix_hazards(body + tailctl + body, report="loop")
    assert len(chk) == len(body) * 2 + len(tailctl), "hazards in loop"
    q = list(vq1)
    for vb in range(b0, LE + 1):
        for i in blocks[vb % 4]:
            if i.kind == "dma": q.append(I("", "dma", tag=(i.rel[0], vb + i.rel[1])))
            if getattr(i, "extra", False): q.append(I("", "vmem"))
            if getattr(i, "loopbar", False):
                q = q[-8:]
                badtags = {o.tag for o in q if o.kind == "dma"} & {("K", vb + 1), ("V", vb + 1)}
                assert not badtags, f"vmcnt insufficient at block {vb}: {badtags}"
                assert not any(getattr(o, "isload", False) for o in q)
    vq2 = q

    assert RL < N, "needs at least one wrap-around pass"
    start2 = P.base[RL]; end2 = len(P.spine)
    opbyname = {(o.step, o.name): o for sg in allops for o in allops[sg]}
    eops = []
    lastgap = end2 - 1
    XL = P.lastpass[NT]
    xbar = P.phase[(XL + 1, "Pb")] - 1
    assert xbar in P.bars
    c = Chain(XL, max(start2, P.xbar[XL] + 1), 2.0)
    adds = [opbyname[(XL, f"add{NT}0{k}")] for k in range(4)]
    lr = lreduce_ops(c, VL(NT), SX, adds)
    c.add(I(f"ds_write2st64_b32 {vr(VEX(0))}, {vr(VL(NT))}, {vr(VL(NT))} offset0:32 offset1:36", "ldsw", RV(VEX(0), VL(NT))), [lr])
    for o in c.ops: o.hardD = xbar
    eops += c.ops
    c = Chain(XL, xbar + 1, 0)
    lp = [c.add(I(f"ds_read2st64_b32 {vr(SX+2*p,2)}, {vr(VEX(p))} offset0:32 offset1:34", "lds", RV(VEX(p)), R("v", SX + 2 * p, 2), grp=("lx",))) for p in range(2)]
    for o in lp: o.D = xbar + 1
    c.E += 8
    s1 = c.add(Vi(f"v_add_f32 {vr(SX)}, {vr(SX)}, {vr(SX+1)}", [SX, SX + 1], SX), lp)
    s2 = c.add(Vi(f"v_add_f32 {vr(SX+2)}, {vr(SX+2)}, {vr(SX+3)}", [SX + 2, SX + 3], SX + 2), lp)
    s3 = c.add(Vi(f"v_add_f32 {vr(VL(NT))}, {vr(SX)}, {vr(SX+2)}", [SX, SX + 2], VL(NT)), [s1, s2])
    rc = c.add(I(f"v_rcp_f32 {vr(SX)}, {vr(VL(NT))}", "trans", RV(VL(NT)), RV(SX)), [s3]); rc.cost = 8
    c.add(range_check(VL(NT)), [s3]).cost = 8
    c.E = max(c.E, P.pos[("PV", NT, 1, 4, XL)] + 4)
    xq_ = VQ(NT, 0)
    h0 = half_chunk(c, AO(NT, 0), xq_, xq_, SX, rc, [])
    h1 = half_chunk(c, AO(NT, 4), xq_ + 4, xq_ + 2, SX, rc, [h0])
    store_chunk(c, xq_, [h0, h1], S_ROW(NT), VSTX)
    prevrd = []
    eops += c.ops
    for t in sorted(range(NT), key=lambda t: P.lastpass[t]):
        sl = P.lastpass[t]
        E0 = max(start2, P.pos[("PV", t, 0, 7, sl)] + 1)
        c = Chain(sl, E0, 0)
        tmp = SP(0, t)
        if t in LM:
            lreg = VL(t)
            c.E = max(c.E, min(lastgap, P.pos[("LS", t, 1, 0, sl)] + 4))
            lr = c.add(I(f"v_accvgpr_read_b32 {vr(lreg)}, {ar(ALM(t))}", "valu", R("a", ALM(t)), R("v", lreg)))
        else:
            lreg = VL(t)
            adds = [opbyname[(sl, f"add{t}{j}{k}")] for j in range(4) for k in range(4)]
            lr = lreduce_ops(c, VL(t), tmp, adds)
        rc = c.add(I(f"v_rcp_f32 {vr(tmp+2)}, {vr(lreg)}", "trans", R("v", lreg), R("v", tmp + 2)), [lr]); rc.cost = 8
        c.add(range_check(lreg), [lr]).cost = 8
        wr = {}
        for dt in range(8):
            buf = VQ(t, dt % 4)
            Em = P.pos[("PV", t, 1, dt, sl)]
            c.E = max(c.E, min(Em + 4, lastgap))
            exposed = sl == N - 1 and c.E + opt("pkmargin", 4) >= lastgap
            if str(t) in opt("stage", "01234"):
                h = half_chunk(c, AO(t, dt), buf, buf, tmp + 2, rc, [wr.get(dt - 4)], exposed)
                wr[dt] = stage_write(c, t, dt, buf, [h] + prevrd); wr[dt].cost = 12
            elif dt < 4: wr[dt] = half_chunk(c, AO(t, dt), buf, buf, tmp + 2, rc, [], exposed)
            else:
                wr[dt] = half_chunk(c, AO(t, dt), SP(dt % 2, t) + 4, buf + 2, tmp + 2, rc, [wr[dt - 4], wr[dt - 2]], exposed)
                store_chunk(c, buf, [wr[dt]], S_ROW(t), VSD(dt % 4))
        if str(t) in opt("stage", "01234"): prevrd = stage_out(c, t, VQ(t, 0), list(wr.values()), opt("stlag", 4))
        eops += c.ops
    e = Asm()
    load = {g: 0.0 for g in range(start2, end2 + 1)}
    for sg in range(RL, N):
        lo, hi = P.base[sg], P.base[sg + 1]
        w = sum(opcost(o) for o in allops[sg] if o.cls != "free") + sum(v for g, v in RES.items() if lo <= g < hi)
        for g in range(lo, hi): load[g] += w / (hi - lo)
    fin = sorted({P.lastpass[t] for t in range(NT + 1)})
    for k, sl in enumerate(fin[:-1]):
        lo = max(start2, P.first[("PV", 1, sl)]); hi = P.first[("PV", 1, fin[k + 1])] + (8 if k + 2 < len(fin) else 0)
        w = sum(opcost(o) for o in eops if o.step == sl)
        hi = max(lo + int((hi - lo) * opt("epwin", 0.5)), min(hi, P.last[("PV", 1, sl)] + 16))
        for g in range(lo, hi): load[g] += w / (hi - lo)
    caps2 = {}; acc = 0.0
    for g in range(start2, end2 + 1):
        acc += max(8.0, load[g] * opt("cap2scale", 1.05)); caps2[g] = int(acc // 4) * 4; acc -= caps2[g]
    print("region 2:", end2 - start2, "mfma; caps", [round(load[(P.base[sg] + P.base[sg + 1]) // 2], 1) for sg in range(RL, N)])
    gaps2, pend = schedule(free2 + eops, start2, end2 + 1, flush=True, reserve=RES, capf=lambda g: caps2[g])
    assert not pend
    emit_region(e, gaps2, start2, end2 + 1)
    e.valu(f"v_cmp_nle_f32_e64 s[{S_BAD}:{S_BAD+1}], s{S_LO}, {vr(VMN)}", R("v", VMN), R("s", S_BAD, 2))
    e.valu(f"v_cmp_nge_f32_e64 s[{S_T}:{S_T+1}], s{S_HI}, {vr(VMX)}", R("v", VMX), R("s", S_T, 2))
    e.valu(f"v_cmp_u_f32 vcc, {vr(VCHK)}, {vr(VCHK+1)}", R("v", VCHK, 2), R("s", 106))
    e.salu(f"s_or_b64 s[{S_BAD}:{S_BAD+1}], s[{S_BAD}:{S_BAD+1}], s[{S_T}:{S_T+1}]")
    e.salu(f"s_or_b64 s[{S_BAD}:{S_BAD+1}], s[{S_BAD}:{S_BAD+1}], vcc")
    e.salu(f"s_cmp_lg_u64 s[{S_BAD}:{S_BAD+1}], 0")
    if opt("forceslow", 0) == 1: e.salu("s_cmp_eq_u32 s2, s2")
    if opt("forceslow", 0) == 2: e.salu(f"s_cmp_eq_u32 s{S_W}, 2")
    e.salu("s_cbranch_scc1 L_slow")
    emit_ts_store(e)
    e.label("L_end")
    e.raw("s_endpgm", "other")
    r2, _ = insert_lgkm_waits(e.L, q2)
    r2, _ = insert_vm_waits(r2, vq2)
    r2 = fix_hazards(hoist_waits(merge_waits(r2)), ctx=body[-30:] + tailctl)
    if WALK:
        fb = [k for k, i in enumerate(r1) if getattr(i, "firstbar", False)][0] + opt("walkskip", 200)
        regs = {"1": r1[fb:], "b": body, "2": r2[:-8]}
        outs, q = add_pads([regs[c] for c in WALK])
        for c, o in zip(WALK, outs):
            if c == "1": r1 = r1[:fb] + o
            if c == "b": body = o
            if c == "2": r2 = o + r2[-8:]
        k = [k for k, i in enumerate(r1) if i.text == "WALK"][0]
        w = [I("s_mov_b64 exec, 0", "salu")]
        for j in range(1, 4): w += [I(f"s_cmp_eq_u32 s{S_W}, {j}", "salu"), I(f"s_cbranch_scc1 L_w{j*q}", "salu")]
        w += [I("s_branch L_w0", "salu"), I("L_back:", "label"), I("s_mov_b64 exec, -1", "salu")]
        r1 = r1[:k] + w + r1[k + 1:]
        print("walk: hops per wave", q)
    return P, r1, body, tailctl, r2

def build_slow():
    def emit_op(a, o):
        r = o.mk(0)
        a.L += r if isinstance(r, list) else [r]
    def AOs(t, dt): return 32 * t + 4 * dt
    s = Asm()
    Vs = s.V
    def VM(t): return 164 + t
    SS = 96; MX = 160; AL = 161; TM = 162
    def PP(t): return 112 + 8 * t
    s.label("L_slow")
    s.raw("s_waitcnt vmcnt(0) lgkmcnt(0)", "wait")
    s.raw("s_barrier", "barrier")
    s.salu(f"s_mov_b32 s{S_K+2}, 262144")
    s.salu(f"s_mov_b32 s{S_V+2}, 262144")
    for t in range(NT + 1):
        for k in range(4): s.L.append(q_load(t, k))
    for r in range(192): s.valu(f"v_accvgpr_write_b32 {ar(r)}, 0", (), R("a", r))
    for t in range(NT + 1):
        Vs(f"v_mov_b32 {vr(VL(t))}, 0", [], VL(t))
        Vs(f"v_mov_b32 {vr(VM(t))}, 0xff800000", [], VM(t))
    s.salu(f"s_lshl_b32 s33, s{S_W}, 12")
    s.salu(f"s_lshl_b32 s{S_M0K}, s{S_W}, 14")
    s.salu(f"s_sub_u32 s32, s{S_M0K}, {LDS_V}")
    for j in range(4):
        Vs(f"v_subrev_u32 {vr(VDK(j))}, s{S_PIECE}, {vr(VDK(j))}", [VDK(j)], VDK(j))
        if j < 2: Vs(f"v_subrev_u32 {vr(VDV(j))}, s33, {vr(VDV(j))}", [VDV(j)], VDV(j))
        for p in range(2): Vs(f"v_add_u32 {vr(VKA(j,p))}, s{S_M0K}, {vr(VKA(j,p))}", [VKA(j, p)], VKA(j, p))
        for c in range(4): Vs(f"v_add_u32 {vr(VVA(j,c))}, s32, {vr(VVA(j,c))}", [VVA(j, c)], VVA(j, c))
    s.raw("s_waitcnt vmcnt(0)", "wait")
    for t in range(NT + 1): scale_tile_pk(s, t, VT + 8)
    s.salu("s_mov_b32 s33, 0")
    s.salu(f"s_mov_b32 s{S_CNT}, 16")
    s.label("L_slow_loop")
    def fill(which):
        so = S_KOFF if which == "K" else S_VOFF
        for pc in range(4):
            s.salu(f"s_add_u32 s{so}, s33, {(pc & 1) * 8192 + (pc >> 1) * 128 if which == 'K' else 4096 * pc}")
            s.raw(f"s_add_u32 m0, s{S_M0K}, {4096*pc}", "salu_m0")
            s.nop(1)
            for j in range(4): s.L.append(dma(which, j))
        s.raw("s_waitcnt vmcnt(0)", "wait")
    fill("K")
    def KF(j, k): return 192 + 16 * j + 4 * k
    for j in range(4):
        for k in range(4):
            s.raw(f"ds_read_b128 {ar(KF(j,k),4)}, {vr(VKA(j, k % 2))} offset:{(k//2)*8192}", "lds", R("v", VKA(j, k % 2)), R("a", KF(j, k), 4))
        s.raw("s_waitcnt lgkmcnt(0)", "wait")
    fill("V")
    for t in range(NT + 1):
        for j in range(4):
            for k in range(4):
                d = SS + 4 * j
                c = "0" if k == 0 else vr(d, 4)
                s.raw(f"v_mfma_f32_16x16x32_bf16 {vr(d,4)}, {ar(KF(j,k),4)}, {vr(VQ(t,k),4)}, {c}", "mfma",
                      R("a", KF(j, k), 4) | R("v", VQ(t, k), 4) | (R("v", d, 4) if k else set()), R("v", d, 4),
                      cacc=R("v", d, 4) if k else set())
        s.nop(10)
        Vs(f"v_max3_f32 {vr(MX)}, {vr(SS)}, {vr(SS+1)}, {vr(SS+2)}", [SS, SS + 1, SS + 2], MX)
        for r in range(3, 15, 2):
            Vs(f"v_max3_f32 {vr(MX)}, {vr(MX)}, {vr(SS+r)}, {vr(SS+r+1)}", [MX, SS + r, SS + r + 1], MX)
        Vs(f"v_max_f32 {vr(MX)}, {vr(MX)}, {vr(SS+15)}", [MX, SS + 15], MX)
        for sw in ("v_permlane32_swap_b32", "v_permlane16_swap_b32"):
            Vs(f"v_mov_b32 {vr(TM)}, {vr(MX)}", [MX], TM)
            s.nop(2)
            s.valu(f"{sw} {vr(MX)}, {vr(TM)}", RV(MX, TM), RV(MX, TM))
            s.nop(2)
            Vs(f"v_max_f32 {vr(MX)}, {vr(MX)}, {vr(TM)}", [MX, TM], MX)
        Vs(f"v_max_f32 {vr(MX)}, {vr(MX)}, {vr(VM(t))}", [MX, VM(t)], MX)
        Vs(f"v_sub_f32 {vr(AL)}, {vr(VM(t))}, {vr(MX)}", [MX, VM(t)], AL)
        Vs(f"v_exp_f32 {vr(AL)}, {vr(AL)}", [AL], AL, "trans")
        Vs(f"v_mov_b32 {vr(VM(t))}, {vr(MX)}", [MX], VM(t))
        for r in range(16): Vs(f"v_sub_f32 {vr(SS+r)}, {vr(SS+r)}, {vr(MX)}", [SS + r, MX], SS + r)
        for r in range(16): Vs(f"v_exp_f32 {vr(SS+r)}, {vr(SS+r)}", [SS + r], SS + r, "trans")
        Vs(f"v_mul_f32 {vr(VL(t))}, {vr(VL(t))}, {vr(AL)}", [VL(t), AL], VL(t))
        for r in range(16): Vs(f"v_add_f32 {vr(VL(t))}, {vr(VL(t))}, {vr(SS+r)}", [VL(t), SS + r], VL(t))
        for r in range(8): Vs(f"v_cvt_pk_bf16_f32 {vr(PP(t)+r)}, {vr(SS+2*r)}, {vr(SS+2*r+1)}", [SS + 2 * r, SS + 2 * r + 1], PP(t) + r)
        for r in range(32):
            tm = VT + 8 + (r % 8)
            s.valu(f"v_accvgpr_read_b32 {vr(tm)}, {ar(AOs(t,0)+r)}", R("a", AOs(t, 0) + r), R("v", tm))
            Vs(f"v_mul_f32 {vr(tm)}, {vr(tm)}, {vr(AL)}", [tm, AL], tm)
            s.valu(f"v_accvgpr_write_b32 {ar(AOs(t,0)+r)}, {vr(tm)}", R("v", tm), R("a", AOs(t, 0) + r))
    s.nop(10)
    def VF(p, dt): return 192 + 32 * p + 4 * dt
    for p in range(2):
        for dt in range(8):
            for h in range(2):
                j = 2 * p + h
                s.raw(f"ds_read_b64_tr_b16 {ar(VF(p,dt)+2*h,2)}, {vr(VVA(j, dt % 4))} offset:{(dt//4)*512}", "lds",
                      R("v", VVA(j, dt % 4)), R("a", VF(p, dt) + 2 * h, 2))
            if dt % 4 == 3: s.raw("s_waitcnt lgkmcnt(0)", "wait")
    for t in range(NT + 1):
        for p in range(2):
            for dt in range(8):
                d = AOs(t, dt)
                s.raw(f"v_mfma_f32_16x16x32_bf16 {ar(d,4)}, {ar(VF(p,dt),4)}, {vr(PP(t)+4*p,4)}, {ar(d,4)}", "mfma",
                      R("a", VF(p, dt), 4) | R("v", PP(t) + 4 * p, 4) | R("a", d, 4), R("a", d, 4), cacc=R("a", d, 4))
    s.nop(10)
    s.salu("s_add_u32 s33, s33, 16384")
    s.salu(f"s_sub_u32 s{S_CNT}, s{S_CNT}, 1")
    s.salu(f"s_cmp_lg_u32 s{S_CNT}, 0")
    s.salu("s_cbranch_scc1 L_slow_loop")
    for t in range(NT + 1):
        c = Chain(0, 0, 1.0)
        lr = lreduce_ops(c, VL(t), TM, [])
        rc = c.add(I(f"v_rcp_f32 {vr(MX)}, {vr(VL(t))}", "trans", RV(VL(t)), RV(MX)), [lr])
        if t < NT:
            for dt in range(8):
                h = half_chunk(c, AOs(t, dt), 4 * dt, 4 * dt, MX, rc, [])
                stage_write(c, t, dt, 4 * dt, [h])
            stage_out(c, t, 32, [], 0, wait=True)
        else:
            h0 = half_chunk(c, AOs(t, 0), 0, 0, MX, rc, [])
            h1 = half_chunk(c, AOs(t, 4), 4, 2, MX, rc, [h0])
            store_chunk(c, 0, [h1], S_ROW(t), VSTX)
        for o in c.ops: emit_op(s, o)
        s.raw("s_waitcnt vmcnt(0)", "wait")
    s.raw("s_waitcnt vmcnt(0)", "wait")
    s.raw("s_endpgm", "other")
    return fix_hazards(s.L)

def main():
    P, r1, body, tailctl, r2 = build()
    slow = build_slow()
    lines = []
    ref = open("standalone__gqa_softmax__near_ridge.s.ref").read().splitlines()
    for l in ref:
        if l.startswith("; @launch"): break
        lines.append(l)
    lines.append("; @launch grid=(256,1,1) block=(256,1,1) lds=163840")
    lines.append('.amdgcn_target "amdgcn-amd-amdhsa--gfx950"')
    lines.append(".text")
    lines.append(f".globl {KNAME}")
    lines.append(".p2align 8")
    lines.append(f".type {KNAME},@function")
    lines.append(f"{KNAME}:")
    def dump(L):
        for i in L: lines.append(i.text if i.kind == "label" else "    " + i.text)
    dump(r1)
    lines.append(".p2align 6")
    lines.append("L_loop:")
    ABL = {"store": "buffer_store_dwordx4", "swap": "v_permlane", "acc": "v_accvgpr", "stw": "ds_write_b64", "str": "ds_read_b128 v",
           "cmp": ("v_cmp_n", "s_or_b64"), "chk": "v_mfma_f32_16x16x32_bf16 v[228", "mul": ("v_mul", "v_pk_mul"), "bar": "s_barrier", "wait": "s_waitcnt lgkmcnt("}
    for x in opt("abl", "").split(","):
        if x: r2 = [i for k, i in enumerate(r2) if not (i.text.startswith(ABL[x]) and not (x == "wait" and r2[k - 1].kind == "smem"))]
    if opt("abl", ""): r2 = [i for i in r2 if "L_slow" not in i.text]
    dump(body); dump(tailctl); lines.append("L_r2:"); dump(r2); dump(slow)
    lines.append('.section .rodata,"a"')
    lines.append(".p2align 6")
    lines.append(f".amdhsa_kernel {KNAME}")
    lines.append("  .amdhsa_next_free_vgpr 512")
    lines.append("  .amdhsa_next_free_sgpr 64")
    lines.append("  .amdhsa_accum_offset 256")
    lines.append("  .amdhsa_group_segment_fixed_size 0")
    lines.append("  .amdhsa_kernarg_size 48")
    lines.append("  .amdhsa_user_sgpr_count 2")
    lines.append("  .amdhsa_user_sgpr_kernarg_segment_ptr 1")
    lines.append("  .amdhsa_system_sgpr_workgroup_id_x 1")
    lines.append(".end_amdhsa_kernel")
    open(OUT, "w").write("\n".join(lines) + "\n")
    nn = lambda L: sum(1 for i in L if i.kind == "nop")
    print("written", OUT, "r1", len(r1), f"(nops {nn(r1)})", "body", len(body), "waits", sum(1 for i in body if i.kind == "wait"),
          "r2", len(r2), f"(nops {nn(r2)})", "slow", len(slow))

if __name__ == "__main__":
    if "stats" in OPTS:
        PF = regular(3)
        PR = {o.name: o for o in PF.ops(1) + PF.dma_ops(1)}
        RS = PF.reserve()
        hist = {}
        for g, l in enumerate(TEMPLATE):
            c = sum(opcost(PR[n]) for _, n in l) + RS.get(PF.base[1] + g, 0)
            hist[c] = hist.get(c, 0) + 1
            print(g, BM[g][:4], c, l)
        print(hist)
    else:
        main()
```
